```python
import torch

def _softmax(x, axis=-1):
    return torch.softmax(x, dim=axis)
def _gelu(x):
    return torch.nn.functional.gelu(x, approximate="tanh")
def _silu(x):
    return torch.nn.functional.silu(x)
def _sigmoid(x):
    return torch.sigmoid(x)
def _layernorm(x, axis=-1, eps=1e-5):
    m = x.mean(dim=axis, keepdim=True)
    v = x.var(dim=axis, keepdim=True, unbiased=False)
    return (x - m) / torch.sqrt(v + eps)
def _scatter_add(tgt, idx, src, axis=0):
    return tgt.clone().index_add_(axis, idx, src)
def _segment_sum(src, seg, n):
    out = torch.zeros((n,) + src.shape[1:], dtype=src.dtype)
    return out.index_add_(0, seg, src)
def _pad(x, pw):
    flat = tuple(v for pair in reversed(pw) for v in pair)
    return torch.nn.functional.pad(x, flat)

kernel_name = 'parallel_sum__compressed_kv_cla__dense_activation_mish__prompt'

def setup_inputs():

    _w = (lambda a: (lambda t: t.to(torch.bfloat16) if t.is_floating_point() else t)(torch.as_tensor(a)))
    def _A_setup():
        B, H, Sq, Sk, D, M = 1, 32, 2048, 2048, 128, 512
        Dc = 4 * D
        return {
            "x": _w((lambda *s: torch.randn(*s, dtype=torch.bfloat16) * 0.05)(B, Sq, M)),
            "c_kv": _w((lambda *s: torch.randn(*s, dtype=torch.bfloat16) * 0.4)(B, Sk, Dc)),
            "w_q": _w((lambda *s: torch.randn(*s, dtype=torch.bfloat16) * 3.2)(M, H, D) * (M ** -0.5)),
            "w_uk": _w((lambda *s: torch.randn(*s, dtype=torch.bfloat16) * 3.2)(Dc, H, D) * (Dc ** -0.5)),
            "w_uv": _w((lambda *s: torch.randn(*s, dtype=torch.bfloat16) * 0.4)(Dc, H, D) * (Dc ** -0.5)),
            "w_o": _w((lambda *s: torch.randn(*s, dtype=torch.bfloat16) * 0.4)(H, D, M) * ((H * D) ** -0.5)),
        }
    _A_in = _A_setup()

    def _B_setup():
        B, S, D, F = 1, 2048, 512, 1792
        return {
            "x": _w((lambda *s: torch.randn(*s, dtype=torch.bfloat16) * 0.05)(B, S, D)),
            "w1": _w((lambda *s: torch.randn(*s, dtype=torch.bfloat16) * 0.8)(D, F) * (D ** -0.5)),
            "b1": _w((lambda *s: torch.randn(*s, dtype=torch.bfloat16) * 0.2)(F)),
            "w2": _w((lambda *s: torch.randn(*s, dtype=torch.bfloat16) * 0.1)(F, D) * (F ** -0.5)),
        }
    _B_in = _B_setup()

    return {
        "A_x": _A_in["x"],
        "A_c_kv": _A_in["c_kv"],
        "A_w_q": _A_in["w_q"],
        "A_w_uk": _A_in["w_uk"],
        "A_w_uv": _A_in["w_uv"],
        "A_w_o": _A_in["w_o"],
        "B_x": _B_in["x"],
        "B_w1": _B_in["w1"],
        "B_b1": _B_in["b1"],
        "B_w2": _B_in["w2"],
    }

def reference(A_x, A_c_kv, A_w_q, A_w_uk, A_w_uv, A_w_o, B_x, B_w1, B_b1, B_w2):
    def _A_ref(x, c_kv, w_q, w_uk, w_uv, w_o):
        B, Sq, M = x.shape[0], x.shape[1], x.shape[2]
        Sk = c_kv.shape[1]
        H, D = w_q.shape[1], w_q.shape[2]
        q = torch.einsum("bqm,mhd->bhqd", x, w_q)
        k = torch.einsum("bkc,chd->bhkd", c_kv, w_uk)
        v = torch.einsum("bkc,chd->bhkd", c_kv, w_uv)
        scores = torch.einsum("bhqd,bhkd->bhqk", q, k) * (D ** -0.5)
        off = Sk - Sq
        qi = torch.arange(Sq)[:, None]
        kj = torch.arange(Sk)[None, :]
        cmask = kj <= (qi + off)
        scores = torch.where(cmask[None, None], scores, -1e9)
        p = _softmax(scores, axis=-1)
        ctx = torch.einsum("bhqk,bhkd->bhqd", p, v)
        return torch.einsum("bhqd,hdm->bqm", ctx, w_o)

    def _B_ref(x, w1, b1, w2):
        h = torch.einsum("bsd,df->bsf", x, w1) + b1
        sp = torch.log1p(torch.exp(-torch.abs(h))) + torch.where(h > 0, h, torch.zeros_like(h))
        act = h * torch.tanh(sp)
        return torch.einsum("bsf,fd->bsd", act, w2)

    x = A_x
    xn = _layernorm(x, axis=-1)
    return x + _A_ref(xn, A_c_kv, A_w_q, A_w_uk, A_w_uv, A_w_o) + _B_ref(xn, B_w1, B_b1, B_w2)
```

```python
import re

TRANS = ("v_exp_f32", "v_log_f32", "v_rcp_f32", "v_rsq_f32", "v_sqrt_f32")
REG_RE = re.compile(r"^(-?)(?:abs\()?([vas])(?:(\d+)|\[(\d+):(\d+)\])\)?$")


def regs_of(tok):
    tok = tok.strip()
    if tok == "vcc":
        return [("s", "vcc")]
    if tok in ("m0", "exec"):
        return [("s", tok)]
    m = REG_RE.match(tok)
    if not m:
        return []
    f = m.group(2)
    if m.group(3) is not None:
        return [(f, int(m.group(3)))]
    return [(f, i) for i in range(int(m.group(4)), int(m.group(5)) + 1)]


class Op:
    __slots__ = ("text", "kind", "reads", "writes", "tag", "needs", "lds_wr", "lds_rd", "vm", "lg",
                 "fixed", "srcc", "passes", "mn", "comment", "ab")

    def __init__(self, text, tag=None, needs=(), lds_wr=None, lds_rd=None, comment=None):
        self.text = text
        self.tag = tag
        self.needs = list(needs)
        self.lds_wr = lds_wr
        self.lds_rd = lds_rd
        self.vm = None
        self.lg = None
        self.fixed = False
        self.srcc = []
        self.ab = []
        self.passes = 0
        self.comment = comment
        self.parse()

    def parse(self):
        t = self.text
        if t.endswith(":"):
            self.kind, self.mn, self.reads, self.writes = "label", "", [], []
            return
        if t.startswith("."):
            self.kind, self.mn, self.reads, self.writes = "label", "", [], []
            return
        parts = t.split(None, 1)
        mn = parts[0]
        self.mn = mn
        rest = parts[1] if len(parts) > 1 else ""
        toks = [x.strip() for x in rest.split(",")] if rest else []
        mods = ""
        if toks:
            out = []
            for i, x in enumerate(toks):
                if " " in x:
                    out.append(x.split()[0])
                    mods = " ".join([x.split(None, 1)[1]] + toks[i + 1:])
                    break
                out.append(x)
            toks = out
        R = [regs_of(x) for x in toks]
        flat = lambda l: [r for x in l for r in x]
        rd, wr = [], []
        if mn.startswith("v_mfma"):
            self.kind = "mfma"
            wr = R[0]
            rd = flat(R[1:])
            self.srcc = R[3]
            self.ab = R[1] + R[2]
            self.passes = 4 if "16x16x32" in mn else 8
        elif mn.startswith("v_cmp"):
            self.kind = "valu"
            wr = R[0]
            rd = flat(R[1:])
        elif mn.startswith("v_permlane") or mn.startswith("v_swap"):
            self.kind = "valu"
            wr = flat(R)
            rd = flat(R)
        elif mn.startswith("v_nop"):
            self.kind = "valu"
        elif mn.startswith("v_"):
            self.kind = "trans" if mn.startswith(TRANS) else "valu"
            wr = R[0]
            rd = flat(R[1:])
            if mn.startswith(("v_fmac", "v_dot2c")) or "_dpp" in mn:
                rd = rd + R[0]
        elif mn.startswith("ds_read") or mn.startswith("ds_bpermute"):
            self.kind = "ds"
            wr = R[0]
            rd = flat(R[1:])
        elif mn.startswith("ds_write"):
            self.kind = "dsw"
            rd = flat(R)
        elif mn.startswith(("buffer_load", "global_load")):
            if re.search(r"\blds\b", mods):
                self.kind = "dma"
                rd = flat(R) + [("s", "m0")]
            else:
                self.kind = "vld"
                wr = R[0]
                rd = flat(R[1:])
        elif mn.startswith(("buffer_store", "buffer_atomic", "global_store")):
            self.kind = "vst"
            rd = flat(R)
        elif mn == "s_waitcnt":
            self.kind = "wait"
            self.fixed = True
            m = re.search(r"vmcnt\((\d+)\)", t)
            self.vm = int(m.group(1)) if m else None
            m = re.search(r"lgkmcnt\((\d+)\)", t)
            self.lg = int(m.group(1)) if m else None
        elif mn == "s_barrier":
            self.kind = "bar"
        elif mn.startswith(("s_cbranch", "s_branch", "s_endpgm", "s_setpc")):
            self.kind = "branch"
            if "scc" in mn:
                rd = [("s", "scc")]
            if "vcc" in mn:
                rd = [("s", "vcc")]
        elif mn in ("s_nop", "s_sleep", "s_setprio"):
            self.kind = "salu"
        elif mn.startswith(("s_load", "s_memtime", "s_memrealtime")):
            self.kind = "smem"
            wr = R[0]
            rd = flat(R[1:])
        elif mn.startswith(("s_cmp", "s_bitcmp")):
            self.kind = "salu"
            rd = flat(R)
            wr = [("s", "scc")]
        elif mn.startswith("s_"):
            self.kind = "salu"
            wr = list(R[0])
            rd = flat(R[1:])
            if mn.startswith(("s_add", "s_sub", "s_and", "s_or", "s_xor", "s_lshl", "s_lshr", "s_min", "s_max", "s_bfe", "s_ashr")):
                wr.append(("s", "scc"))
            if mn.startswith(("s_addc", "s_subb", "s_cselect")):
                rd.append(("s", "scc"))
            if mn.startswith("s_addk"):
                rd += R[0]
            if "saveexec" in mn:
                wr.append(("s", "exec"))
        else:
            raise ValueError("unknown instr: " + t)
        self.reads, self.writes = rd, wr

    def render(self):
        if self.kind == "wait" and not self.fixed:
            p = []
            if self.vm is not None and self.vm < 63:
                p.append(f"vmcnt({self.vm})")
            if self.lg is not None and self.lg < 15:
                p.append(f"lgkmcnt({self.lg})")
            t = "s_waitcnt " + " ".join(p) if p else "s_nop 0"
        else:
            t = self.text
        return t

    def states(self):
        if self.mn == "s_nop":
            return int(self.text.split()[1]) + 1
        if self.kind == "label":
            return 0
        return 1


def W(vm=False, lg=False):
    o = Op("s_waitcnt")
    o.fixed = False
    o.vm = 63 if vm else None
    o.lg = 15 if lg else None
    return o


COST = {"valu": 1, "trans": 2, "ds": 2, "dsw": 6, "dma": 3, "vld": 3, "vst": 6, "salu": 1, "wait": 1,
        "bar": 1, "branch": 1, "label": 0, "smem": 1}


def op_cost(o):
    if o.kind == "dsw":
        return 6 if "b128" in o.mn else 3
    if o.kind == "vst":
        return 6 if "x4" in o.mn else 4
    if o.mn == "s_nop":
        return o.states()
    return COST[o.kind]


def gap_slots(ops):
    t = 1
    for o in ops:
        if o.kind in ("valu", "trans"):
            t = max(t, 2)
        t += op_cost(o)
    return t


class Seg:
    def __init__(self, name):
        self.name = name
        self.pre = []
        self.mf = []
        self.nv = []
        self.va = []
        self.post = []

    def mfma(self, text):
        self.mf.append(Op(text))
        self.nv.append([])
        self.va.append([])
        return len(self.mf) - 1

    def n(self):
        return len(self.mf)

    def gap(self, g):
        return self.nv[g] + self.va[g]

    def used(self, g):
        return gap_slots(self.gap(g))

    def put(self, g, op, front=False):
        if isinstance(op, str):
            op = Op(op)
        lst = self.va[g] if op.kind in ("valu", "trans") else self.nv[g]
        if front:
            lst.insert(0, op)
        else:
            lst.append(op)
        return g

    def cap(self, g):
        return 4 if self.mf[g].passes == 4 else 8

    def extra(self, g, op):
        if op.kind in ("valu", "trans"):
            new = gap_slots(self.nv[g] + self.va[g] + [op])
        else:
            new = gap_slots(self.nv[g] + [op] + self.va[g])
        c = self.cap(g)
        return max(new, c) - max(self.used(g), c)

    def intrinsic(self, op):
        return max(0, gap_slots([op]) - 4)

    def place(self, op, lo, hi, latest=False):
        if isinstance(op, str):
            op = Op(op)
        lo = max(lo, 0)
        hi = min(hi, self.n() - 1)
        assert lo <= hi, (self.name, op.text, lo, hi)
        rng = range(hi, lo - 1, -1) if latest else range(lo, hi + 1)
        best, bg = None, None
        base = self.intrinsic(op)
        for g in rng:
            e = self.extra(g, op)
            if e <= base:
                return self.put(g, op)
            if best is None or e < best:
                best, bg = e, g
        return self.put(bg, op)

    def flow(self, ops, lo, hi, rel=None, dl=None, spread=False):
        g = lo
        last_valu_gap = -1
        out = []
        n = len(ops)
        for i, op in enumerate(ops):
            if isinstance(op, str):
                op = Op(op)
            r = g
            if rel is not None and rel[i] is not None:
                r = max(r, rel[i])
            if spread:
                r = max(r, lo + (i * (hi - lo + 1)) // n)
            if op.kind not in ("valu", "trans") and last_valu_gap >= r:
                r = last_valu_gap + 1
            d = hi
            if dl is not None and dl[i] is not None:
                d = min(d, dl[i])
            d = max(d, r)
            d = min(d, self.n() - 1)
            r = min(r, d)
            g = self.place(op, r, d)
            if op.kind in ("valu", "trans"):
                last_valu_gap = g
            out.append(g)
        return out

    def linear(self):
        L = list(self.pre)
        for i, m in enumerate(self.mf):
            L.append(m)
            L += self.nv[i] + self.va[i]
        return L + list(self.post)

    def cycles(self):
        c = 4 * sum(op_cost(o) if o.kind != "mfma" else o.passes for o in self.pre + self.post)
        for g in range(self.n()):
            c += 4 * max(self.cap(g), self.used(g))
        return c

    def auto_lg_waits(self, lat=6, incoming=(), verbose=False):
        pend = {r: -10 ** 6 for r in incoming}
        waits = [g for g in range(self.n()) if any(o.kind == "wait" and o.lg is not None for o in self.nv[g])]
        late = 0
        for o in self.pre:
            if o.kind == "ds":
                for r in o.writes:
                    pend[r] = -1
            elif o.kind == "wait" and o.lg is not None:
                pend = {}
        for i in range(self.n()):
            m = self.mf[i]
            need = [pend[r] for r in m.reads if r in pend]
            if need:
                rg = max(need)
                if not any(rg < w <= i - 1 and w >= rg + min(lat, i - 1 - rg) for w in waits):
                    lo = max(0, rg + 1, min(rg + lat, i - 1))
                    if i == 0:
                        self.pre.append(W(lg=True))
                    else:
                        g = None
                        for c in range(i - 1, lo - 1, -1):
                            for o in self.nv[c]:
                                if o.kind == "wait" and not o.fixed and o.lg is None and self.nv[c].index(o) == 0:
                                    o.lg = 15
                                    g = c
                                    break
                            if g is not None:
                                break
                        if g is None:
                            w = W(lg=True)
                            best = None
                            for c in range(i - 1, lo - 1, -1):
                                e = self.extra(c, w)
                                if best is None or e < best[0]:
                                    best = (e, c)
                                if e == 0:
                                    break
                            g = best[1]
                            self.put(g, w, front=True)
                        waits.append(g)
                        if g - rg < lat:
                            late += 1
                            if verbose:
                                print(f"  [{self.name}] short lds latency: read gap {rg}, wait gap {g}, use {i}")
                for r in m.reads:
                    pend.pop(r, None)
            for o in self.nv[i]:
                if o.kind == "ds":
                    for r in o.writes:
                        pend[r] = i
        return late


class Plain:
    def __init__(self, name):
        self.name = name
        self.ops = []

    def e(self, x, **kw):
        if isinstance(x, str):
            x = Op(x, **kw)
        self.ops.append(x)
        return x

    def linear(self):
        return list(self.ops)

    def cycles(self):
        return 4 * sum(op_cost(o) if o.kind != "mfma" else o.passes for o in self.ops)


def ev(x, ctx):
    return x(ctx) if callable(x) else x


VM = ("dma", "vld", "vst")
LG = ("ds", "dsw", "smem")


class TraceError(Exception):
    pass


class Tracer:
    def __init__(self, name, trace):
        self.name = name
        self.tr = [(o, c) for (o, c) in trace if o.kind != "label"]

    def err(self, i, msg):
        lo = max(0, i - 12)
        ctxt = "\n".join(f"   {'>>' if k == i else '  '} {self.tr[k][0].render()}" for k in range(lo, min(len(self.tr), i + 2)))
        raise TraceError(f"[{self.name}] at {i}: {msg}\n{ctxt}")

    def run(self, resolve):
        tr = self.tr
        n = len(tr)
        cls = lambda o: "vm" if o.kind in VM else ("lg" if o.kind in LG else None)
        cnt = {"vm": [0] * (n + 1), "lg": [0] * (n + 1)}
        waits = {"vm": [], "lg": []}
        bars = []
        for i, (o, c) in enumerate(tr):
            for k in cnt:
                cnt[k][i + 1] = cnt[k][i] + (1 if cls(o) == k else 0)
        import bisect
        done = {"vm": -1, "lg": -1}
        donepos = {"vm": [], "lg": []}

        def covered(k, p, limit):
            ordn = cnt[k][p]
            lst = waits[k]
            a = bisect.bisect_right(lst, p)
            b = bisect.bisect_right(lst, limit)
            for w in lst[a:b]:
                N = getattr(tr[w][0], k)
                if cnt[k][w] - N > ordn:
                    return True
            return False

        def require(i, p, shared, what):
            k = cls(tr[p][0])
            limit = i
            if shared:
                b = bisect.bisect_left(bars, i) - 1
                if b < 0 or bars[b] < p:
                    self.err(i, f"no barrier between producer {p} ({tr[p][0].text}) and consumer for {what}")
                limit = bars[b]
            if covered(k, p, limit):
                return
            if resolve:
                lst = waits[k]
                b = bisect.bisect_right(lst, limit) - 1
                while b >= 0 and lst[b] > p and tr[lst[b]][0].fixed:
                    b -= 1
                if b < 0 or lst[b] < p:
                    self.err(i, f"no {k} wait between producer {p} ({tr[p][0].text}) and consumer for {what}")
                w = lst[b]
                N = cnt[k][w] - cnt[k][p] - 1
                setattr(tr[w][0], k, min(getattr(tr[w][0], k), N))
            else:
                self.err(i, f"uncovered {k} dependency on {p} ({tr[p][0].text}) for {what}")

        pendreg = {}
        tagpos = {}
        lds = {}
        smem_out = False
        for i, (o, c) in enumerate(tr):
            if o.kind == "wait":
                if o.vm is not None:
                    waits["vm"].append(i)
                if o.lg is not None:
                    waits["lg"].append(i)
                    if smem_out and o.lg != 0:
                        self.err(i, "counted lgkm wait with smem outstanding")
                    if o.lg == 0:
                        smem_out = False
                continue
            if o.kind == "bar":
                bars.append(i)
                continue
            for r in o.reads + o.writes:
                if r in pendreg:
                    p = pendreg[r]
                    if r in o.writes and r not in o.reads and cls(o) == cls(tr[p][0]) and o.kind != "smem":
                        continue
                    require(i, p, False, f"reg {r}")
                    del pendreg[r]
            for (tag, shared) in o.needs:
                tag = ev(tag, c)
                if tag not in tagpos:
                    self.err(i, f"needs unknown tag {tag}")
                require(i, tagpos[tag], shared, f"tag {tag}")
            if o.lds_rd is not None:
                phys, tag, shared = ev(o.lds_rd, c)
                st = lds.get(phys)
                if st is None or st["tag"] != tag:
                    self.err(i, f"lds region {phys} holds {st and st['tag']} but {tag} expected")
                require(i, st["wr"], shared, f"lds RAW {phys} {tag}")
                st["rd"] = i
            if o.lds_wr is not None:
                lw = ev(o.lds_wr, c)
                for (phys, tag, shared) in (lw if isinstance(lw, list) else [lw]):
                    st = lds.get(phys)
                    if st is not None and st["rd"] is not None:
                        require(i, st["rd"], shared, f"lds WAR {phys} {st['tag']}->{tag}")
                    if st is not None and st["tag"] != tag:
                        if st["rd"] is None and cls(tr[st["wr"]][0]) != cls(o):
                            require(i, st["wr"], shared, f"lds WAW {phys}")
                        st = None
                    if st is None:
                        st = lds[phys] = {"tag": tag, "wr": i, "rd": None}
                    st["wr"] = i
            if o.kind in ("ds", "vld", "smem"):
                for r in o.writes:
                    pendreg[r] = i
                if o.kind == "smem":
                    smem_out = True
            if o.tag is not None:
                tagpos[ev(o.tag, c)] = i
        if not resolve:
            for k, mx in (("vm", 63), ("lg", 15)):
                dn = 0
                for i, (o, c) in enumerate(tr):
                    if o.kind == "wait" and getattr(o, k) is not None:
                        dn = max(dn, cnt[k][i] - getattr(o, k))
                    if cls(o) == k and cnt[k][i + 1] - dn > mx:
                        if k == "vm":
                            self.err(i, f"more than {mx} outstanding {k} ops")

    def hazards(self):
        tr = self.tr
        t = 0
        last_mfma_t, last_mfma_p = -100, 0
        wr_valu = {}
        wr_mfma = {}
        rd_srcc = {}
        st_data = {}
        wr_salu = {}
        soft = 0
        idx = 0
        for i, (o, c) in enumerate(tr):
            if o.kind == "mfma":
                t = max(t, last_mfma_t + last_mfma_p)
            now = t

            def chk(tab, r, need, what, timed=False):
                nonlocal soft
                if r in tab:
                    pt, pi, po = tab[r]
                    d_i = idx - pi - 1
                    d_t = now - pt - 1
                    if timed:
                        if d_t < need + 1 and d_i < need:
                            self.err(i, f"hazard {what} on {r}: {d_t} timed / {d_i} counted states < {need} after: {po.text}")
                        if d_i < need:
                            soft += 1
                    elif d_i < need:
                        self.err(i, f"hazard {what} on {r}: {d_i} < {need} after: {po.text}")

            isv = o.kind in ("valu", "trans")
            if o.kind == "mfma":
                for r in o.reads:
                    chk(wr_valu, r, 2, "valu->mfma")
                for r in o.ab:
                    if r in wr_mfma:
                        chk(wr_mfma, r, {4: 8, 8: 12}[wr_mfma[r][2].passes], "mfma->mfma A/B", True)
                for r in o.srcc:
                    if r in wr_mfma:
                        po = wr_mfma[r][2]
                        if not (po.writes == o.srcc and po.passes == o.passes):
                            chk(wr_mfma, r, {4: 6, 8: 10}[po.passes], "mfma->mfma C overlap", True)
                for r in o.writes:
                    if r in wr_mfma and r not in o.srcc:
                        po = wr_mfma[r][2]
                        if po.passes > o.passes:
                            chk(wr_mfma, r, {4: 6, 8: 10}[po.passes], "mfma WAW", True)
            else:
                for r in o.reads + o.writes:
                    if r in wr_mfma:
                        chk(wr_mfma, r, {4: 8, 8: 12}[wr_mfma[r][2].passes], "mfma->other", True)
            if isv:
                for r in o.writes:
                    if r in rd_srcc:
                        chk(rd_srcc, r, {4: 3, 8: 7}[rd_srcc[r][2].passes], "srcC WAR", True)
                    chk(st_data, r, 2, "store data WAR")
                for r in o.reads:
                    if r in wr_valu:
                        po = wr_valu[r][2]
                        if r[0] == "s":
                            chk(wr_valu, r, 2, "valu sgpr->valu")
                        if po.kind == "trans" and o.kind != "trans":
                            chk(wr_valu, r, 1, "trans->valu")
                        if o.mn.startswith("v_permlane") or "_dpp" in o.mn:
                            chk(wr_valu, r, 2, "valu->permlane/dpp")
                        if o.mn.startswith(("v_readfirstlane", "v_readlane")):
                            chk(wr_valu, r, 1, "valu->readlane")
            elif o.kind in ("vld", "ds"):
                for r in o.writes:
                    chk(st_data, r, 1, "store data WAR (load)")
            if o.kind in VM:
                for r in o.reads:
                    if r[0] == "s":
                        chk(wr_valu, r, 5, "valu sgpr->vmem")
                if o.kind == "dma":
                    chk(wr_salu, ("s", "m0"), 1, "m0->dma")
                for r in o.reads:
                    if r in wr_valu and wr_valu[r][2].kind == "trans":
                        chk(wr_valu, r, 1, "trans->vmem")
            if o.kind in ("salu", "branch"):
                for r in o.reads:
                    if r in wr_valu:
                        chk(wr_valu, r, 1, "valu sgpr->salu (pad)")
            if ("s", "scc") in o.reads:
                po = wr_salu.get(("s", "scc"))
                if po is None:
                    self.err(i, "scc read without writer")
                pm = po[2].mn
                ok = pm.startswith("s_add_u32") and idx - po[1] == 1 if o.mn.startswith("s_addc") else pm.startswith("s_cmp")
                if not ok:
                    self.err(i, "scc clobbered by " + po[2].text)
            if o.kind == "branch" and ("s", "vcc") in o.reads:
                po = wr_valu.get(("s", "vcc"))
                if po is None or "_le_i32" in po[2].mn or idx - po[1] > 6:
                    self.err(i, "vcc branch without its compare")
            if o.mn.startswith("v_cndmask"):
                po = wr_valu.get(o.reads[-1])
                if po is None or "_le_i32" not in po[2].mn:
                    self.err(i, "cndmask mask clobbered")
            rec = (now, idx, o)
            for r in o.writes:
                wr_valu.pop(r, None)
                wr_mfma.pop(r, None)
                wr_salu.pop(r, None)
                if isv:
                    wr_valu[r] = rec
                elif o.kind == "mfma":
                    wr_mfma[r] = rec
                elif o.kind == "salu":
                    wr_salu[r] = rec
            if o.kind == "mfma":
                for r in o.srcc:
                    rd_srcc[r] = rec
                last_mfma_t, last_mfma_p = now, o.passes
            if o.kind == "vst" and ("x4" in o.mn or "x3" in o.mn):
                for r in regs_of(o.text.split(None, 1)[1].split(",")[0]):
                    st_data[r] = rec
            s = o.states()
            t += s
            idx += s
        return soft


class Task:
    __slots__ = ("op", "rel", "dl", "preds", "gap", "idx")

    def __init__(self, op, rel, dl, preds=()):
        self.op = Op(op) if isinstance(op, str) else op
        self.rel, self.dl = rel, dl
        self.preds = list(preds)
        self.gap = None


def schedule(S, tasks):
    N = S.n()
    for i, t in enumerate(tasks):
        t.idx = i
        t.rel = max(0, t.rel)
        t.dl = min(N - 1, t.dl)
    for _ in range(64):
        ch = False
        for t in tasks:
            for p, d in t.preds:
                if t.rel < p.rel + d:
                    t.rel = p.rel + d
                    ch = True
                if p.dl > t.dl - d:
                    p.dl = t.dl - d
                    ch = True
        if not ch:
            break
    for t in tasks:
        if t.dl < t.rel:
            assert t.rel <= N - 1, (S.name, t.op.text, t.rel, t.dl)
            t.dl = t.rel
    big = lambda t: t.op.kind in ("ds", "trans", "dma", "vld", "vst", "dsw")
    left = list(tasks)

    def ready(t, g):
        if t.rel > g:
            return False
        for p, d in t.preds:
            if p.gap is None or p.gap + d > g:
                return False
            if p.gap == g and p.op.kind in ("valu", "trans") and t.op.kind not in ("valu", "trans"):
                return False
        return True

    def put(t, g):
        S.put(g, t.op)
        t.gap = g
        left.remove(t)

    key = lambda t: (t.dl, t.idx)
    for g in range(N):
        while True:
            c = sorted((t for t in left if t.dl <= g and ready(t, g)), key=key)
            if not c:
                break
            put(c[0], g)
        while True:
            c = sorted((t for t in left if big(t) and ready(t, g)), key=key)
            c0 = [t for t in c if S.extra(g, t.op) <= S.intrinsic(t.op)]
            if c0:
                put(c0[0], g)
                continue
            bl = sorted(t.dl for t in left if big(t))
            over = [dl for k, dl in enumerate(bl) if k + 1 > dl - g]
            if over:
                c1 = [t for t in c if t.dl <= over[0] and S.extra(g, t.op) <= 1 and S.used(g) <= 4]
                if c1:
                    put(c1[0], g)
                    continue
            break
        while True:
            c = sorted((t for t in left if not big(t) and ready(t, g) and S.extra(g, t.op) == 0), key=key)
            if not c:
                break
            put(c[0], g)
    assert not left, (S.name, [(t.op.text, t.rel, t.dl) for t in left])
```

```python
import sys, struct, argparse
from fw import *

NAME = "parallel_sum__compressed_kv_cla__dense_activation_mish__prompt"
MB = 1 << 20
KB = 1024
XN_RT = 17 * KB
KV_T = 17 * KB
KV_H = 32 * KV_T + 5 * KB
ACT_HD = 17 * KB
ACT_HOFF = 32 * ACT_HD
ACT_RG = ACT_HOFF + 56 * 4096 + 5 * KB
XN_OFF = 0
K_OFF = 3 * MB
V_OFF = 21 * MB + 10 * KB
ACT_OFF = 39 * MB
FLAG_OFF = 66 * MB
HFLAG_OFF = FLAG_OFF + 4096
CFLAG_OFF = FLAG_OFF + 8192
STAMP_OFF = 68 * MB
QDUMP_OFF = 72 * MB
WS_BYTES = 256 * MB

SLOT = [128 * 1024, 0, 32 * 1024]
CST = 64 * 1024
VRING = 0
KRING = 64 * 1024
SPARE = 128 * 1024
LDS_BYTES = 160 * 1024


def f32(x):
    return "0x%08x" % struct.unpack("<I", struct.pack("<f", x))[0]


LOG2E = 1.4426950408889634
SCALE = LOG2E * 128 ** -0.5

pX, pC, pWQ, pWK, pWV, pWO, pBX, pW1, pB1, pW2, pOUT, pDBG, pWS = [4 + 2 * i for i in range(13)]
rW, rC, rWS, rH, rDBG, rX, rV = 32, 36, 40, 44, 48, 52, 56
rK = rC
sB = 2
sWv, sH, sJ = 60, 61, 62
sWp8, sWp1 = 63, 64
sT = [65, 66, 67, 68]
sCb = 69
sM0c, sM0w = 70, 71
sKVst = 72
sRT = [73, 74, 75, 76]
sAct = [77, 78, 79, 80]
sFlagKV, sFlagH, sFlagC = 81, 82, 83
sSC = 84
sTmp, sTmp2 = 85, 86
sSpin = 87
sBad = 88
sKo, sVo = 90, 91
sMc, sMn = 92, 93
sCnt = 94
sFb = 95
sStamp = 96
sMask = 98
sPollKV = 3
sL2E = 30
sStampOff = 31


def srd(r):
    return f"s[{r}:{r+3}]"


def vr(b, n=4):
    return f"v[{b}:{b+n-1}]" if n > 1 else f"v{b}"


def ar(b, n=4):
    return f"a[{b}:{b+n-1}]" if n > 1 else f"a{b}"


vSel0 = 0
vL16 = 1
vW8, vW1 = 2, 3
vCD = [4, 5]
vCR = [6, 7]
vWRa = [8, 9, 10, 11]
vWRb = [12, 13, 14, 15]
B0, B1, B2 = 16, 80, 144
WF = 208
T0 = 240

MF = "v_mfma_f32_16x16x32_bf16"
MF32 = "v_mfma_f32_32x32x16_bf16"
vKc, vKn, vVc, vVn = 4, 5, 6, 7
SB = B2
BANK = B2 + 16
NEG = {1: B2 + 32, 2: B2 + 36, 3: B2 + 40}
NEG3L = B2 + 44
NEG0 = B2 + 48
MX = B2 + 52
ZERO, ONES = WF, WF + 4
ET = WF + 8
Z0, Z1, NINF, vP, vA, vD, Zt, Zu = [T0 + 8 + i for i in range(8)]
aO, aL, aK, aV = 0, 128, 144, 176
sMA, sMB = 98, 100
LAT = 7
vR = [8, 9, 10, 11]
vDm = [12, 13, 14, 15]
vAo = [B2 + 60 + i for i in range(4)]
AR = B0
WF2 = B2
sRG, sCG = sRT[0], sRT[1]
sActH, sActC = sRT[2], sRT[3]
sW2b, sWob = sWp8, sWp1
sM0p = sCb
sPollH = sKVst
sPollC = 70
PD = 6


def Qf(t, u):
    return B1 + 16 * u + 4 * t


def Pf(par, t, kg):
    return B0 + 32 * par + 8 * t + 4 * kg


def negsrc(t):
    return NEG0 if t == 0 else NEG[t]


class Gen:
    def __init__(self, a):
        self.a = a
        self.blocks = []
        self.ool = []
        self.nstamp = 0
        self.rot = 0
        self.m0 = None

    def st(self):
        self.rot = (self.rot + 1) % 4
        return sT[self.rot]

    def stamp_ops(self):
        if not self.a.stamps:
            return []
        i = self.nstamp
        self.nstamp += 1
        return [Op(f"s_memtime s[{sStamp}:{sStamp+1}]"), Op("s_waitcnt lgkmcnt(0)"),
                Op(f"s_bitset1_b32 s{sStamp}, 31"), Op(f"s_bitset0_b32 s{sStamp}, 30"), Op(f"s_bitset0_b32 s{sStamp}, 0"), Op(f"s_bitset0_b32 s{sStamp}, 1"),
                Op(f"v_writelane_b32 v{vSel0}, s{sStamp}, {i + 1}")]

    def set_m0(self, text):
        if text == self.m0:
            return []
        self.m0 = text
        return [Op(text)]

    def mk_srd(self, e, r, p, nbytes):
        e(f"s_mov_b32 s{r}, s{p}")
        e(f"s_mov_b32 s{r+1}, s{p+1}")
        e(f"s_mov_b32 s{r+2}, {nbytes}")
        e(f"s_mov_b32 s{r+3}, 0x20000")

    def w_dma(self, n, i):
        slot = (n + 2) % 3
        ops = []
        if i == 0 and n in (4, 8, 10):
            p = {4: pWV, 8: pW1, 10: pWQ}[n]
            ops += [Op(f"s_mov_b32 s{rW}, s{p}"), Op(f"s_mov_b32 s{rW+1}, s{p+1}")]
            if n == 8:
                ops.append(Op(f"s_min_u32 s{rW+2}, s{rH+2}, {512*3584}"))
            if n == 10:
                ops.append(Op(f"s_mov_b32 s{rW+2}, {4*MB}"))
        ops += self.set_m0(f"s_add_u32 m0, s{sM0w}, {SLOT[slot] + (i >> 2) * 4096}")
        if n in (8, 9):
            pitch, base, sreg, v = 3584, (n - 8) * 256 * 3584, sWp1, vW1
        else:
            kq = n % 4 if n < 8 else n - 10
            pitch, base, sreg, v = 8192, kq * 128 * 8192, sWp8, vW8
        off = base + (16 * (i >> 1) + 4 * (i & 1)) * pitch - (i & 3) * 1024
        s = self.st()
        ops.append(Op(f"s_add_u32 s{s}, s{sreg}, {off}"))
        wr = [(("W", slot), ("W", n), True)]
        if n == 2:
            wr.append((("X", i >> 2), ("W", n), False))
        ops.append(Op(f"buffer_load_dwordx4 v{v}, {srd(rW)}, s{s} offen offset:{(i & 3) * 1024} lds", lds_wr=wr))
        return ops

    def c_region(self, u):
        if u < 4:
            return ("C", u)
        if u < 6:
            return ("X", u - 4)
        return ("C", (u - 6) % 4)

    def c_dma(self, u):
        kq, rt = u >> 2, u & 3
        reg = self.c_region(u)
        s = self.st()
        ops = [Op(f"s_add_u32 s{s}, s{sCb}, {rt * 16 * 1024 + kq * 256}")]
        for kh in range(2):
            if reg[0] == "C":
                ops += self.set_m0(f"s_add_u32 m0, s{sM0c}, {CST + reg[1] * 4096 + kh * (2048 - 128)}")
            else:
                ops += self.set_m0(f"s_add_u32 m0, s{sM0w}, {SLOT[1] + reg[1] * 4096 + kh * (2048 - 128)}")
            for rg in range(2):
                ops.append(Op(f"buffer_load_dwordx4 v{vCD[rg]}, {srd(rC)}, s{s} offen offset:{rg * 1024 + kh * 128} lds",
                              lds_wr=(reg, ("c", u), False)))
        return ops

    def c_reads(self, u):
        kq, rt = u >> 2, u & 3
        reg = self.c_region(u)
        ops = []
        for s in range(4):
            a = vCR[s & 1] if reg[0] == "C" else T0 + 14 + (s & 1)
            ops.append(Op(f"ds_read_b128 {ar(64*kq + 16*rt + 4*s)}, v{a} offset:{reg[1] * 4096 + (s >> 1) * 2048}",
                          lds_rd=(reg, ("c", u), False)))
        return ops

    def w_reads(self, G):
        n, gi = G >> 3, G & 7
        slot = (n + 2) % 3
        hf, c4 = gi >> 2, gi & 3
        a = (vWRb if slot == 0 else vWRa)[c4]
        base = (0 if slot == 0 else SLOT[slot]) + hf * 16384
        ops = []
        for s in range(4):
            for hh in range(2):
                d = WF + 16 * (G & 1) + 4 * s + 2 * hh
                ops.append(Op(f"ds_read_b64_tr_b16 {vr(d, 2)}, v{a} offset:{base + s * 4096 + hh * 1024}",
                              lds_rd=(("W", slot), ("W", n), True)))
        return ops

    def pad_m0(self, ops):
        out = []
        for o in ops:
            if o.kind == "dma" and out and ("s", "m0") in out[-1].writes:
                out.append(Op("s_nop 0"))
            out.append(o)
        return out

    def poll(self, name, load_text, cmp_text):
        p = Plain("spin_" + name)
        p.e(f"L_spin_{name}:")
        p.e(f"s_mov_b32 s{sSpin}, 0")
        p.e(f"L_spin2_{name}:")
        p.e("s_sleep 4")
        p.e(load_text)
        p.e(f"s_add_u32 s{sSpin}, s{sSpin}, 1")
        p.e(f"s_cmp_gt_u32 s{sSpin}, 200000")
        p.e("s_waitcnt vmcnt(0)")
        p.e(f"s_cbranch_scc1 L_back_{name}")
        p.e(cmp_text)
        p.e("s_nop 1")
        p.e(f"s_cbranch_vccnz L_spin2_{name}")
        p.e(f"s_branch L_back_{name}")
        self.ool.append(p)
        return Op(load_text), [W(vm=True), Op(cmp_text)], [Op(f"s_cbranch_vccnz L_spin_{name}"), Op(f"L_back_{name}:")]

    def prologue(self):
        p = Plain("prologue")
        e = p.e
        e(f"s_cmp_ge_u32 s{sB}, 256")
        e("s_cbranch_scc1 L_end")
        e("s_load_dwordx16 s[4:19], s[0:1], 0")
        e("s_load_dwordx8 s[20:27], s[0:1], 64")
        e("s_load_dwordx2 s[28:29], s[0:1], 96")
        t = T0
        e(f"v_lshrrev_b32 v{t}, 6, v0")
        e(f"v_and_b32 v{t+1}, 63, v0")
        e(f"v_readfirstlane_b32 s{sWv}, v{t}")
        e(f"v_lshlrev_b32 v{vL16}, 4, v{t+1}")
        e(f"v_min_u32 v0, 1, v0")
        e(f"v_lshlrev_b32 v{vSel0}, 28, v0")
        e(f"s_and_b32 s{sH}, s{sB}, 7")
        e(f"s_lshl_b32 s{sH}, s{sH}, 2")
        e(f"s_bfe_u32 s{sTmp}, s{sB}, 0x20003")
        e(f"s_add_u32 s{sH}, s{sH}, s{sTmp}")
        e(f"s_lshr_b32 s{sJ}, s{sB}, 5")
        e(f"v_and_b32 v{t+2}, 31, v{t+1}")
        e(f"v_lshrrev_b32 v{t+3}, 5, v{t+1}")
        e(f"v_lshlrev_b32 v{t+4}, 10, v{t+3}")
        e(f"v_lshl_add_u32 v{t+4}, v{t+2}, 4, v{t+4}")
        e(f"s_lshl_b32 s{sTmp}, s{sB}, 13")
        e(f"s_lshl_b32 s{sTmp2}, s{sWv}, 11")
        e(f"s_add_u32 s{sTmp}, s{sTmp}, s{sTmp2}")
        e(f"v_lshrrev_b32 v{t+5}, 3, v{t+1}")
        e(f"v_and_b32 v{t+6}, 7, v{t+1}")
        e(f"v_lshrrev_b32 v{t+7}, 4, v{t+1}")
        e(f"v_xor_b32 v{t+8}, v{t+6}, v{t+7}")
        e(f"v_lshlrev_b32 v{t+8}, 4, v{t+8}")
        e(f"v_lshl_add_u32 v{vCD[0]}, v{t+5}, 10, v{t+8}")
        e(f"v_xor_b32 v{vCD[1]}, 64, v{vCD[0]}")
        e(f"v_add_u32 v{vCD[1]}, {8192 - 1024}, v{vCD[1]}")
        e(f"s_lshl_b32 s{sCb}, s{sJ}, 18")
        e(f"s_lshl_b32 s{sTmp2}, s{sWv}, 16")
        e(f"s_add_u32 s{sCb}, s{sCb}, s{sTmp2}")
        e(f"s_lshl_b32 s{sM0c}, s{sWv}, 14")
        e(f"s_lshl_b32 s{sM0w}, s{sWv}, 13")
        e(f"v_and_b32 v{t+9}, 3, v{t+5}")
        e(f"v_lshl_add_u32 v{t+9}, v{t+3}, 3, v{t+9}")
        e(f"v_lshlrev_b32 v{t+10}, 1, v{t+7}")
        e(f"v_xor_b32 v{t+10}, v{t+10}, v{t+6}")
        e(f"v_lshlrev_b32 v{t+10}, 4, v{t+10}")
        e(f"v_lshl_add_u32 v{vW8}, v{t+9}, 13, v{t+10}")
        e(f"v_mul_u32_u24 v{vW1}, 3584, v{t+9}")
        e(f"v_add_u32 v{vW1}, v{vW1}, v{t+10}")
        e(f"s_and_b32 s{sWp8}, s{sWv}, 1")
        e(f"s_lshl_b32 s{sWp8}, s{sWp8}, 19")
        e(f"s_lshr_b32 s{sTmp2}, s{sWv}, 1")
        e(f"s_lshl_b32 s{sTmp2}, s{sTmp2}, 7")
        e(f"s_add_u32 s{sWp8}, s{sWp8}, s{sTmp2}")
        e(f"s_lshl_b32 s{sTmp2}, s{sH}, 8")
        e(f"s_add_u32 s{sWp8}, s{sWp8}, s{sTmp2}")
        e("s_waitcnt lgkmcnt(0)")
        self.mk_srd(e, rX, pX, 2 * MB)
        X = B2
        e(f"buffer_load_dwordx4 {vr(X)}, v{t+4}, {srd(rX)}, s{sTmp} offen")
        e(f"buffer_load_dwordx4 {vr(X+4)}, v{t+4}, {srd(rX)}, s{sTmp} offen offset:512")
        self.mk_srd(e, rC, pC, 2 * MB)
        self.mk_srd(e, rW, pWK, 4 * MB)
        for o in self.pad_m0(sum((self.w_dma(0, i) for i in range(8)), [])):
            e(o)
        for o in self.pad_m0(sum((self.c_dma(u) for u in range(4)), [])):
            e(o)
        for o in self.stamp_ops():
            e(o)
        self.mk_srd(e, rWS, pWS, WS_BYTES)
        self.mk_srd(e, rDBG, pDBG, 256)
        self.mk_srd(e, rH, pWS, WS_BYTES)
        e(f"s_cmp_lt_u32 s{sH}, 28")
        e(f"s_cselect_b32 s{rH+2}, s{rH+2}, 0")
        for o in self.pad_m0(sum((self.w_dma(1, i) for i in range(8)), [])):
            e(o)
        e(f"s_lshl_b32 s{sPollKV}, s{sH}, 7")
        e(f"s_add_u32 s{sPollKV}, s{sPollKV}, {FLAG_OFF}")
        e(f"s_lshl_b32 s{sTmp}, s{sJ}, 2")
        e(f"s_add_u32 s{sFlagKV}, s{sPollKV}, s{sTmp}")
        e(f"s_lshl_b32 s{sTmp}, s{sJ}, 5")
        e(f"s_add_u32 s{sTmp}, s{sTmp}, s{sH}")
        e(f"s_lshl_b32 s{sFlagH}, s{sTmp}, 2")
        e(f"s_add_u32 s{sFlagH}, s{sFlagH}, {HFLAG_OFF}")
        e(f"s_lshr_b32 s{sTmp}, s{sTmp}, 3")
        e(f"s_lshl_b32 s{sFlagC}, s{sTmp}, 7")
        e(f"s_add_u32 s{sFlagC}, s{sFlagC}, {CFLAG_OFF}")
        e(f"v_mov_b32 v{t+11}, 0x10000000")
        e(f"v_mov_b32 v{t+12}, 0")
        e(f"v_writelane_b32 v{t+11}, s{sFlagKV}, 0")
        e(f"v_writelane_b32 v{t+11}, s{sFlagH}, 1")
        e(f"v_writelane_b32 v{t+11}, s{sFlagC}, 2")
        e(f"buffer_store_dword v{t+12}, v{t+11}, {srd(rWS)}, 0 offen sc1", tag="clr")
        e(f"s_mul_i32 s{sWp1}, s{sWv}, {64 * 3584}")
        e(f"s_lshl_b32 s{sTmp}, s{sH}, 7")
        e(f"s_add_u32 s{sWp1}, s{sWp1}, s{sTmp}")
        e(f"s_mul_i32 s{sKVst}, s{sH}, {KV_H}")
        e(f"s_lshl_b32 s{sTmp}, s{sJ}, 2")
        e(f"s_add_u32 s{sTmp}, s{sTmp}, s{sWv}")
        e(f"s_mul_i32 s{sTmp}, s{sTmp}, {KV_T}")
        e(f"s_add_u32 s{sKVst}, s{sKVst}, s{sTmp}")
        e(f"s_lshl_b32 s{sTmp}, s{sJ}, 3")
        e(f"s_add_u32 s{sRT[0]}, s{sTmp}, s{sWv}")
        e(f"s_sub_u32 s{sRT[1]}, s{sTmp}, s{sWv}")
        e(f"s_add_u32 s{sRT[1]}, s{sRT[1]}, 7")
        e(f"s_sub_u32 s{sRT[2]}, 127, s{sRT[1]}")
        e(f"s_sub_u32 s{sRT[3]}, 127, s{sRT[0]}")
        for i in range(4):
            e(f"s_lshr_b32 s{sTmp}, s{sRT[i]}, 2")
            e(f"s_mul_i32 s{sAct[i]}, s{sTmp}, {ACT_RG}")
            e(f"s_and_b32 s{sTmp}, s{sRT[i]}, 3")
            e(f"s_lshl_b32 s{sTmp}, s{sTmp}, 10")
            e(f"s_add_u32 s{sAct[i]}, s{sAct[i]}, s{sTmp}")
            e(f"s_add_u32 s{sAct[i]}, s{sAct[i]}, {ACT_OFF}")
            e(f"s_mul_i32 s{sRT[i]}, s{sRT[i]}, {XN_RT}")
        e(f"s_mov_b32 s{sSC}, {f32(SCALE)}")
        e(f"s_mov_b32 s{sL2E}, {f32(LOG2E)}")
        e(f"s_mov_b32 s{sFb}, 0")
        e(f"v_and_b32 v{t+11}, 15, v{t+1}")
        e(f"v_lshrrev_b32 v{t+12}, 1, v{t+11}")
        e(f"v_xor_b32 v{t+12}, v{t+12}, v{t+7}")
        e(f"v_lshlrev_b32 v{t+12}, 4, v{t+12}")
        e(f"v_lshl_add_u32 v{t+12}, v{t+11}, 7, v{t+12}")
        e(f"v_xor_b32 v{t+13}, 64, v{t+12}")
        e(f"s_add_u32 s{sTmp}, s{sM0c}, {CST}")
        e(f"v_add_u32 v{vCR[0]}, s{sTmp}, v{t+12}")
        e(f"v_add_u32 v{vCR[1]}, s{sTmp}, v{t+13}")
        e(f"v_add_u32 v{t+14}, s{sM0w}, v{t+12}")
        e(f"v_add_u32 v{t+15}, s{sM0w}, v{t+13}")
        e(f"v_bfe_u32 v{t+12}, v{t+1}, 2, 3")
        e(f"v_lshlrev_b32 v{t+13}, 7, v{t+12}")
        e(f"v_lshl_add_u32 v{t+13}, v{t+3}, 11, v{t+13}")
        e(f"v_and_b32 v{t+11}, 3, v{t+1}")
        e(f"v_lshl_add_u32 v{t+13}, v{t+11}, 3, v{t+13}")
        e(f"v_lshrrev_b32 v{t+12}, 1, v{t+12}")
        e(f"v_lshl_add_u32 v{vWRa[0]}, v{t+12}, 5, v{t+13}")
        for c in range(1, 4):
            e(f"v_xor_b32 v{vWRa[c]}, {c * 32}, v{vWRa[0]}")
        for c in range(4):
            e(f"v_add_u32 v{vWRb[c]}, {SLOT[0]}, v{vWRa[c]}")
        e(f"v_lshrrev_b32 v{t+12}, 4, v{t+2}")
        e(f"v_lshlrev_b32 v{t+12}, 13, v{t+12}")
        e(f"v_and_b32 v{t+11}, 15, v{t+2}")
        e(f"v_lshl_add_u32 v{t+12}, v{t+11}, 7, v{t+12}")
        e(f"v_lshl_add_u32 v{t+12}, v{t+3}, 4, v{t+12}")
        e(f"s_lshl_b32 s{sTmp}, s{sWv}, 5")
        e(f"v_add_u32 v{t+12}, s{sTmp}, v{t+12}")
        e(f"v_lshlrev_b32 v{t+13}, 4, v{t+6}")
        e(f"v_lshl_add_u32 v{t+13}, v{t+5}, 8, v{t+13}")
        e(f"v_add_u32 v{t+11}, s{sM0w}, v{vL16}")
        F = X + 8
        D = X + 24
        a, b2 = X + 40, X + 41
        e(W(vm=True))
        for i in range(8):
            e(f"v_lshlrev_b32 v{F+2*i}, 16, v{X+i}")
            e(f"v_and_b32 v{F+2*i+1}, 0xffff0000, v{X+i}")

        def rowsum(src):
            for i in range(8):
                e(f"v_add_f32 v{X+44+i}, v{src+2*i}, v{src+2*i+1}")
            for i in range(4):
                e(f"v_add_f32 v{X+44+i}, v{X+44+i}, v{X+48+i}")
            e(f"v_add_f32 v{X+44}, v{X+44}, v{X+46}")
            e(f"v_add_f32 v{X+45}, v{X+45}, v{X+47}")
            e(f"v_add_f32 v{a}, v{X+44}, v{X+45}")
            for m in ("quad_perm:[1,0,3,2]", "quad_perm:[2,3,0,1]", "row_half_mirror", "row_mirror"):
                e("s_nop 1")
                e(f"v_add_f32_dpp v{a}, v{a}, v{a} {m} row_mask:0xf bank_mask:0xf")
            e(f"v_mov_b32 v{b2}, v{a}")
            e("s_nop 1")
            e(f"v_permlane16_swap_b32 v{a}, v{b2}")
            e(f"v_add_f32 v{a}, v{a}, v{b2}")
            e(f"v_mul_f32 v{a}, {f32(1 / 512)}, v{a}")

        def rnd(r):
            e(f"v_cvt_pk_bf16_f32 v{r}, v{r}, v{r}")
            e(f"v_and_b32 v{r}, 0xffff0000, v{r}")
        rowsum(F)
        mean = X + 42
        e(f"v_mov_b32 v{mean}, v{a}")
        for i in range(16):
            e(f"v_sub_f32 v{D+i}, v{F+i}, v{a}")
        for i in range(16):
            e(f"v_mul_f32 v{D+i}, v{D+i}, v{D+i}")
        rowsum(D)
        rnd(a)
        rnd(mean)
        e(f"v_add_f32 v{a}, {f32(1e-5)}, v{a}")
        rnd(a)
        e(f"v_sqrt_f32 v{a}, v{a}")
        for i in range(16):
            e(f"v_sub_f32 v{F+i}, v{F+i}, v{mean}")
        rnd(a)
        e(f"v_rcp_f32 v{a}, v{a}")
        for i in range(8):
            e(f"v_cvt_pk_bf16_f32 v{X+i}, v{F+2*i}, v{F+2*i+1}")
        for i in range(8):
            e(f"v_lshlrev_b32 v{F+2*i}, 16, v{X+i}")
            e(f"v_and_b32 v{F+2*i+1}, 0xffff0000, v{X+i}")
        for i in range(16):
            e(f"v_mul_f32 v{F+i}, v{F+i}, v{a}")
        for i in range(8):
            e(f"v_cvt_pk_bf16_f32 v{X+i}, v{F+2*i}, v{F+2*i+1}")
        e(f"ds_write_b128 v{t+12}, {vr(X)} offset:{SLOT[1]}", lds_wr=(("X", 0), "ln", True))
        e(f"ds_write_b128 v{t+12}, {vr(X+4)} offset:{SLOT[1] + 16384}", lds_wr=(("X", 0), "ln", True))
        e(f"s_lshr_b32 s{sTmp}, s{sB}, 1")
        e(f"s_mul_i32 s{sTmp}, s{sTmp}, {XN_RT}")
        e(f"s_and_b32 s{sTmp2}, s{sB}, 1")
        e(f"s_lshl_b32 s{sTmp2}, s{sTmp2}, 7")
        e(f"s_add_u32 s{sTmp}, s{sTmp}, s{sTmp2}")
        e(f"s_lshl_b32 s{sTmp2}, s{sWv}, 12")
        e(f"s_add_u32 s{sTmp}, s{sTmp}, s{sTmp2}")
        e(W(lg=True))
        e("s_barrier")
        e(f"ds_read_b128 {vr(X)}, v{t+11} offset:{SLOT[1]}", lds_rd=(("X", 0), "ln", True))
        e(f"ds_read_b128 {vr(X+4)}, v{t+11} offset:{SLOT[1] + 1024}", lds_rd=(("X", 0), "ln", True))
        e(W(lg=True))
        e(f"buffer_store_dwordx4 {vr(X)}, v{t+13}, {srd(rWS)}, s{sTmp} offen sc1")
        e(f"buffer_store_dwordx4 {vr(X+4)}, v{t+13}, {srd(rWS)}, s{sTmp} offen offset:2048 sc1", tag="xn")
        for o in self.pad_m0(self.c_dma(4) + self.c_dma(5)):
            e(o)
        for o in self.stamp_ops():
            e(o)
        e(W(vm=True))
        e("s_barrier")
        for o in self.stamp_ops():
            e(o)
        for o in self.w_reads(0) + self.c_reads(0):
            e(o)
        e(W(lg=True))
        for o in self.c_reads(1) + self.c_reads(2) + self.c_reads(3):
            e(o)
        for o in self.pad_m0(self.c_dma(6)):
            e(o)
        e(W(lg=True))
        return p

    def acc(self, n, c, rt):
        if n < 10:
            return B0 + 16 * c + 4 * rt
        return (B1 if c % 2 == 0 else B2) + 16 * (c >> 1) + 4 * rt

    def proj(self):
        S = Seg("proj")
        BIASR, BIAS = T0, T0 + 8
        for G in range(14 * 8):
            n, gi = G >> 3, G & 7
            if n in (8, 9):
                kq, c = 2 * (n - 8) + (gi >> 2), gi & 3
            else:
                kq, c = (n % 4 if n < 8 else n - 10), gi
            for rt in range(4):
                d = vr(self.acc(n, c, rt))
                for s in range(4):
                    w = vr(WF + 16 * (G & 1) + 4 * s)
                    x = ar(64 * kq + 16 * rt + 4 * s)
                    cc = d
                    if kq == 0 and s == 0:
                        cc = vr(BIAS + 4 * (c & 1)) if n == 8 else "0"
                    if 4 <= n < 8:
                        S.mfma(f"{MF} {d}, {x}, {w}, {cc}")
                    else:
                        S.mfma(f"{MF} {d}, {w}, {x}, {cc}")
        NG = 14 * 8
        for G in range(NG - 1):
            for i, o in enumerate(self.w_reads(G + 1)):
                S.put(16 * G + i, o)
            if (G + 1) % 8 == 7:
                S.put(16 * G + 15, W(vm=True, lg=True))
                S.put(16 * G + 15, "s_barrier")
                if self.a.finestamps:
                    for o in self.stamp_ops():
                        S.put(16 * G + 15, o)
            else:
                w = W(lg=True)
                if G % 8 == 2:
                    w.vm = 36
                S.put(16 * G + 15, w)
        for u in range(4, 16):
            G = 2 * (u - 4) + 1
            S.put(16 * G + 7, W(vm=True))
            for i, o in enumerate(self.c_reads(u)):
                S.put(16 * G + 8 + i, o)
        bar_gap = lambda n: 16 * (8 * n + 6) + 15
        jobs = []
        for u in range(7, 16):
            G = 2 * (u - 7)
            jobs.append((16 * G + 4, lambda u=u: ([W(lg=True)] if u >= 10 else []) + self.c_dma(u)))
        for n in range(2, 14):
            for i in range(8):
                if n == 2:
                    G = [3, 3, 3, 5, 5, 5, 7, 7][i]
                elif n < 5:
                    G = 8 * (n - 2) + [1, 1, 1, 3, 3, 3, 5, 5][i]
                else:
                    G = 8 * (n - 2) - 1 + i
                jobs.append((16 * G + 6, lambda n=n, i=i: self.w_dma(n, i)))
        S.flow([f"s_and_b32 s{sTmp}, s{sB}, 3", f"s_lshl_b32 s{sTmp}, s{sTmp}, 6", f"v_mov_b32 v{vD}, 1"], 64, bar_gap(0))
        jobs.append((bar_gap(0) + 13, lambda: [Op(f"buffer_atomic_add v{vD}, v{vSel0}, {srd(rDBG)}, s{sTmp} offen sc1",
                                                  needs=[("xn", True), ("clr", True)])]))
        for u in range(4):
            for rt in range(4):
                k = 4 * u + rt
                rel = max(16 * (32 + 2 * u) + 16, 16 * 32 + 24 + k * 22)

                def f(u=u, rt=rt):
                    s = self.st()
                    return [Op(f"s_add_u32 s{s}, s{sKVst}, {K_OFF + rt * 4096}"),
                            Op(f"buffer_store_dwordx4 {vr(B2 + 16*u + 4*rt)}, v{vL16}, {srd(rWS)}, s{s} offen offset:{u*1024}{self.a.st}", tag="kst")]
                jobs.append((rel, f))
        for dt in range(8):
            for kg in range(2):
                k = 2 * dt + kg
                rel = max(16 * (56 + dt) + 40, 16 * 60 + 8 + k * 20)

                def f(dt=dt, kg=kg):
                    s = self.st()
                    return [Op(f"s_add_u32 s{s}, s{sKVst}, {V_OFF + (dt >> 1) * 4096}"),
                            Op(f"buffer_store_dwordx4 {vr(B2 + 8*dt + 4*kg)}, v{vL16}, {srd(rWS)}, s{s} offen offset:{(dt & 1)*2048 + kg*1024}{self.a.st}", tag="vst")]
                jobs.append((rel, f))
        S.flow([f"v_bfe_u32 v{vA}, v{vL16}, 4, 2", f"v_lshlrev_b32 v{vA}, 6, v{vA}"], 16 * 24, 16 * 30)
        ld, chk, br = self.poll("xn", f"buffer_load_dword v{vP}, v{vA}, {srd(rDBG)}, 0 offen sc1", f"v_cmp_ne_u32 vcc, 64, v{vP}")
        jobs.append((16 * 34 + 8, lambda: [ld]))
        self.put_check(S, 16 * 39 + 12, chk, br)
        for kq in range(4):
            for rt in range(4):
                def f(kq=kq, rt=rt):
                    s = self.st()
                    ops = [Op(f"s_add_u32 s{s}, s{sRT[rt]}, {XN_OFF + kq * 4096}")]
                    for k in range(4):
                        ops.append(Op(f"buffer_load_dwordx4 {ar(64*kq + 16*rt + 4*k)}, v{vL16}, {srd(rWS)}, s{s} offen offset:{k*1024}{self.a.ld}"))
                    return ops
                step = 32 if kq < 3 else 16
                jobs.append((16 * 8 * (5 + kq) + 6 + rt * step, f))
        for kq in range(4):
            g = 16 * (64 + 4 * kq) - 1
            w = S.nv[g][0]
            assert w.kind == "wait"
            w.vm = 63
        S.flow([f"s_mov_b32 s{rX}, s{pB1}", f"s_mov_b32 s{rX+1}, s{pB1+1}", f"s_min_u32 s{rX+2}, s{rH+2}, 3584",
                f"s_lshl_b32 s{sTmp2}, s{sH}, 7", f"v_lshrrev_b32 v{vA}, 8, v{vL16}", f"v_lshlrev_b32 v{vA}, 3, v{vA}"],
               16 * 44, 16 * 47)
        for c in range(4):
            jobs.append((16 * 49 + 8 + 16 * c, lambda c=c: [Op(f"buffer_load_dwordx2 {vr(BIASR + 2*c, 2)}, v{vA}, {srd(rX)}, s{sTmp2} offen offset:{32*c}")]))
        jobs.append((bar_gap(7) + 9, lambda: [Op(f"buffer_store_dword v{vD}, v{vSel0}, {srd(rWS)}, s{sFlagKV} offen sc1", needs=[("kst", True)])]))
        self.extra_jobs(S, jobs, bar_gap)
        HREL = [16 * 84 + 8 + k * 52 for k in range(8)]
        for u in range(2):
            for rt in range(4):
                def f(u=u, rt=rt):
                    s = self.st()
                    return [Op(f"s_lshl_b32 s{s}, s{sH}, 13"), Op(f"s_add_u32 s{s}, s{s}, s{sAct[rt]}"),
                            Op(f"s_add_u32 s{s}, s{s}, {ACT_HOFF + u * 4096}"),
                            Op(f"buffer_store_dwordx4 {vr(B0 + 32*u + 4*rt)}, v{vL16}, {srd(rH)}, s{s} offen{self.a.st}", tag="hst")]
                jobs.append((HREL[4 * u + rt], f))
        jobs.sort(key=lambda x: x[0])
        g = 0
        for rel, f in jobs:
            ops = f()
            nsalu = sum(1 for o in ops if o.kind in ("salu", "wait"))
            first_mem = next(i for i, o in enumerate(ops) if o.kind in VM)
            rels = [max(g, rel - 4) if (i < first_mem and ops[i].kind == "salu") else max(g, rel) for i in range(len(ops))]
            out = S.flow(ops, g, S.n() - 1, rel=rels)
            g = out[-1]
            if out[-1] > rel + 40:
                print(f"  job slipped: rel {rel} -> {out[-1]}: {ops[-1].text}")
        for u in range(4):
            for rt in range(4):
                a0, a1 = self.acc(3, 2 * u, rt), self.acc(3, 2 * u + 1, rt)
                rel0 = 16 * (24 + 2 * u) + 4 * rt + 3 + 3
                rel1 = rel0 + 16
                dl = 16 * (32 + 2 * u) + 4 * rt - 2
                d = B2 + 16 * u + 4 * rt
                for (a, rel, o) in ((a0, rel0, 0), (a1, rel1, 2)):
                    ops = [f"v_mul_f32 v{a+i}, s{sSC}, v{a+i}" for i in range(4)]
                    ops += [f"v_cvt_pk_bf16_f32 v{d+o}, v{a}, v{a+1}", f"v_cvt_pk_bf16_f32 v{d+o+1}, v{a+2}, v{a+3}"]
                    S.flow(ops, rel, dl)
        for dt in range(8):
            for rt in range(4):
                a = self.acc(7, dt, rt)
                rel = 16 * (56 + dt) + 4 * rt + 3 + 3
                d = B2 + 8 * dt + 2 * rt
                S.flow([f"v_cvt_pk_bf16_f32 v{d}, v{a}, v{a+1}", f"v_cvt_pk_bf16_f32 v{d+1}, v{a+2}, v{a+3}"], rel, 16 * (56 + dt) + 38)
        for c in range(4):
            b = BIAS + 4 * (c & 1)
            ops = []
            for i in range(2):
                ops += [f"v_lshlrev_b32 v{b+2*i}, 16, v{BIASR+2*c+i}", f"v_and_b32 v{b+2*i+1}, 0xffff0000, v{BIASR+2*c+i}"]
            S.flow(ops, 16 * (63 + c), 16 * (64 + c) - 2)
        qtail = []
        for u in range(4):
            for rt in range(4):
                a0, a1 = self.acc(13, 2 * u, rt), self.acc(13, 2 * u + 1, rt)
                rel0 = 16 * (104 + 2 * u) + 4 * rt + 3 + 3
                S.flow([f"v_cvt_pk_bf16_f32 v{a0}, v{a0}, v{a0+1}", f"v_cvt_pk_bf16_f32 v{a0+1}, v{a0+2}, v{a0+3}"], rel0, rel0 + 14)
                ops = [f"v_cvt_pk_bf16_f32 v{a0+2}, v{a1}, v{a1+1}", f"v_cvt_pk_bf16_f32 v{a0+3}, v{a1+2}, v{a1+3}"]
                if rel0 + 16 < S.n():
                    S.flow(ops, rel0 + 16, min(S.n() - 1, rel0 + 30))
                else:
                    qtail += ops
        cur = 0
        k = 0
        for u in range(2):
            for rt in range(4):
                a0 = self.acc(9, 2 * u, rt)
                for half in range(2):
                    a = self.acc(9, 2 * u + half, rt)
                    rel = 16 * (76 + 2 * u + half) + 4 * rt + 3 + 3
                    t = T0 + 8 * (k & 1) if False else T0
                    E, U = T0, T0 + 4
                    ops = [f"v_mul_f32 v{E+i}, s{sL2E}, v{a+i}" for i in range(4)]
                    ops += [f"v_exp_f32 v{E+i}, v{E+i}" for i in range(4)]
                    ops += [f"v_add_f32 v{U+i}, 2.0, v{E+i}" for i in range(4)]
                    ops += [f"v_fma_f32 v{E+i}, v{E+i}, v{U+i}, 2.0" for i in range(4)]
                    ops += [f"v_rcp_f32 v{E+i}, v{E+i}" for i in range(4)]
                    ops += [f"v_fma_f32 v{E+i}, v{E+i}, -2.0, 1.0" for i in range(4)]
                    ops += [f"v_mul_f32 v{E+i}, v{E+i}, v{a+i}" for i in range(4)]
                    ops += [f"v_cvt_pk_bf16_f32 v{a0+2*half}, v{E}, v{E+1}", f"v_cvt_pk_bf16_f32 v{a0+2*half+1}, v{E+2}, v{E+3}"]
                    dl = HREL[4 * u + rt] - 1 - (26 if half == 0 else 0)
                    out = S.flow(ops, max(cur, rel), dl)
                    cur = out[-1]
                    k += 1
        S.auto_lg_waits(lat=6, verbose=True)
        S.post += [Op("s_nop 7")] + [Op(x) for x in qtail]
        return S

    def put_check(self, S, g, chk, br):
        while S.used(g) > 1 or S.used(g + 1) > 1:
            g += 1
        S.put(g, chk[0])
        S.put(g, chk[1])
        S.put(g + 1, br[0])
        S.put(g + 1, br[1])
        return g + 1


    def kv_dma(self, which, xr, creg, nreg, first=False):
        ring = KRING if which == "K" else VRING
        base = creg if (xr >> 1) % 2 == 0 else nreg
        so, r = (sKo, rK) if which == "K" else (sVo, rV)

        def wr(c):
            X = 2 * c["i"] + xr
            al = [(("C", k), (which, X), True) for k in range(4)] if which == "K" else [(("W", 1 + ((X & 3) >> 1)), (which, X), True)]
            return [((which, X & 3), (which, X), True)] + (al if X < 4 else [])
        ops = [Op(f"s_add_u32 m0, s{base}, {ring + (xr & 1) * 16384}")]
        for k in range(4):
            ops.append(Op(f"buffer_load_dwordx4 v{vL16}, {srd(r)}, s{so} offen offset:{k * 1024}{self.a.ld} lds", lds_wr=wr))
        ops.append(Op(f"s_add_u32 s{so}, s{so}, {KV_T}"))
        self.m0 = None
        return ops

    def k_read(self, xr, kt, u, names):
        a = names["Kc"] if (xr >> 1) % 2 == 0 else names["Kn"]
        return Op(f"ds_read_b128 {ar(aK + 16 * (kt & 1) + 4 * u)}, v{a} offset:{(xr & 1) * 16384 + kt * 4096 + u * 1024}",
                  lds_rd=lambda c: (("K", (2 * c["i"] + xr) & 3), ("K", 2 * c["i"] + xr), True))

    def v_read(self, xr, dt, kg, names):
        a = names["Vc"] if (xr >> 1) % 2 == 0 else names["Vn"]
        return Op(f"ds_read_b128 {ar(aV + 8 * (dt & 3) + 4 * kg)}, v{a} offset:{(xr & 1) * 16384 + dt * 2048 + kg * 1024}",
                  lds_rd=lambda c: (("V", (2 * c["i"] + xr) & 3), ("V", 2 * c["i"] + xr), True))

    def mask_ops(self, dst, z, kt, neg):
        ng = neg if isinstance(neg, list) else [neg] * 4
        m = ["vcc", f"s[{sMA}:{sMA+1}]", f"s[{sMB}:{sMB+1}]", "vcc"]
        cmp = lambda r: f"v_cmp_le_i32 {m[r]}, {16 * kt + r}, v{z}"
        cnd = lambda r: f"v_cndmask_b32 v{dst + r}, v{NINF}, v{ng[r]}, {m[r]}"
        return [cmp(0), cmp(1), cmp(2), cnd(0), cmp(3), cnd(1), cnd(2), cnd(3)]

    def att_regs_init(self):
        return [f"v_add_u32 v{vKc}, {KRING}, v{vL16}", f"v_add_u32 v{vKn}, {KRING + 32768}, v{vL16}",
                f"v_mov_b32 v{vVc}, v{vL16}", f"v_add_u32 v{vVn}, 32768, v{vL16}"]

    def att_sregs_init(self):
        return [f"s_lshl_b32 s{sMc}, s{sWv}, 12", f"s_add_u32 s{sMn}, s{sMc}, 32768",
                f"s_mov_b32 s{sKo}, s{sMc}", f"s_mov_b32 s{sVo}, s{sMc}", f"s_mov_b64 s[{sBad}:{sBad+1}], 0"]

    def first_k_reads(self):
        nm = dict(Kc=vKc, Kn=vKn, Vc=vVc, Vn=vVn)
        return [self.k_read(0, 0, u, nm) for u in range(4)] + [self.k_read(0, 1, u, nm) for u in range(2)]

    def extra_jobs(self, S, jobs, bar_gap):
        if self.a.upto == "proj":
            return
        ops = [f"s_mul_i32 s{sTmp}, s{sH}, {KV_H}",
               f"s_lshl_b32 s{rK+2}, s{sJ}, 1", f"s_sub_u32 s{rK+2}, 32, s{rK+2}", f"s_mul_i32 s{rK+2}, s{rK+2}, {KV_T}",
               f"s_mov_b32 s{rV+2}, s{rK+2}", f"s_mov_b32 s{rV+3}, 0x20000",
               f"s_add_u32 s{sTmp}, s{sTmp}, {K_OFF}"]
        g = S.flow(ops + self.att_sregs_init(), 16 * 66, 16 * 74)[-1]
        for (r, off) in ((rK, 0), (rV, V_OFF - K_OFF)):
            g += 1
            while S.used(g) > 1:
                g += 1
            if off:
                S.put(g, f"s_add_u32 s{sTmp}, s{sTmp}, {off}")
            S.put(g, f"s_add_u32 s{r}, s{pWS}, s{sTmp}")
            S.put(g, f"s_addc_u32 s{r+1}, s{pWS+1}, 0")
        ops = self.att_regs_init() + [
            f"v_bfe_u32 v{Z0}, v{vL16}, 4, 4", f"v_lshrrev_b32 v{Z1}, 8, v{vL16}", f"v_lshlrev_b32 v{Z1}, 2, v{Z1}",
            f"v_sub_u32 v{Z0}, v{Z0}, v{Z1}", f"v_lshlrev_b32 v{Zt}, 4, s{sWv}", f"v_sub_u32 v{Z1}, v{Z0}, v{Zt}",
            f"v_add_u32 v{Z1}, 48, v{Z1}", f"v_add_u32 v{Z0}, v{Z0}, v{Zt}", f"v_mov_b32 v{NINF}, 0xff800000",
            f"v_mov_b32 v{vD}, 2", f"v_bfe_u32 v{vA}, v{vL16}, 4, 3", f"v_lshlrev_b32 v{vA}, 2, v{vA}",
            f"v_lshlrev_b32 v{Zt}, 7, s{sJ}", f"v_add_u32 v{Zt}, v{Zt}, v{Z0}"]
        S.flow(ops, 16 * 69, 16 * 76)
        S.flow([f"v_mov_b32 v{ZERO+i}, 0" for i in range(4)] + [f"v_mov_b32 v{ONES+i}, 0x3f803f80" for i in range(4)], 16 * 111, 16 * 112 - 1)
        jobs.append((bar_gap(10) + 9, lambda: [Op(f"buffer_store_dword v{vD}, v{vSel0}, {srd(rWS)}, s{sFlagKV} offen sc1", needs=[("vst", True)])]))
        ldt = f"buffer_load_dword v{vP}, v{vA}, {srd(rWS)}, s{sPollKV} offen sc1"
        ld, chk, br = self.poll("k", ldt, f"v_cmp_gt_u32 vcc, 1, v{vP}")
        jobs.append((16 * 90 + 8, lambda ld=ld: [ld]))
        g = self.put_check(S, 16 * 95 + 8, chk, br)
        for X in range(3):
            jobs.append((16 * (96 + 2 * X) + 8, lambda X=X: self.kv_dma("K", X, sMc, sMn)))
        ld, chk, br = self.poll("v", ldt, f"v_cmp_gt_u32 vcc, 2, v{vP}")
        jobs.append((16 * 103 + 8, lambda ld=ld: [ld]))
        g = self.put_check(S, 16 * 107 + 8, chk, br)
        for X in range(2):
            jobs.append((16 * (108 + X) + 8, lambda X=X: self.kv_dma("V", X, sMc, sMn)))
        for i, o in enumerate(self.first_k_reads()):
            S.put(16 * 111 + i, o)

    def rowmax_reduce(self):
        ops = []
        for sw in ("v_permlane16_swap_b32", "v_permlane32_swap_b32"):
            ops += [f"v_mov_b32 v{MX+4+t}, v{MX+t}" for t in range(4)]
            ops += [f"{sw} v{MX+t}, v{MX+4+t}" for t in range(4)]
            ops += [f"v_max_f32 v{MX+t}, v{MX+t}, v{MX+4+t}" for t in range(4)]
        return ops

    def prestep(self):
        S = Seg("prestep")
        S.pre.append(W(lg=True))
        for t in range(4):
            for u in range(4):
                S.mfma(f"{MF} {vr(SB+4*t)}, {ar(aK+4*u)}, {vr(Qf(t, u))}, {vr(SB+4*t) if u else 0}")
        for k in range(9):
            S.mfma(f"{MF32} {ar(16*k, 16)}, {vr(ZERO)}, {vr(ZERO)}, 0")
        S.flow(self.mask_ops(SB, Zt, 0, [SB, SB + 1, SB + 2, SB + 3]), 7, 15)
        ops = [f"v_max3_f32 v{MX+t}, v{SB+4*t}, v{SB+4*t+1}, v{SB+4*t+2}" for t in range(4)]
        ops += [f"v_max_f32 v{MX+t}, v{MX+t}, v{SB+4*t+3}" for t in range(4)]
        ops += self.rowmax_reduce()
        S.flow(ops, 17, 24)
        S.flow([f"v_mov_b32 v{vD}, 1"], 0, 6)
        self.p3_setup(S)
        G = Plain("att_go")
        e = G.e
        e("L_att_go:")
        for r in range(4):
            e(f"v_sub_f32 v{NEG3L+r}, 0, v{MX+3}")
        e(f"v_sub_f32 v{NEG0}, 0, v{MX}")
        for r in range(4):
            e(f"v_sub_f32 v{NEG[2]+r}, 0, v{MX+2}")
        rest = [f"v_sub_f32 v{NEG[t]+r}, 0, v{MX+t}" for t in (1, 3) for r in range(4)]
        for u in range(4):
            e(f"{MF} {vr(SB)}, {ar(aK+4*u)}, {vr(Qf(3, u))}, {vr(SB) if u else vr(NEG3L)}")
            e(rest[2 * u])
            e(rest[2 * u + 1])
        for kt in range(4):
            for o in self.mask_ops(BANK + 4 * kt, Zt, kt, NEG0):
                e(o)
        e(f"s_mov_b32 s{sCnt}, s{sJ}")
        return S, G

    def att_seg(self, name, Trel, qk, pv, bank_tile, look=True, flip=None, dma=True, bar=True, pvfirst=False, lfirst=False, extra=None):
        S = Seg(name)
        par = Trel & 1
        names = dict(Kc=vKc, Kn=vKn, Vc=vVc, Vn=vVn)
        if flip == 2:
            names = dict(Kc=vKn, Kn=vKc, Vc=vVn, Vn=vVc)
        na = len(qk)
        chains = [(kt, t) for kt in range(4) for t in qk]
        n = len(chains)
        dts = ([8] + list(range(8))) if lfirst else list(range(9))
        pvc = [(dt, t) for dt in dts for t in pv]
        M = len(pvc)
        nmu = max(n, 1)
        cstart, cend = {0: -100}, {0: -100}
        pstart, pend = {}, {}

        def qk_chain(i):
            if i == n:
                kt, t, c = 0, 3, NEG3L
            else:
                kt, t = chains[i]
                c = BANK + 4 * kt if t == bank_tile else NEG[t]
            d = SB + 4 * (i % 4)
            cstart[i] = S.n()
            for u in range(4):
                S.mfma(f"{MF} {vr(d)}, {ar(aK + 16 * (kt & 1) + 4 * u)}, {vr(Qf(t, u))}, {vr(d) if u else vr(c)}")
            cend[i] = S.n() - 1

        def pv_share(mu):
            for k in range(mu * M // nmu, (mu + 1) * M // nmu):
                dt, t = pvc[k]
                pstart.setdefault(dt, S.n())
                for kg in range(2):
                    if dt == 8:
                        d, a = ar(aL + 4 * t), vr(ONES)
                    else:
                        d, a = ar(aO + 32 * t + 4 * dt), ar(aV + 8 * (dt & 3) + 4 * kg)
                    S.mfma(f"{MF} {d}, {a}, {vr(Pf(1 - par, t, kg))}, {d}")
                pend[dt] = S.n() - 1
        for mu in range(nmu):
            if pvfirst:
                pv_share(mu)
            if n and (mu + 1 < n or look):
                qk_chain(mu + 1)
            if not pvfirst:
                pv_share(mu)
        N = S.n()
        T = []
        info = dict(cstart=cstart, cend=cend, pstart=pstart, pend=pend, N=N)
        tail = []
        for i in range(n):
            kt, t = chains[i]
            d = SB + 4 * (i % 4)
            rel = cend[i] + 3
            dl = cstart[i + 4] - 1 if (i + 4) in cstart else N - 1
            p = Pf(par, t, kt >> 1) + 2 * (kt & 1)
            if rel + 5 > N - 1:
                tail += ["s_nop 7"] + [f"v_exp_f32 v{d+r}, v{d+r}" for r in range(4)] + [f"v_cvt_pk_bf16_f32 v{p+h}, v{d+2*h}, v{d+2*h+1}" for h in range(2)]
                continue
            ex = []
            for r in range(4):
                ex.append(Task(f"v_exp_f32 v{d+r}, v{d+r}", rel, dl, [(ex[-1], 0)] if ex else []))
            T += ex
            for h in range(2):
                T.append(Task(f"v_cvt_pk_bf16_f32 v{p+h}, v{d+2*h}, v{d+2*h+1}", rel, dl, [(ex[2 * h + 1], 1)]))
        bg = None
        if bar:
            bg = cstart[3 * na] + 2
            S.put(bg, W(vm=True, lg=True))
            S.put(bg + 1, "s_barrier")
            bg += 1
        info["bar"] = bg
        lastk = None
        if n:
            for kt in range(1, 4):
                first = cstart[kt * na]
                free = cend[(kt - 1) * na - 1] if kt >= 2 else 0
                for u in range(2 if kt == 1 else 0, 4):
                    dl = first + u - LAT
                    if kt == 3 and bar:
                        dl = min(dl, bg - 1 - 5)
                    lastk = Task(self.k_read(Trel, kt, u, names), max(0, free - 3 + u), dl)
                    T.append(lastk)
            if look:
                for u in range(4):
                    T.append(Task(self.k_read(Trel + 1, 0, u, names), bg + 1, cstart[n] + u - LAT))
                for u in range(2):
                    T.append(Task(self.k_read(Trel + 1, 1, u, names), max(bg + 1, cend[n - 1] - 3 + u), N - 2 + u))
        if pv:
            for dt in range(1, 8):
                free = pend[dt - 4] if dt >= 4 else 0
                for kg in range(2):
                    T.append(Task(self.v_read(Trel - 1, dt, kg, names), free, pstart[dt] + kg - LAT))
        v0 = []
        if n:
            free = max(bg + 1, pend[4] if pv else 0)
            for kg in range(2):
                v0.append(Task(self.v_read(Trel, 0, kg, names), free, N + 4 + kg - LAT))
            T += v0
        if dma:
            prev = None
            for which, xr, lo, hi in (("K", Trel + 3, 1, bg - 2), ("V", Trel + 2, bg + 1, N - 2)):
                ops = self.kv_dma(which, xr, sMc, sMn)
                step = (hi - lo + 1) / 4
                m = Task(ops[0], lo - 1 if which == "K" else 0, int(lo + step - 2), [(prev, 0)] if prev else [])
                T.append(m)
                prev = m
                for k in range(4):
                    d = Task(ops[1 + k], int(lo + k * step), int(lo + (k + 1) * step - 1), [(prev, 1 if k == 0 else 3)])
                    T.append(d)
                    prev = d
                T.append(Task(ops[5], 0, N - 2, [(prev, 0)]))
                if which == "V":
                    info["vm0"] = m
        if flip == 1:
            T.append(Task(f"v_xor_b32 v{vVn}, 0x8000, v{vVn}", 0, N - 1))
            T.append(Task(f"v_xor_b32 v{vKc}, 0x8000, v{vKc}", bg, N - 1))
        if flip == 2:
            T.append(Task(f"v_xor_b32 v{vKn}, 0x8000, v{vKn}", 0, N - 1))
            T.append(Task(f"v_xor_b32 v{vVc}, 0x8000, v{vVc}", 0, bg))
            T.append(Task(f"s_xor_b32 s{sMn}, s{sMn}, 0x8000", 0, N - 2))
            T.append(Task(f"s_xor_b32 s{sMc}, s{sMc}, 0x8000", 0, N - 2, [(info["vm0"], 0)]))
        if extra:
            extra(S, T, info)
        schedule(S, T)
        inc = [("a", aK + 16 + r) for r in range(8)] + [("a", aV + r) for r in range(8)]
        S.auto_lg_waits(lat=5, incoming=inc, verbose=self.a.verbose)
        S.post += [Op(x) for x in tail]
        return S

    def chain_tasks(self, T, ops, rel, dl, after=None):
        prev = after
        for o in ops:
            t = Task(o, rel, dl, [(prev, 0)] if prev else [])
            T.append(t)
            prev = t
        return prev

    def bad_check(self, e, tiles):
        for k, t in enumerate(tiles):
            e(f"v_accvgpr_read_b32 v{ET+2*k}, a{aL+4*t}")
        e(f"v_add_f32 v{ET+3}, v{ET}, v{ET+2}")
        e(f"v_rcp_f32 v{ET}, v{ET}")
        e(f"v_cmp_ngt_f32 vcc, 0x5f800000, v{ET+3}")
        e(f"v_rcp_f32 v{ET+2}, v{ET+2}")
        e(f"s_or_b64 s[{sBad}:{sBad+1}], s[{sBad}:{sBad+1}], vcc")

    def epilogue(self, e, tiles):
        e(f"s_mul_i32 s{sTmp2}, s{sH}, {ACT_HD}")
        k = 0
        for ti, t in enumerate(tiles):
            e(f"s_add_u32 s{sTmp}, s{sTmp2}, s{sAct[t]}")
            for u in range(4):
                b = ET + 4
                o = ET + 12 + 4 * (k % 3)
                k += 1
                for i in range(8):
                    e(f"v_accvgpr_read_b32 v{b+i}, a{aO + 32*t + 8*u + i}")
                for i in range(4):
                    e(f"v_pk_mul_f32 {vr(b+2*i, 2)}, {vr(b+2*i, 2)}, {vr(ET+2*ti, 2)} op_sel_hi:[1,0]")
                for i in range(4):
                    e(f"v_cvt_pk_bf16_f32 v{o+i}, v{b+2*i}, v{b+2*i+1}")
                e(f"buffer_store_dwordx4 {vr(o)}, v{vL16}, {srd(rWS)}, s{sTmp} offen{self.a.st}", tag="cst")
                if u < 3:
                    e(f"s_add_u32 s{sTmp}, s{sTmp}, 4096")

    def attention(self):
        D, TH, SS, ONE = [3, 2, 1, 0], [3, 2, 1], [3, 2], [3]
        B = {}

        def x_d0(S, T, info):
            T.append(Task(Op(f"buffer_store_dword v{vD}, v{vSel0}, {srd(rWS)}, s{sFlagH} offen sc1", needs=[("hst", True)]), info["bar"] + 1, info["N"] - 1))
            S.put(info["N"] - 1, f"s_cmp_eq_u32 s{sCnt}, 0")
        B["D0"] = self.att_seg("D0", 0, D, [], 0, extra=x_d0)
        B["D0"].post += [Op("s_cbranch_scc1 L_three"), Op(".p2align 4"), Op("L_dloop:")]
        B["Da"] = self.att_seg("Da", 1, D, D, 0, flip=1, extra=lambda S, T, i: S.put(i["N"] - 1, f"s_cmp_eq_u32 s{sCnt}, 1"))
        B["Da"].post += [Op("s_cbranch_scc1 L_dmask"), Op("L_dmask_back:")]

        def x_loop(S, T, info):
            T.append(Task(f"s_sub_u32 s{sCnt}, s{sCnt}, 1", 0, info["N"] - 2))
            S.put(info["N"] - 1, f"s_cmp_lg_u32 s{sCnt}, 0")
        B["Db"] = self.att_seg("Db", 2, D, D, 0, flip=2, extra=x_loop)
        B["Db"].post += [Op("s_cbranch_scc1 L_dloop"), Op("L_three:")]
        p = Plain("dmask")
        p.e("L_dmask:")
        for kt in range(4):
            for o in self.mask_ops(BANK + 4 * kt, Z0, kt, NEG0):
                p.e(o)
        p.e("s_branch L_dmask_back")
        self.ool.append(p)
        B["dmask"] = p

        def x_three(S, T, info):
            cs = info["cstart"]
            last = None
            last = self.chain_tasks(T, self.mask_ops(BANK, Z1, 0, NEG[1]), 0, cs[2] - 2, last)
            last = self.chain_tasks(T, [f"v_sub_u32 v{Zu}, 7, s{sJ}".replace("v_sub_u32", "v_sub_u32_e64"), f"v_lshlrev_b32 v{Zu}, 7, v{Zu}",
                                        f"v_add_u32 v{Zt}, v{Zu}, v{Z0}", f"v_add_u32 v{Zu}, v{Zu}, v{Z1}"], 0, cs[5], last)
            for kt in range(1, 4):
                last = self.chain_tasks(T, self.mask_ops(BANK + 4 * kt, Z1, kt, NEG[1]), 0, cs[3 * kt + 2] - 2, last)
            for kt in range(4):
                last = self.chain_tasks(T, self.mask_ops(BANK + 4 * kt, Zt, kt, NEG[2]), cs[3 * kt + 2] + 2, info["N"] - 2, last)
        B["T3"] = self.att_seg("T3", 1, TH, D, 1, flip=1, extra=x_three)

        def x_s3(S, T, info):
            self.chain_tasks(T, self.mask_ops(NEG3L, Zu, 0, NEG[3]), 0, info["cstart"][8] - 2)
            T.append(Task(f"s_sub_u32 s{sCnt}, 7, s{sJ}", 0, info["N"] - 2))
        B["S3"] = self.att_seg("S3", 2, SS, TH, 2, flip=2, extra=x_s3)
        p = Plain("epiA")
        p.e("s_nop 7")
        self.bad_check(p.e, [0, 1])
        self.epilogue(p.e, [0, 1])
        for o in self.stamp_ops():
            p.e(o)
        p.e(f"s_cmp_eq_u32 s{sCnt}, 0")
        p.e("s_cbranch_scc1 L_one")
        p.e(".p2align 4")
        p.e("L_sloop:")
        B["epiA"] = p
        B["Sa"] = self.att_seg("Sa", 1, SS, SS, 2)
        B["Sb"] = self.att_seg("Sb", 2, SS, SS, 2)
        B["Sc"] = self.att_seg("Sc", 3, SS, SS, 2, extra=lambda S, T, i: S.put(i["N"] - 1, f"s_cmp_eq_u32 s{sCnt}, 1"))
        B["Sc"].post += [Op("s_cbranch_scc1 L_smask"), Op("L_smask_back:")]
        B["Sd"] = self.att_seg("Sd", 4, SS, SS, 2, extra=x_loop)
        B["Sd"].post += [Op("s_cbranch_scc1 L_sloop"), Op("L_one:")]
        p = Plain("smask")
        p.e("L_smask:")
        for kt in range(4):
            for o in self.mask_ops(BANK + 4 * kt, Z0, kt, NEG[2]):
                p.e(o)
        for o in self.mask_ops(NEG3L, Z1, 0, NEG[3]):
            p.e(o)
        p.e("s_branch L_smask_back")
        self.ool.append(p)
        B["smask"] = p

        def x_one(S, T, info):
            last = None
            for kt in range(1, 4):
                last = self.chain_tasks(T, self.mask_ops(BANK + 4 * kt, Z1, kt, NEG[3]), 0, info["cstart"][kt] - 2, last)
            self.one_extra(S, T, info, last)
        B["One"] = self.att_seg("One", 1, ONE, SS, 3, look=False, dma=False, pvfirst=True, extra=x_one)
        B["Dr"] = self.att_seg("Dr", 2, [], ONE, None, look=False, dma=False, bar=False, lfirst=True)
        B["Dr"].pre.insert(0, Op("s_nop 1"))
        p = Plain("check")
        e = p.e
        self.bad_check(e, [2, 3])
        e(f"s_cmp_lg_u64 s[{sBad}:{sBad+1}], 0")
        e(f"s_cselect_b32 s{sTmp}, 1, 0")
        e(f"s_andn2_b32 s{sTmp}, s{sTmp}, s{sFb}")
        e(f"s_lshl_b32 s{sTmp2}, s{sWv}, 2")
        e(f"s_add_u32 s{sTmp2}, s{sTmp2}, {SPARE}")
        e(f"v_mov_b32 v{ET+4}, s{sTmp2}")
        e(f"v_mov_b32 v{ET+5}, s{sTmp}")
        e(f"v_mov_b32 v{ET+6}, {SPARE}")
        e(f"ds_write_b32 v{ET+4}, v{ET+5}", lds_wr=lambda c: [(("F", 0), ("bad", c.get("fb")), True), (("W", 0), "bad", True)])
        e("s_waitcnt lgkmcnt(0)")
        e("s_barrier")
        e(f"ds_read_b128 {vr(ET+8)}, v{ET+6}", lds_rd=lambda c: (("F", 0), ("bad", c.get("fb")), True))
        B["check"] = p
        p = Plain("check2")
        e = p.e
        e(W(lg=True))
        e(f"v_or3_b32 v{ET+8}, v{ET+8}, v{ET+9}, v{ET+10}")
        e(f"v_or_b32 v{ET+8}, v{ET+8}, v{ET+11}")
        e(f"v_cmp_ne_u32 vcc, 0, v{ET+8}")
        e("s_nop 1")
        e("s_cbranch_vccnz L_fallback")
        B["check2"] = p
        B["fb"] = self.fallback()
        return B

    def fallback(self):
        p0, p1, p2 = Plain("fb0"), Plain("fb1"), Plain("fb2")
        e = p0.e
        e("L_fallback:")
        e(f"s_mov_b32 s{sFb}, 1")
        e("s_waitcnt vmcnt(0) lgkmcnt(0)")
        e("s_barrier")
        ZG = BANK
        e(f"s_lshl_b32 s{sTmp}, s{sJ}, 7")
        e(f"s_sub_u32 s{sTmp2}, {15 * 128}, s{sTmp}")
        e(f"v_add_u32 v{ZG}, s{sTmp}, v{Z0}")
        e(f"v_add_u32 v{ZG+1}, s{sTmp}, v{Z1}")
        e(f"v_add_u32 v{ZG+2}, s{sTmp2}, v{Z0}")
        e(f"v_add_u32 v{ZG+3}, s{sTmp2}, v{Z1}")
        e(f"v_add_u32 v{ZG+1}, 64, v{ZG+1}")
        e(f"v_add_u32 v{ZG+3}, 64, v{ZG+3}")
        e(f"v_mov_b32 v{Zt}, v{ZG}")
        for t in range(4):
            e(f"v_mov_b32 v{MX+t}, v{NINF}")
        e(f"s_mov_b32 s{sCnt}, 0")
        e(f"s_lshl_b32 s{sSpin}, s{sJ}, 3")
        e(f"s_sub_u32 s{sSpin}, 128, s{sSpin}")
        e("L_fb_loop:")
        e = p1.e
        e(f"s_lshr_b32 s{sTmp}, s{sCnt}, 2")
        e(f"s_mul_i32 s{sTmp}, s{sTmp}, {KV_T}")
        e(f"s_and_b32 s{sTmp2}, s{sCnt}, 3")
        e(f"s_lshl_b32 s{sTmp2}, s{sTmp2}, 12")
        e(f"s_add_u32 s{sTmp}, s{sTmp}, s{sTmp2}")
        for u in range(4):
            e(f"buffer_load_dwordx4 {ar(aK+4*u)}, v{vL16}, {srd(rK)}, s{sTmp} offen offset:{u*1024} sc1")
        e("s_waitcnt vmcnt(0)")
        for t in range(4):
            for u in range(4):
                e(f"{MF} {vr(SB+4*t)}, {ar(aK+4*u)}, {vr(Qf(t, u))}, {vr(SB+4*t) if u else 0}")
        e("s_nop 7")
        for t in range(4):
            for o in self.mask_ops(SB + 4 * t, ZG + t, 0, [SB + 4 * t + r for r in range(4)]):
                e(o)
            e(f"v_max3_f32 v{MX+t}, v{MX+t}, v{SB+4*t}, v{SB+4*t+1}")
            e(f"v_max3_f32 v{MX+t}, v{MX+t}, v{SB+4*t+2}, v{SB+4*t+3}")
            e(f"v_subrev_u32 v{ZG+t}, 16, v{ZG+t}")
        e(f"s_add_u32 s{sCnt}, s{sCnt}, 1")
        e(f"s_cmp_lt_u32 s{sCnt}, s{sSpin}")
        e("s_cbranch_scc1 L_fb_loop")
        e = p2.e
        for o in self.rowmax_reduce() + self.att_regs_init() + self.att_sregs_init():
            e(o)
        for which, X in (("K", 0), ("K", 1), ("K", 2), ("V", 0), ("V", 1)):
            for o in self.pad_m0(self.kv_dma(which, X, sMc, sMn)):
                e(o)
        for k in range(9):
            e(f"{MF32} {ar(16*k, 16)}, {vr(ZERO)}, {vr(ZERO)}, 0")
        e("s_waitcnt vmcnt(0)")
        e("s_barrier")
        for o in self.first_k_reads():
            e(o)
        e("s_waitcnt lgkmcnt(0)")
        e("s_branch L_att_go")
        self.ool += [p0, p1, p2]
        return p0, p1, p2

    def att_trace(self, B, G, j, fb=0):
        tr = []
        add = lambda b, i: tr.extend((o, {"i": i, "fb": fb}) for o in b.linear())
        add(G, 0)
        add(B["D0"], 0)
        for i in range(j):
            add(B["Da"], i)
            if i == j - 1:
                add(B["dmask"], i)
            add(B["Db"], i)
        add(B["T3"], j)
        add(B["S3"], j)
        add(B["epiA"], j)
        i = j + 1
        for k in range(7 - j):
            for nm in ("Sa", "Sb", "Sc"):
                add(B[nm], i)
            if k == 6 - j:
                add(B["smask"], i)
            add(B["Sd"], i)
            i += 2
        add(B["One"], i)
        add(B["Dr"], i)
        add(B["check"], i)
        return tr

    def dump_q(self):
        p = Plain("dumpq")
        e = p.e
        e(f"s_lshl_b32 s{sTmp}, s{sB}, 2")
        e(f"s_add_u32 s{sTmp}, s{sTmp}, s{sWv}")
        e(f"s_lshl_b32 s{sTmp}, s{sTmp}, 14")
        e(f"s_add_u32 s{sTmp}, s{sTmp}, {QDUMP_OFF}")
        for u in range(4):
            for rt in range(4):
                e(f"buffer_store_dwordx4 {vr(B1 + 16*u + 4*rt)}, v{vL16}, {srd(rWS)}, s{sTmp} offen offset:{rt*1024}")
            e(f"s_add_u32 s{sTmp}, s{sTmp}, 4096")
        return p

    def dump_stamps(self):
        p = Plain("stamps")
        if self.a.stamps:
            for o in self.stamp_ops():
                p.e(o)
            p.e(f"s_lshl_b32 s{sTmp}, s{sB}, 2")
            p.e(f"s_add_u32 s{sTmp}, s{sTmp}, s{sWv}")
            p.e(f"s_lshl_b32 s{sTmp}, s{sTmp}, 8")
            p.e(f"s_add_u32 s{sTmp}, s{sTmp}, {STAMP_OFF}")
            p.e(f"v_lshrrev_b32 v{vL16}, 2, v{vL16}")
            p.e(f"buffer_store_dword v{vSel0}, v{vL16}, {srd(rWS)}, s{sTmp} offen")
        return p

    def build(self):
        pro = self.prologue()
        pj = self.proj()
        pj.post += self.stamp_ops()
        blocks = [pro, pj]
        end = Plain("end")
        lin = lambda bl, c={"i": 0}: [(o, c) for b in bl for o in b.linear()]
        if self.a.upto == "proj":
            blocks += [self.dump_q(), self.dump_stamps(), end]
            traces = [("main", lin(blocks))]
        else:
            S, G = self.prestep()
            for o in self.stamp_ops():
                G.e(o)
            B = self.attention()
            mid, tailb = self.tail(B)
            tailb += [self.dump_stamps(), end]
            blocks += [S, G] + [B[k] for k in ("D0", "Da", "Db", "T3", "S3", "epiA", "Sa", "Sb", "Sc", "Sd", "One", "Dr", "check")] + mid + tailb
            traces = []
            for j in range(8):
                traces.append((f"j{j}", lin([pro, pj, S]) + self.att_trace(B, G, j) + lin(mid) + lin(tailb)))
            f0, f1, f2 = B["fb"]
            for j in (0, 3, 7):
                traces.append((f"fb{j}", lin([pro, pj, S]) + self.att_trace(B, G, j) + lin(mid) + lin([f0, f1, f1, f2])
                               + self.att_trace(B, G, j, 1) + lin(mid, {"i": 0, "fb": 1}) + lin(tailb, {"i": 0, "fb": 1})))
        end.e("L_end:")
        end.e("s_endpgm")
        self.finish(blocks, traces)

    def p3_setup(self, S):
        t = ET
        sal = [f"s_and_b32 s{sRG}, s{sB}, 7", f"s_lshl_b32 s{sRG}, s{sRG}, 2", f"s_bfe_u32 s{sTmp}, s{sB}, 0x20003",
               f"s_add_u32 s{sRG}, s{sRG}, s{sTmp}", f"s_lshl_b32 s{sCG}, s{sJ}, 7",
               f"s_mul_i32 s{sActH}, s{sRG}, {ACT_RG}", f"s_mul_i32 s{sTmp}, s{sWv}, {8 * ACT_HD}",
               f"s_add_u32 s{sActC}, s{sActH}, s{sTmp}", f"s_mul_i32 s{sTmp}, s{sWv}, {14 * 4096}",
               f"s_add_u32 s{sActH}, s{sActH}, s{sTmp}",
               f"s_mul_i32 s{sW2b}, s{sWv}, {14 * 32768}", f"s_add_u32 s{sW2b}, s{sW2b}, s{sCG}",
               f"s_lshl_b32 s{sWob}, s{sWv}, 20", f"s_add_u32 s{sWob}, s{sWob}, s{sCG}",
               f"s_lshl_b32 s{sM0p}, s{sWv}, 15",
               f"s_lshr_b32 s{sTmp}, s{sRG}, 1", f"s_sub_u32 s{sTmp2}, 15, s{sTmp}", f"s_min_u32 s{sTmp}, s{sTmp}, s{sTmp2}",
               f"s_lshl_b32 s{sPollH}, s{sTmp}, 7", f"s_add_u32 s{sPollH}, s{sPollH}, {HFLAG_OFF}",
               f"s_lshl_b32 s{sTmp}, s{sTmp}, 2", f"s_add_u32 s{sTmp}, s{sTmp}, s{sWv}", f"s_lshl_b32 s{sTmp}, s{sTmp}, 7",
               f"s_add_u32 s{sTmp}, s{sTmp}, {CFLAG_OFF}",
               f"s_mov_b32 s{rW}, s{pW2}", f"s_mov_b32 s{rW+1}, s{pW2+1}", f"s_mov_b32 s{rW+2}, {1792 * 1024}",
               f"s_mov_b32 s{rX}, s{pX}", f"s_mov_b32 s{rX+1}, s{pX+1}", f"s_mov_b32 s{rX+2}, {2 * MB}",
               f"s_mov_b32 s{rH}, s{pOUT}", f"s_mov_b32 s{rH+1}, s{pOUT+1}", f"s_mov_b32 s{rH+2}, {2 * MB}"]
        g = S.flow(sal, 0, 23)[-1]
        S.put(24, f"s_add_u32 s{sPollC}, s{pWS}, s{sTmp}")
        S.put(24, f"s_addc_u32 s{sPollC+1}, s{pWS+1}, 0")
        val = [f"v_lshrrev_b32 v{t}, 9, v{vL16}", f"v_lshlrev_b32 v{t}, 10, v{t}", f"v_lshlrev_b32 v{t+1}, 15, s{sWv}",
               f"v_sub_u32 v{t}, v{t+1}, v{t}"]
        val += [f"v_add_u32 v{vR[c]}, v{vWRa[c]}, v{t}" for c in range(4)]
        val += [f"v_lshrrev_b32 v{t}, 7, v{vL16}", f"v_and_b32 v{t+1}, 0x7f, v{vW8}", f"v_lshl_add_u32 v{vDm[0]}, v{t}, 10, v{t+1}"]
        val += [f"v_add_u32 v{vDm[i]}, {7168 * i}, v{vDm[0]}" for i in range(1, 4)]
        val += [f"v_lshl_add_u32 v{vAo[0]}, s{sWv}, 10, v{vL16}"]
        for k in range(1, 4):
            val += [f"v_add_u32 v{vAo[k]}, {1024 * k}, v{vAo[0]}", f"v_and_b32 v{vAo[k]}, 0xfff, v{vAo[k]}"]
        val += [f"v_bfe_u32 v{vA}, v{vL16}, 4, 5", f"v_lshlrev_b32 v{vA}, 2, v{vA}"]
        S.flow(val, 0, 24)

    def p3_w(self, ks):
        ops = []
        if ks == 14:
            ops += [Op(f"s_mov_b32 s{rW}, s{pWO}"), Op(f"s_mov_b32 s{rW+1}, s{pWO+1}"), Op(f"s_mov_b32 s{rW+2}, {4 * MB}")]
        s = self.st()
        ops.append(Op(f"s_add_u32 m0, s{sM0p}, {(ks & 7) * 4096}"))
        ops.append(Op(f"s_add_u32 s{s}, s{sW2b if ks < 14 else sWob}, {(ks if ks < 14 else ks - 14) * 32768}"))

        def wr(c):
            al = [((w, k), ("P", ks), True) for w in "KV" for k in range(4)] if ks < 8 else []
            return [(("P", ks & 7), ("P", ks, c.get("fb")), False)] + al
        for i in range(4):
            ops.append(Op(f"buffer_load_dwordx4 v{vDm[i]}, {srd(rW)}, s{s} offen offset:{i * 1024} lds", lds_wr=wr))
        return ops

    def p3_a(self, ks):
        s = self.st()
        if ks < 14:
            ops = [Op(f"s_add_u32 s{s}, s{sActH}, {ACT_OFF + ACT_HOFF + ks * 4096}")]
        else:
            c = ks - 14
            ops = [Op(f"s_add_u32 s{s}, s{sActC}, {ACT_OFF + (c >> 2) * ACT_HD + (c & 3) * 4096}")]
        for k in range(4):
            ops.append(Op(f"buffer_load_dwordx4 {vr(AR + 16 * (ks & 7) + 4 * k)}, v{vAo[k]}, {srd(rWS)}, s{s} offen{self.a.ld}"))
        return ops

    def p3_reads(self, ks):
        ops = []
        for c in range(4):
            for hh in range(2):
                ops.append(Op(f"ds_read_b64_tr_b16 {vr(WF2 + 16 * (ks & 1) + 4 * c + 2 * hh, 2)}, v{vR[c]} offset:{(ks & 7) * 4096 + hh * 2048}",
                              lds_rd=lambda cx: (("P", ks & 7), ("P", ks, cx.get("fb")), False)))
        return ops

    def one_extra(self, S, T, info, last):
        if self.a.upto == "attn":
            return
        ld, chk, br = self.poll("h", f"buffer_load_dword v{vP}, v{vA}, {srd(rWS)}, s{sPollH} offen sc1", f"v_cmp_gt_u32 vcc, 1, v{vP}")
        T.append(Task(ld, 8, 20))
        self.hpoll = chk + [Op("s_nop 0")] + br

    def tail(self, B):
        if self.a.upto == "attn":
            p = Plain("epiB")
            for o in self.stamp_ops():
                p.e(o)
            self.epilogue(p.e, [2, 3])
            return [B["check2"]], [p]
        m = Plain("p3pre0")
        for o in self.hpoll + self.p3_w(0):
            m.e(o)
        p = Plain("p3pre")
        e = p.e
        for o in self.stamp_ops():
            e(o)
        for ks in range(PD):
            for o in (self.p3_w(ks) if ks else []) + self.p3_a(ks):
                e(o)
        self.epilogue(e, [2, 3])
        sel = ET + 4
        e(f"v_min_u32 v{Zt}, 1, v{vL16}")
        e(f"v_lshlrev_b32 v{Zt}, 28, v{Zt}")
        e(f"v_bfe_u32 v{Zu}, v{vL16}, 4, 4")
        e(f"v_lshlrev_b32 v{Zu}, 10, v{Zu}")
        e(f"v_lshrrev_b32 v{vA}, 8, v{vL16}")
        e(f"v_lshl_add_u32 v{Zu}, v{vA}, 3, v{Zu}")
        e(f"s_lshl_b32 s{sRG}, s{sRG}, 16")
        e(f"s_lshl_b32 s{sTmp}, s{sWv}, 14")
        e(f"s_add_u32 s{sRG}, s{sRG}, s{sTmp}")
        e(f"s_add_u32 s{sRG}, s{sRG}, s{sCG}")
        for o in self.stamp_ops():
            e(o)
        e(W(vm=True))
        for o in self.p3_reads(0):
            e(o)
        for o in self.p3_w(PD) + self.p3_a(PD):
            e(o)
        e(W(lg=True))
        S = Seg("p3")
        NK = 46
        for ks in range(NK):
            for c in range(4):
                for k in range(4):
                    d = ar(16 * k + 4 * c)
                    S.mfma(f"{MF} {d}, {vr(WF2 + 16 * (ks & 1) + 4 * c)}, {vr(AR + 16 * (ks & 7) + 4 * k)}, {d if ks else 0}")
        XR = B2 + 32
        for ks in range(NK):
            g0 = 16 * ks
            if ks + 1 < NK:
                S.put(g0, W(vm=True))
                for i, o in enumerate(self.p3_reads(ks + 1)):
                    S.put(g0 + [0, 1, 3, 4, 6, 7, 9, 10][i], o)
            ops = []
            kn = ks + PD + 1
            if ks == 5:
                ops += [Op(f"buffer_atomic_add v{vD}, v{Zt}, {srd(rWS)}, s{sFlagC} offen sc1", needs=[("cst", False)])]
            if kn < NK:
                ops += self.p3_w(kn)
                if kn == 14:
                    ops += [Op(f"s_cmp_lt_u32 s{sSpin}, 32"), Op("s_cbranch_scc1 L_spin_c"), Op("L_back_c:")]
                ops += self.p3_a(kn)
            if ks == NK - 6:
                ops += [Op(f"buffer_load_dwordx2 {vr(XR + 2 * c, 2)}, v{Zu}, {srd(rX)}, s{sRG} offen offset:{32 * c}") for c in range(4)]
            S.flow(ops, g0 + 1, g0 + 15)
            if kn == 13:
                S.put(g0 + 11, f"s_load_dword s{sSpin}, s[{sPollC}:{sPollC+1}], 0x0 glc", front=True)
                S.put(g0 + 15, "s_waitcnt lgkmcnt(0)")
            elif ks + 1 < NK:
                S.put(g0 + 15, W(lg=True))
        q = Plain("spin_c")
        q.e("L_spin_c:")
        q.e(f"s_mov_b32 s{sCnt}, 0")
        q.e("L_spin2_c:")
        q.e(f"s_load_dword s{sSpin}, s[{sPollC}:{sPollC+1}], 0x0 glc")
        q.e(f"s_add_u32 s{sCnt}, s{sCnt}, 1")
        q.e(f"s_cmp_gt_u32 s{sCnt}, 400000")
        q.e("s_waitcnt lgkmcnt(0)")
        q.e("s_cbranch_scc1 L_back_c")
        q.e(f"s_cmp_lt_u32 s{sSpin}, 32")
        q.e("s_cbranch_scc0 L_back_c")
        q.e("s_sleep 2")
        q.e("s_branch L_spin2_c")
        self.ool.append(q)
        f = Plain("final")
        e = f.e
        for o in self.stamp_ops():
            e(o)
        a0 = AR
        e(f"v_add_u32 v{a0}, s{sM0p}, v{vL16}")
        for k in range(1, 4):
            e(f"v_subrev_u32 v{a0+k}, {32768 * k}, v{a0}")
            e(f"v_and_b32 v{a0+k}, 0x1ffff, v{a0+k}")
        e("s_nop 3")
        for k in range(1, 4):
            for c in range(4):
                e(f"ds_write_b128 v{a0}, {ar(16 * k + 4 * c)} offset:{k * 4096 + c * 1024}", lds_wr=(("P", k), "red", False))
        O = AR + 16
        for i in range(16):
            e(f"v_accvgpr_read_b32 v{O+i}, a{i}")
        e(W(vm=True))
        U = AR + 32
        for i in range(8):
            e(f"v_lshlrev_b32 v{U+2*i}, 16, v{XR+i}")
            e(f"v_and_b32 v{U+2*i+1}, 0xffff0000, v{XR+i}")
        for i in range(8):
            e(f"v_pk_add_f32 {vr(O+2*i, 2)}, {vr(O+2*i, 2)}, {vr(U+2*i, 2)}")
        e(W(lg=True))
        e("s_barrier")
        R = AR + 48
        for c in range(4):
            for k in range(1, 4):
                e(f"ds_read_b128 {vr(R + 16 * (k - 1) + 4 * c)}, v{a0+k} offset:{k * 4096 + c * 1024}", lds_rd=(("P", k), "red", True))
        for c in range(4):
            e(W(lg=True))
            for k in range(3):
                for h in range(2):
                    e(f"v_pk_add_f32 {vr(O+4*c+2*h, 2)}, {vr(O+4*c+2*h, 2)}, {vr(R+16*k+4*c+2*h, 2)}")
            for h in range(2):
                e(f"v_cvt_pk_bf16_f32 v{U+2*c+h}, v{O+4*c+2*h}, v{O+4*c+2*h+1}")
            e(f"buffer_store_dwordx2 {vr(U+2*c, 2)}, v{Zu}, {srd(rH)}, s{sRG} offen offset:{32 * c}")
        return [m, B["check2"]], [p, S, f]

    def finish(self, blocks, traces):
        for it in range(2):
            for name, tr in traces:
                Tracer(name, tr).run(resolve=True)
        soft = 0
        for name, tr in traces:
            T = Tracer(name, tr)
            T.run(resolve=False)
            soft += T.hazards()
        for b in blocks:
            n = b.n() if isinstance(b, Seg) else 0
            print(f"  block {b.name:12s} mfma={n:5d} est.cycles={b.cycles():6d}" + (f" (ideal {16*n})" if n else ""))
        print("  mfma distances satisfied by pipe timing only:", soft)
        hdr = open(self.a.ref).read().split("; Override launch")[0]
        out = [hdr.rstrip("\n"),
               "; generated by gen/gen.py (hand-written generator)",
               f"; @launch grid=(256,1,1) block=(256,1,1) lds={LDS_BYTES}",
               '.amdgcn_target "amdgcn-amd-amdhsa--gfx950"', ".text", f".globl {NAME}_kernel", ".p2align 8",
               f".type {NAME}_kernel,@function", f"{NAME}_kernel:"]
        for b in blocks + self.ool:
            out.append(f"; ---- {b.name} ----")
            for o in b.linear():
                t = o.render()
                out.append(t if o.kind == "label" else " " + t)
        out += ['.section .rodata,"a"', ".p2align 6", f".amdhsa_kernel {NAME}_kernel",
                "  .amdhsa_next_free_vgpr 512", "  .amdhsa_next_free_sgpr 102", "  .amdhsa_accum_offset 256",
                "  .amdhsa_group_segment_fixed_size 0", "  .amdhsa_kernarg_size 104", "  .amdhsa_user_sgpr_count 2",
                "  .amdhsa_user_sgpr_kernarg_segment_ptr 1", "  .amdhsa_system_sgpr_workgroup_id_x 1", ".end_amdhsa_kernel", ""]
        open(self.a.out, "w").write("\n".join(out))


def args():
    ap = argparse.ArgumentParser()
    ap.add_argument("--out", default="k.s")
    ap.add_argument("--ref", default=f"cdna_kernels/{NAME}.s.ref")
    ap.add_argument("--upto", default="full")
    ap.add_argument("--stamps", action="store_true")
    ap.add_argument("--finestamps", action="store_true")
    ap.add_argument("--verbose", action="store_true")
    ap.add_argument("--ld", default=" sc1")
    ap.add_argument("--st", default=" sc1")
    return ap.parse_args()


if __name__ == "__main__":
    Gen(args()).build()
```

```python
import re

TRANS = ("v_exp_f32", "v_log_f32", "v_rcp_f32", "v_rsq_f32", "v_sqrt_f32")
REG_RE = re.compile(r"^(-?)(?:abs\()?([vas])(?:(\d+)|\[(\d+):(\d+)\])\)?$")


def regs_of(tok):
    tok = tok.strip()
    if tok == "vcc":
        return [("s", "vcc")]
    if tok in ("m0", "exec"):
        return [("s", tok)]
    m = REG_RE.match(tok)
    if not m:
        return []
    f = m.group(2)
    if m.group(3) is not None:
        return [(f, int(m.group(3)))]
    return [(f, i) for i in range(int(m.group(4)), int(m.group(5)) + 1)]


class Op:
    __slots__ = ("text", "kind", "reads", "writes", "tag", "needs", "lds_wr", "lds_rd", "vm", "lg",
                 "fixed", "srcc", "passes", "mn", "comment", "ab")

    def __init__(self, text, tag=None, needs=(), lds_wr=None, lds_rd=None, comment=None):
        self.text = text
        self.tag = tag
        self.needs = list(needs)
        self.lds_wr = lds_wr
        self.lds_rd = lds_rd
        self.vm = None
        self.lg = None
        self.fixed = False
        self.srcc = []
        self.ab = []
        self.passes = 0
        self.comment = comment
        self.parse()

    def parse(self):
        t = self.text
        if t.endswith(":"):
            self.kind, self.mn, self.reads, self.writes = "label", "", [], []
            return
        if t.startswith("."):
            self.kind, self.mn, self.reads, self.writes = "label", "", [], []
            return
        parts = t.split(None, 1)
        mn = parts[0]
        self.mn = mn
        rest = parts[1] if len(parts) > 1 else ""
        toks = [x.strip() for x in rest.split(",")] if rest else []
        mods = ""
        if toks:
            out = []
            for i, x in enumerate(toks):
                if " " in x:
                    out.append(x.split()[0])
                    mods = " ".join([x.split(None, 1)[1]] + toks[i + 1:])
                    break
                out.append(x)
            toks = out
        R = [regs_of(x) for x in toks]
        flat = lambda l: [r for x in l for r in x]
        rd, wr = [], []
        if mn.startswith("v_mfma"):
            self.kind = "mfma"
            wr = R[0]
            rd = flat(R[1:])
            self.srcc = R[3]
            self.ab = R[1] + R[2]
            self.passes = 4 if "16x16x32" in mn else 8
        elif mn.startswith("v_cmp"):
            self.kind = "valu"
            wr = R[0]
            rd = flat(R[1:])
        elif mn.startswith("v_permlane") or mn.startswith("v_swap"):
            self.kind = "valu"
            wr = flat(R)
            rd = flat(R)
        elif mn.startswith("v_nop"):
            self.kind = "valu"
        elif mn.startswith("v_"):
            self.kind = "trans" if mn.startswith(TRANS) else "valu"
            wr = R[0]
            rd = flat(R[1:])
            if mn.startswith(("v_fmac", "v_dot2c")) or "_dpp" in mn:
                rd = rd + R[0]
        elif mn.startswith("ds_read") or mn.startswith("ds_bpermute"):
            self.kind = "ds"
            wr = R[0]
            rd = flat(R[1:])
        elif mn.startswith("ds_write"):
            self.kind = "dsw"
            rd = flat(R)
        elif mn.startswith(("buffer_load", "global_load")):
            if re.search(r"\blds\b", mods):
                self.kind = "dma"
                rd = flat(R) + [("s", "m0")]
            else:
                self.kind = "vld"
                wr = R[0]
                rd = flat(R[1:])
        elif mn.startswith(("buffer_store", "buffer_atomic", "global_store")):
            self.kind = "vst"
            rd = flat(R)
        elif mn == "s_waitcnt":
            self.kind = "wait"
            self.fixed = True
            m = re.search(r"vmcnt\((\d+)\)", t)
            self.vm = int(m.group(1)) if m else None
            m = re.search(r"lgkmcnt\((\d+)\)", t)
            self.lg = int(m.group(1)) if m else None
        elif mn == "s_barrier":
            self.kind = "bar"
        elif mn.startswith(("s_cbranch", "s_branch", "s_endpgm", "s_setpc")):
            self.kind = "branch"
            if "scc" in mn:
                rd = [("s", "scc")]
            if "vcc" in mn:
                rd = [("s", "vcc")]
        elif mn in ("s_nop", "s_sleep", "s_setprio"):
            self.kind = "salu"
        elif mn.startswith(("s_load", "s_memtime", "s_memrealtime")):
            self.kind = "smem"
            wr = R[0]
            rd = flat(R[1:])
        elif mn.startswith(("s_cmp", "s_bitcmp")):
            self.kind = "salu"
            rd = flat(R)
            wr = [("s", "scc")]
        elif mn.startswith("s_"):
            self.kind = "salu"
            wr = list(R[0])
            rd = flat(R[1:])
            if mn.startswith(("s_add", "s_sub", "s_and", "s_or", "s_xor", "s_lshl", "s_lshr", "s_min", "s_max", "s_bfe", "s_ashr")):
                wr.append(("s", "scc"))
            if mn.startswith(("s_addc", "s_subb", "s_cselect")):
                rd.append(("s", "scc"))
            if mn.startswith("s_addk"):
                rd += R[0]
            if "saveexec" in mn:
                wr.append(("s", "exec"))
        else:
            raise ValueError("unknown instr: " + t)
        self.reads, self.writes = rd, wr

    def render(self):
        if self.kind == "wait" and not self.fixed:
            p = []
            if self.vm is not None and self.vm < 63:
                p.append(f"vmcnt({self.vm})")
            if self.lg is not None and self.lg < 15:
                p.append(f"lgkmcnt({self.lg})")
            t = "s_waitcnt " + " ".join(p) if p else "s_nop 0"
        else:
            t = self.text
        return t

    def states(self):
        if self.mn == "s_nop":
            return int(self.text.split()[1]) + 1
        if self.kind == "label":
            return 0
        return 1


def W(vm=False, lg=False):
    o = Op("s_waitcnt")
    o.fixed = False
    o.vm = 63 if vm else None
    o.lg = 15 if lg else None
    return o


COST = {"valu": 1, "trans": 2, "ds": 2, "dsw": 6, "dma": 3, "vld": 3, "vst": 6, "salu": 1, "wait": 1,
        "bar": 1, "branch": 1, "label": 0, "smem": 1}


def op_cost(o):
    if o.kind == "dsw":
        return 6 if "b128" in o.mn else 3
    if o.kind == "vst":
        return 6 if "x4" in o.mn else 4
    if o.mn == "s_nop":
        return o.states()
    return COST[o.kind]


def gap_slots(ops):
    t = 1
    for o in ops:
        if o.kind in ("valu", "trans"):
            t = max(t, 2)
        t += op_cost(o)
    return t


class Seg:
    def __init__(self, name):
        self.name = name
        self.pre = []
        self.mf = []
        self.nv = []
        self.va = []
        self.post = []

    def mfma(self, text):
        self.mf.append(Op(text))
        self.nv.append([])
        self.va.append([])
        return len(self.mf) - 1

    def n(self):
        return len(self.mf)

    def gap(self, g):
        return self.nv[g] + self.va[g]

    def used(self, g):
        return gap_slots(self.gap(g))

    def put(self, g, op, front=False):
        if isinstance(op, str):
            op = Op(op)
        lst = self.va[g] if op.kind in ("valu", "trans") else self.nv[g]
        if front:
            lst.insert(0, op)
        else:
            lst.append(op)
        return g

    def cap(self, g):
        return 4 if self.mf[g].passes == 4 else 8

    def extra(self, g, op):
        if op.kind in ("valu", "trans"):
            new = gap_slots(self.nv[g] + self.va[g] + [op])
        else:
            new = gap_slots(self.nv[g] + [op] + self.va[g])
        c = self.cap(g)
        return max(new, c) - max(self.used(g), c)

    def intrinsic(self, op):
        return max(0, gap_slots([op]) - 4)

    def place(self, op, lo, hi, latest=False, allow=None):
        if isinstance(op, str):
            op = Op(op)
        lo = max(lo, 0)
        hi = min(hi, self.n() - 1)
        assert lo <= hi, (self.name, op.text, lo, hi)
        rng = range(hi, lo - 1, -1) if latest else range(lo, hi + 1)
        best, bg = None, None
        base = self.intrinsic(op)
        for g in rng:
            if allow is not None and not allow(g, op):
                continue
            e = self.extra(g, op)
            if e <= base:
                return self.put(g, op)
            if best is None or e < best:
                best, bg = e, g
        if bg is None:
            bg = hi
        return self.put(bg, op)

    def flow(self, ops, lo, hi, rel=None, dl=None, spread=False, allow=None):
        g = lo
        last_valu_gap = -1
        out = []
        n = len(ops)
        for i, op in enumerate(ops):
            if isinstance(op, str):
                op = Op(op)
            r = g
            if rel is not None and rel[i] is not None:
                r = max(r, rel[i])
            if spread:
                r = max(r, lo + (i * (hi - lo + 1)) // n)
            if op.kind not in ("valu", "trans") and last_valu_gap >= r:
                r = last_valu_gap + 1
            d = hi
            if dl is not None and dl[i] is not None:
                d = min(d, dl[i])
            d = max(d, r)
            d = min(d, self.n() - 1)
            r = min(r, d)
            g = self.place(op, r, d, allow=allow)
            if op.kind in ("valu", "trans"):
                last_valu_gap = g
            out.append(g)
        return out

    def linear(self):
        L = list(self.pre)
        for i, m in enumerate(self.mf):
            L.append(m)
            L += self.nv[i] + self.va[i]
        return L + list(self.post)

    def cycles(self):
        c = 4 * sum(op_cost(o) if o.kind != "mfma" else o.passes for o in self.pre + self.post)
        for g in range(self.n()):
            c += 4 * max(self.cap(g), self.used(g))
        return c

    def auto_lg_waits(self, lat=6, incoming=(), verbose=False):
        pend = {r: -10 ** 6 for r in incoming}
        waits = [g for g in range(self.n()) if any(o.kind == "wait" and o.lg is not None for o in self.nv[g])]
        late = 0
        for o in self.pre:
            if o.kind == "ds":
                for r in o.writes:
                    pend[r] = -1
            elif o.kind == "wait" and o.lg is not None:
                pend = {}
        for i in range(self.n()):
            m = self.mf[i]
            need = [pend[r] for r in m.reads if r in pend]
            if need:
                rg = max(need)
                if not any(rg < w <= i - 1 and w >= rg + min(lat, i - 1 - rg) for w in waits):
                    lo = max(0, rg + 1, min(rg + lat, i - 1))
                    if i == 0:
                        self.pre.append(W(lg=True))
                    else:
                        g = None
                        for c in range(i - 1, lo - 1, -1):
                            for o in self.nv[c]:
                                if o.kind == "wait" and not o.fixed and o.lg is None and self.nv[c].index(o) == 0:
                                    o.lg = 15
                                    g = c
                                    break
                            if g is not None:
                                break
                        if g is None:
                            w = W(lg=True)
                            best = None
                            for c in range(i - 1, lo - 1, -1):
                                e = self.extra(c, w)
                                if best is None or e < best[0]:
                                    best = (e, c)
                                if e == 0:
                                    break
                            g = best[1]
                            self.put(g, w, front=True)
                        waits.append(g)
                        if g - rg < lat:
                            late += 1
                            if verbose:
                                print(f"  [{self.name}] short lds latency: read gap {rg}, wait gap {g}, use {i}")
                for r in m.reads:
                    pend.pop(r, None)
            for o in self.nv[i]:
                if o.kind == "ds":
                    for r in o.writes:
                        pend[r] = i
        return late


class Plain:
    def __init__(self, name):
        self.name = name
        self.ops = []

    def e(self, x, **kw):
        if isinstance(x, str):
            x = Op(x, **kw)
        self.ops.append(x)
        return x

    def linear(self):
        return list(self.ops)

    def cycles(self):
        return 4 * sum(op_cost(o) if o.kind != "mfma" else o.passes for o in self.ops)


def ev(x, ctx):
    return x(ctx) if callable(x) else x


VM = ("dma", "vld", "vst")
LG = ("ds", "dsw", "smem")


class TraceError(Exception):
    pass


class Tracer:
    def __init__(self, name, trace):
        self.name = name
        self.tr = [(o, c) for (o, c) in trace if o.kind != "label"]

    def err(self, i, msg):
        lo = max(0, i - 12)
        ctxt = "\n".join(f"   {'>>' if k == i else '  '} {self.tr[k][0].render()}" for k in range(lo, min(len(self.tr), i + 2)))
        raise TraceError(f"[{self.name}] at {i}: {msg}\n{ctxt}")

    def run(self, resolve):
        tr = self.tr
        n = len(tr)
        cls = lambda o: "vm" if o.kind in VM else ("lg" if o.kind in LG else None)
        cnt = {"vm": [0] * (n + 1), "lg": [0] * (n + 1)}
        waits = {"vm": [], "lg": []}
        bars = []
        for i, (o, c) in enumerate(tr):
            for k in cnt:
                cnt[k][i + 1] = cnt[k][i] + (1 if cls(o) == k else 0)
        import bisect
        done = {"vm": -1, "lg": -1}
        donepos = {"vm": [], "lg": []}

        def covered(k, p, limit):
            ordn = cnt[k][p]
            lst = waits[k]
            a = bisect.bisect_right(lst, p)
            b = bisect.bisect_right(lst, limit)
            for w in lst[a:b]:
                N = getattr(tr[w][0], k)
                if cnt[k][w] - N > ordn:
                    return True
            return False

        def require(i, p, shared, what):
            k = cls(tr[p][0])
            limit = i
            if shared:
                b = bisect.bisect_left(bars, i) - 1
                if b < 0 or bars[b] < p:
                    self.err(i, f"no barrier between producer {p} ({tr[p][0].text}) and consumer for {what}")
                limit = bars[b]
            if covered(k, p, limit):
                return
            if resolve:
                lst = waits[k]
                b = bisect.bisect_right(lst, limit) - 1
                while b >= 0 and lst[b] > p and tr[lst[b]][0].fixed:
                    b -= 1
                if b < 0 or lst[b] < p:
                    self.err(i, f"no {k} wait between producer {p} ({tr[p][0].text}) and consumer for {what}")
                w = lst[b]
                N = cnt[k][w] - cnt[k][p] - 1
                setattr(tr[w][0], k, min(getattr(tr[w][0], k), N))
            else:
                self.err(i, f"uncovered {k} dependency on {p} ({tr[p][0].text}) for {what}")

        pendreg = {}
        tagpos = {}
        lds = {}
        smem_out = False
        for i, (o, c) in enumerate(tr):
            if o.kind == "wait":
                if o.vm is not None:
                    waits["vm"].append(i)
                if o.lg is not None:
                    waits["lg"].append(i)
                    if smem_out and o.lg != 0:
                        self.err(i, "counted lgkm wait with smem outstanding")
                    if o.lg == 0:
                        smem_out = False
                continue
            if o.kind == "bar":
                bars.append(i)
                continue
            for r in o.reads + o.writes:
                if r in pendreg:
                    p = pendreg[r]
                    if r in o.writes and r not in o.reads and cls(o) == cls(tr[p][0]) and o.kind != "smem":
                        continue
                    require(i, p, False, f"reg {r}")
                    del pendreg[r]
            for (tag, shared) in o.needs:
                tag = ev(tag, c)
                if tag not in tagpos:
                    self.err(i, f"needs unknown tag {tag}")
                require(i, tagpos[tag], shared, f"tag {tag}")
            if o.lds_rd is not None:
                phys, tag, shared = ev(o.lds_rd, c)
                st = lds.get(phys)
                if st is None or st["tag"] != tag:
                    self.err(i, f"lds region {phys} holds {st and st['tag']} but {tag} expected")
                require(i, st["wr"], shared, f"lds RAW {phys} {tag}")
                st["rd"] = i
            if o.lds_wr is not None:
                lw = ev(o.lds_wr, c)
                for (phys, tag, shared) in (lw if isinstance(lw, list) else [lw]):
                    st = lds.get(phys)
                    if st is not None and st["rd"] is not None:
                        require(i, st["rd"], shared, f"lds WAR {phys} {st['tag']}->{tag}")
                    if st is not None and st["tag"] != tag:
                        if st["rd"] is None and cls(tr[st["wr"]][0]) != cls(o):
                            require(i, st["wr"], shared, f"lds WAW {phys}")
                        st = None
                    if st is None:
                        st = lds[phys] = {"tag": tag, "wr": i, "rd": None}
                    st["wr"] = i
            if o.kind in ("ds", "vld", "smem"):
                for r in o.writes:
                    pendreg[r] = i
                if o.kind == "smem":
                    smem_out = True
            if o.tag is not None:
                tagpos[ev(o.tag, c)] = i
        if not resolve:
            for k, mx in (("vm", 63), ("lg", 15)):
                dn = 0
                for i, (o, c) in enumerate(tr):
                    if o.kind == "wait" and getattr(o, k) is not None:
                        dn = max(dn, cnt[k][i] - getattr(o, k))
                    if cls(o) == k and cnt[k][i + 1] - dn > mx:
                        if k == "vm":
                            self.err(i, f"more than {mx} outstanding {k} ops")

    def hazards(self):
        tr = self.tr
        t = 0
        last_mfma_t, last_mfma_p = -100, 0
        wr_valu = {}
        wr_mfma = {}
        rd_srcc = {}
        st_data = {}
        wr_salu = {}
        soft = 0
        idx = 0
        for i, (o, c) in enumerate(tr):
            if o.kind == "mfma":
                t = max(t, last_mfma_t + last_mfma_p)
            now = t

            def chk(tab, r, need, what, timed=False):
                nonlocal soft
                if r in tab:
                    pt, pi, po = tab[r]
                    d_i = idx - pi - 1
                    d_t = now - pt - 1
                    if timed:
                        if d_t < need + 1 and d_i < need:
                            self.err(i, f"hazard {what} on {r}: {d_t} timed / {d_i} counted states < {need} after: {po.text}")
                        if d_i < need:
                            soft += 1
                    elif d_i < need:
                        self.err(i, f"hazard {what} on {r}: {d_i} < {need} after: {po.text}")

            isv = o.kind in ("valu", "trans")
            if o.kind == "mfma":
                for r in o.reads:
                    chk(wr_valu, r, 2, "valu->mfma")
                for r in o.ab:
                    if r in wr_mfma:
                        chk(wr_mfma, r, {4: 8, 8: 12}[wr_mfma[r][2].passes], "mfma->mfma A/B", True)
                for r in o.srcc:
                    if r in wr_mfma:
                        po = wr_mfma[r][2]
                        if not (po.writes == o.srcc and po.passes == o.passes):
                            chk(wr_mfma, r, {4: 6, 8: 10}[po.passes], "mfma->mfma C overlap", True)
                for r in o.writes:
                    if r in wr_mfma and r not in o.srcc:
                        po = wr_mfma[r][2]
                        if po.passes > o.passes:
                            chk(wr_mfma, r, {4: 6, 8: 10}[po.passes], "mfma WAW", True)
            else:
                for r in o.reads + o.writes:
                    if r in wr_mfma:
                        chk(wr_mfma, r, {4: 8, 8: 12}[wr_mfma[r][2].passes], "mfma->other", True)
            if isv:
                for r in o.writes:
                    if r in rd_srcc:
                        chk(rd_srcc, r, {4: 3, 8: 7}[rd_srcc[r][2].passes], "srcC WAR", True)
                    chk(st_data, r, 2, "store data WAR")
                for r in o.reads:
                    if r in wr_valu:
                        po = wr_valu[r][2]
                        if r[0] == "s":
                            chk(wr_valu, r, 2, "valu sgpr->valu")
                        if po.kind == "trans" and o.kind != "trans":
                            chk(wr_valu, r, 1, "trans->valu")
                        if o.mn.startswith("v_permlane") or "_dpp" in o.mn:
                            chk(wr_valu, r, 2, "valu->permlane/dpp")
                        if o.mn.startswith(("v_readfirstlane", "v_readlane")):
                            chk(wr_valu, r, 1, "valu->readlane")
            elif o.kind in ("vld", "ds"):
                for r in o.writes:
                    chk(st_data, r, 1, "store data WAR (load)")
            if o.kind in VM:
                for r in o.reads:
                    if r[0] == "s":
                        chk(wr_valu, r, 5, "valu sgpr->vmem")
                if o.kind == "dma":
                    chk(wr_salu, ("s", "m0"), 1, "m0->dma")
                for r in o.reads:
                    if r in wr_valu and wr_valu[r][2].kind == "trans":
                        chk(wr_valu, r, 1, "trans->vmem")
            if o.kind in ("salu", "branch"):
                for r in o.reads:
                    if r in wr_valu:
                        chk(wr_valu, r, 1, "valu sgpr->salu (pad)")
            if ("s", "scc") in o.reads:
                po = wr_salu.get(("s", "scc"))
                if po is None:
                    self.err(i, "scc read without writer")
                pm = po[2].mn
                ok = pm.startswith("s_add_u32") and idx - po[1] == 1 if o.mn.startswith("s_addc") else pm.startswith("s_cmp")
                if not ok:
                    self.err(i, "scc clobbered by " + po[2].text)
            if o.kind == "branch" and ("s", "vcc") in o.reads:
                po = wr_valu.get(("s", "vcc"))
                if po is None or "_le_i32" in po[2].mn or idx - po[1] > 6:
                    self.err(i, "vcc branch without its compare")
            if o.mn.startswith("v_cndmask"):
                po = wr_valu.get(o.reads[-1])
                if po is None or "_le_i32" not in po[2].mn:
                    self.err(i, "cndmask mask clobbered")
            rec = (now, idx, o)
            for r in o.writes:
                wr_valu.pop(r, None)
                wr_mfma.pop(r, None)
                wr_salu.pop(r, None)
                if isv:
                    wr_valu[r] = rec
                elif o.kind == "mfma":
                    wr_mfma[r] = rec
                elif o.kind == "salu":
                    wr_salu[r] = rec
            if o.kind == "mfma":
                for r in o.srcc:
                    rd_srcc[r] = rec
                last_mfma_t, last_mfma_p = now, o.passes
            if o.kind == "vst" and ("x4" in o.mn or "x3" in o.mn):
                for r in regs_of(o.text.split(None, 1)[1].split(",")[0]):
                    st_data[r] = rec
            s = o.states()
            t += s
            idx += s
        return soft


class Task:
    __slots__ = ("op", "rel", "dl", "preds", "gap", "idx")

    def __init__(self, op, rel, dl, preds=()):
        self.op = Op(op) if isinstance(op, str) else op
        self.rel, self.dl = rel, dl
        self.preds = list(preds)
        self.gap = None


def schedule(S, tasks):
    N = S.n()
    for i, t in enumerate(tasks):
        t.idx = i
        t.rel = max(0, t.rel)
        t.dl = min(N - 1, t.dl)
    for _ in range(64):
        ch = False
        for t in tasks:
            for p, d in t.preds:
                if t.rel < p.rel + d:
                    t.rel = p.rel + d
                    ch = True
                if p.dl > t.dl - d:
                    p.dl = t.dl - d
                    ch = True
        if not ch:
            break
    for t in tasks:
        if t.dl < t.rel:
            assert t.rel <= N - 1, (S.name, t.op.text, t.rel, t.dl)
            t.dl = t.rel
    big = lambda t: t.op.kind in ("ds", "trans", "dma", "vld", "vst", "dsw")
    left = list(tasks)

    def ready(t, g):
        if t.rel > g:
            return False
        for p, d in t.preds:
            if p.gap is None or p.gap + d > g:
                return False
            if p.gap == g and p.op.kind in ("valu", "trans") and t.op.kind not in ("valu", "trans"):
                return False
        return True

    def put(t, g):
        S.put(g, t.op)
        t.gap = g
        left.remove(t)

    key = lambda t: (t.dl, t.idx)
    last_dbl = [-8]
    for g in range(N):
        while True:
            c = sorted((t for t in left if t.dl <= g and ready(t, g)), key=key)
            if not c:
                break
            put(c[0], g)
        def feasible_without(kind_ds):
            bl = sorted(t.dl for t in left if big(t) and (t.op.kind == "ds") == kind_ds)
            return all(k + 1 <= dl - g for k, dl in enumerate(bl))
        c = sorted((t for t in left if big(t) and ready(t, g)), key=key)
        c0 = [t for t in c if S.extra(g, t.op) <= S.intrinsic(t.op)]
        if c0:
            pick = c0[0]
            prev_ds = g > 0 and any(o.kind == "ds" for o in S.nv[g - 1])
            bl = sorted(t.dl for t in left if big(t))
            alt = [t for t in c0 if (t.op.kind == "ds") != prev_ds]
            if alt and alt[0] is not pick:
                ok = all(k + 1 <= dl - g for k, dl in enumerate(bl) if dl < alt[0].dl)
                if ok:
                    pick = alt[0]
            put(pick, g)
        bl = sorted(t.dl for t in left if big(t))
        over = [(k + 1 - (dl - g), dl) for k, dl in enumerate(bl) if k + 1 > dl - g]
        if over:
            need, dl = max(over, key=lambda x: x[0] / max(1, x[1] - g))
            if (g - last_dbl[0]) * need >= (dl - g) // 1 or dl - g <= 2 * need:
                c = sorted((t for t in left if big(t) and ready(t, g) and t.dl <= dl), key=key)
                has_ds = any(o.kind == "ds" for o in S.nv[g])
                c1 = [t for t in c if S.extra(g, t.op) <= 1 and S.used(g) <= 4 and not (has_ds and t.op.kind == "ds")]
                if c1:
                    put(c1[0], g)
                    last_dbl[0] = g
        while True:
            c = sorted((t for t in left if not big(t) and ready(t, g) and S.extra(g, t.op) == 0), key=key)
            if not c:
                break
            put(c[0], g)
    assert not left, (S.name, [(t.op.text, t.rel, t.dl) for t in left])
```

```python
import sys, struct, argparse
from fw import *

NAME = "parallel_sum__compressed_kv_cla__dense_activation_mish__prompt"
MB = 1 << 20
KB = 1024
XN_RT = 17 * KB
KV_T = 17 * KB
KV_H = 32 * KV_T + 5 * KB
ACT_HD = 17 * KB
ACT_HOFF = 32 * ACT_HD
ACT_RG = ACT_HOFF + 56 * 4096 + 5 * KB
XN_OFF = 0
K_OFF = 3 * MB
V_OFF = 21 * MB + 10 * KB
ACT_OFF = 39 * MB
FLAG_OFF = 66 * MB
HFLAG_OFF = FLAG_OFF + 4096
CFLAG_OFF = FLAG_OFF + 5120
STAMP_OFF = 68 * MB
QDUMP_OFF = 72 * MB
WS_BYTES = 256 * MB

SLOT = [128 * 1024, 0, 32 * 1024]
CST = 64 * 1024
VRING = 0
KRING = 64 * 1024
SPARE = 128 * 1024
LDS_BYTES = 160 * 1024


def f32(x):
    return "0x%08x" % struct.unpack("<I", struct.pack("<f", x))[0]


LOG2E = 1.4426950408889634
SCALE = LOG2E * 128 ** -0.5

pX, pC, pWQ, pWK, pWV, pWO, pBX, pW1, pB1, pW2, pOUT, pDBG, pWS = [4 + 2 * i for i in range(13)]
rW, rC, rWS, rH, rDBG, rX, rV = 32, 36, 40, 44, 48, 52, 56
rK = rC
sB = 2
sWv, sH, sJ = 60, 61, 62
sWp8, sWp1 = 63, 64
sT = [65, 66, 67, 68]
sCb = 69
sM0c, sM0w = 70, 71
sKVst = 72
sRT = [73, 74, 75, 76]
sAct = [77, 78, 79, 80]
sFlagKV, sFlagH, sFlagC = 81, 82, 83
sSC = 84
sTmp, sTmp2 = 85, 86
sSpin = 87
sBad = 88
sKo, sVo = 90, 91
sMc, sMn = 92, 93
sCnt = 94
sFb = 95
sStamp = 96
sMask = 98
sPollKV = 3
sL2E = 30
sWp1b = 31
sKa, sKb, sVa, sVb = 98, 99, 100, 101
sM0j = 88
sR = 89


def srd(r):
    return f"s[{r}:{r+3}]"


def vr(b, n=4):
    return f"v[{b}:{b+n-1}]" if n > 1 else f"v{b}"


def ar(b, n=4):
    return f"a[{b}:{b+n-1}]" if n > 1 else f"a{b}"


vSel0 = 0
vL16 = 1
vW8, vW1 = 2, 3
vCD = [4, 5]
vCR = [6, 7]
vWRa = [8, 9, 10, 11]
vWRb = [12, 13, 14, 15]
B0, B1, B2 = 16, 80, 144
WF = 208
T0 = 240

MF = "v_mfma_f32_16x16x32_bf16"
MF32 = "v_mfma_f32_32x32x16_bf16"
vKc, vKn, vVc, vVn = 4, 5, 6, 7
SB = B2
BANK = B2 + 16
NEG = {1: B2 + 32, 2: B2 + 36, 3: B2 + 40}
NEG3L = B2 + 44
NEG0 = B2 + 48
MX = B2 + 52
ZERO, ONES = WF, WF + 4
ET = WF + 8
Z0, Z1, NINF, vP, vA, vD, Zt, Zu = [T0 + 8 + i for i in range(8)]
aO, aL, aK, aV = 0, 128, 144, 176
sMA, sMB = 98, 100
LAT = 7
vR = [8, 9, 10, 11]
vDm = [12, 13, 14, 15]
vAo = [B2 + 60 + i for i in range(4)]
AR = B0
WF2 = B2
sRG, sCG = sRT[0], sRT[1]
sActH, sActC = sRT[2], sRT[3]
sW2b, sWob = sWp8, sWp1
sM0p = sCb
sPollH = sKVst
sPollC = 70
vTA, vTW = 2, 3


def Qf(t, u):
    return B1 + 16 * u + 4 * t


def Pf(par, t, kg):
    return B0 + 32 * par + 8 * t + 4 * kg


def negsrc(t):
    return NEG0 if t == 0 else NEG[t]


class Gen:
    def __init__(self, a):
        self.a = a
        self.blocks = []
        self.ool = []
        self.nstamp = 0
        self.rot = 0
        self.m0 = None

    def st(self):
        self.rot = (self.rot + 1) % 4
        return sT[self.rot]

    def stamp_ops(self):
        if not self.a.stamps:
            return []
        i = self.nstamp
        self.nstamp += 1
        if self.a.rt:
            return [Op(f"s_memrealtime s[{sStamp}:{sStamp+1}]"), Op("s_waitcnt lgkmcnt(0)"), Op(f"s_mul_i32 s{sStamp}, s{sStamp}, 4"),
                    Op(f"s_bitset1_b32 s{sStamp}, 31"), Op(f"s_bitset0_b32 s{sStamp}, 30"),
                    Op(f"v_writelane_b32 v{vSel0}, s{sStamp}, {i + 1}")]
        return [Op(f"s_memtime s[{sStamp}:{sStamp+1}]"), Op("s_waitcnt lgkmcnt(0)"),
                Op(f"s_bitset1_b32 s{sStamp}, 31"), Op(f"s_bitset0_b32 s{sStamp}, 30"), Op(f"s_bitset0_b32 s{sStamp}, 0"), Op(f"s_bitset0_b32 s{sStamp}, 1"),
                Op(f"v_writelane_b32 v{vSel0}, s{sStamp}, {i + 1}")]

    def rt_ops(self, lane):
        if not self.a.stamps:
            return []
        return [Op(f"s_memrealtime s[{sStamp}:{sStamp+1}]"), Op("s_waitcnt lgkmcnt(0)"), Op(f"s_lshl_b32 s{sStamp}, s{sStamp}, 2"),
                Op(f"s_bitset1_b32 s{sStamp}, 31"), Op(f"s_bitset0_b32 s{sStamp}, 30"),
                Op(f"v_writelane_b32 v{vSel0}, s{sStamp}, {lane}")]

    def set_m0(self, text):
        if text == self.m0:
            return []
        self.m0 = text
        return [Op(text)]

    def mk_srd(self, e, r, p, nbytes):
        e(f"s_mov_b32 s{r}, s{p}")
        e(f"s_mov_b32 s{r+1}, s{p+1}")
        e(f"s_mov_b32 s{r+2}, {nbytes}")
        e(f"s_mov_b32 s{r+3}, 0x20000")

    def w_dma(self, n, i):
        slot = (n + 2) % 3
        ops = []
        if i == 0 and n in (4, 8, 10):
            p = {4: pWV, 8: pW1, 10: pWQ}[n]
            ops += [Op(f"s_mov_b32 s{rW}, s{p}"), Op(f"s_mov_b32 s{rW+1}, s{p+1}")]
            if n == 8:
                ops.append(Op(f"s_min_u32 s{rW+2}, s{rH+2}, {512*3584}"))
            if n == 10:
                s = self.st()
                ops += [Op(f"s_mov_b32 s{rW+2}, {4*MB}"), Op(f"s_lshr_b32 s{s}, s{sR}, 1"), Op(f"s_lshl_b32 s{s}, s{s}, 18"),
                        Op(f"s_xor_b32 s{sWp8}, s{sWp8}, s{s}")]
        s = self.st()
        wr = [(("W", slot), ("W", n), True)]
        if n == 2:
            wr += [(("X", 0), ("W", n), False), (("X", 1), ("W", n), False)]
        if n in (8, 9):
            ops += self.set_m0(f"s_add_u32 m0, s{sM0w}, {SLOT[slot] + (i >> 2) * 4096}")
            off = (n - 8) * 256 * 3584 + (16 * ((i >> 1) & 1) + 4 * (i & 1)) * 3584 - (i & 3) * 1024
            ops.append(Op(f"s_add_u32 s{s}, s{sWp1b if i >> 2 else sWp1}, {off}"))
            ops.append(Op(f"buffer_load_dwordx4 v{vW1}, {srd(rW)}, s{s} offen offset:{(i & 3) * 1024}{self.a.wld} lds", lds_wr=wr))
        else:
            kq = n % 4 if n < 8 else n - 10
            ops += self.set_m0(f"s_xor_b32 m0, s{sM0j}, {SLOT[slot] + i * 1024}")
            ops.append(Op(f"s_xor_b32 s{s}, s{sWp8}, {(kq << 20) + (16 * (i >> 1) + 4 * (i & 1)) * 8192}"))
            ops.append(Op(f"buffer_load_dwordx4 v{vW8}, {srd(rW)}, s{s} offen{self.a.wld} lds", lds_wr=wr))
        return ops

    def c_region(self, u):
        if u < 4:
            return ("C", u)
        if u < 6:
            return ("X", u - 4)
        return ("C", (u - 6) % 4)

    def c_dma(self, u):
        kq, p0, p1 = u >> 2, u & 1, (u >> 1) & 1
        reg = self.c_region(u)
        s, s2 = self.st(), self.st()
        if reg[0] == "C":
            m = f"s_add_u32 m0, s{sM0c}, {CST + reg[1] * 4096}"
        else:
            m = f"s_add_u32 m0, s{sM0w}, {SLOT[1] + reg[1] * 4096}"
        ops = self.set_m0(m)
        ops += [Op(f"s_xor_b32 s{s}, s{sCb}, {(p1 << 15) + (kq << 8) + (p0 << 7)}"), Op(f"s_add_u32 s{s2}, s{s}, 14336")]
        for q in range(4):
            ops.append(Op(f"buffer_load_dwordx4 v{vCD[q & 1]}, {srd(rC)}, s{s2 if q >> 1 else s} offen offset:{q * 1024} lds",
                          lds_wr=(reg, ("c", u), False)))
        return ops

    def c_reads(self, u):
        kq, p0, p1 = u >> 2, u & 1, (u >> 1) & 1
        reg = self.c_region(u)
        ops = []
        for t in range(2):
            for sb in range(2):
                a = vCR[sb] if reg[0] == "C" else T0 + 14 + sb
                ops.append(Op(f"ds_read_b128 {ar(64*kq + 16*(2*p1 + t) + 4*(2*p0 + sb))}, v{a} offset:{reg[1] * 4096 + t * 2048}",
                              lds_rd=(reg, ("c", u), False)))
        return ops

    def w_reads(self, G):
        n, gi = G >> 3, G & 7
        slot = (n + 2) % 3
        hf, c4 = gi >> 2, gi & 3
        a = (vWRb if slot == 0 else vWRa)[c4]
        base = (0 if slot == 0 else SLOT[slot]) + hf * 16384
        ops = []
        for s in range(4):
            for hh in range(2):
                d = WF + 16 * (G & 1) + 4 * s + 2 * hh
                ops.append(Op(f"ds_read_b64_tr_b16 {vr(d, 2)}, v{a} offset:{base + s * 4096 + hh * 1024}",
                              lds_rd=(("W", slot), ("W", n), True)))
        return ops

    def pad_m0(self, ops):
        out = []
        for o in ops:
            if o.kind == "dma" and out and ("s", "m0") in out[-1].writes:
                out.append(Op("s_nop 0"))
            out.append(o)
        return out

    def poll(self, name, load_text, cmp_text):
        p = Plain("spin_" + name)
        p.e(f"L_spin_{name}:")
        p.e(f"s_mov_b32 s{sSpin}, 0")
        p.e(f"L_spin2_{name}:")
        p.e("s_sleep 4")
        p.e(load_text)
        p.e(f"s_add_u32 s{sSpin}, s{sSpin}, 1")
        p.e(f"s_cmp_gt_u32 s{sSpin}, 200000")
        p.e("s_waitcnt vmcnt(0)")
        p.e(f"s_cbranch_scc1 L_back_{name}")
        p.e(cmp_text)
        p.e("s_nop 1")
        p.e(f"s_cbranch_vccnz L_spin2_{name}")
        p.e(f"s_branch L_back_{name}")
        self.ool.append(p)
        return Op(load_text), [W(vm=True), Op(cmp_text)], [Op(f"s_cbranch_vccnz L_spin_{name}"), Op(f"L_back_{name}:")]

    def prologue(self):
        p = Plain("prologue")
        e = p.e
        e(f"s_cmp_ge_u32 s{sB}, 256")
        e("s_cbranch_scc1 L_end")
        e("s_load_dwordx16 s[4:19], s[0:1], 0")
        e("s_load_dwordx8 s[20:27], s[0:1], 64")
        e("s_load_dwordx2 s[28:29], s[0:1], 96")
        t = T0
        if self.a.ctouch:
            e(f"s_getpc_b64 s[{sStamp}:{sStamp+1}]")
            e("L_pc:")
            e(f"s_lshr_b32 s{sTmp}, s{sB}, 3")
            e(f"s_lshl_b32 s{sTmp}, s{sTmp}, 9")
            e(f"v_and_b32 v{t+6}, 7, v0")
            e(f"v_lshl_add_u32 v{t+11}, v{t+6}, 14, s{sTmp}")
            e(f"v_and_b32 v{t+6}, 0xc0, v0")
            e(f"v_lshl_add_u32 v{t+11}, v{t+6}, 1, v{t+11}")
            e(f"v_min_u32 v{t+11}, L_code_end-L_pc-4, v{t+11}")
            e(f"global_load_dword v{B2+63}, v{t+11}, s[{sStamp}:{sStamp+1}]")
        e(f"v_lshrrev_b32 v{t}, 6, v0")
        e(f"v_and_b32 v{t+1}, 63, v0")
        e(f"v_readfirstlane_b32 s{sWv}, v{t}")
        e(f"v_lshlrev_b32 v{vL16}, 4, v{t+1}")
        e(f"v_min_u32 v0, 1, v0")
        e(f"v_lshlrev_b32 v{vSel0}, 28, v0")
        for o in self.rt_ops(62) + self.stamp_ops():
            e(o)
        e(f"s_and_b32 s{sH}, s{sB}, 7")
        e(f"s_lshl_b32 s{sH}, s{sH}, 2")
        e(f"s_bfe_u32 s{sTmp}, s{sB}, 0x20003")
        e(f"s_add_u32 s{sH}, s{sH}, s{sTmp}")
        e(f"s_lshr_b32 s{sJ}, s{sB}, 5")
        e(f"v_and_b32 v{t+2}, 31, v{t+1}")
        e(f"v_lshrrev_b32 v{t+3}, 5, v{t+1}")
        e(f"v_lshlrev_b32 v{t+4}, 10, v{t+3}")
        e(f"v_lshl_add_u32 v{t+4}, v{t+2}, 4, v{t+4}")
        e(f"s_lshl_b32 s{sTmp}, s{sB}, 13")
        e(f"s_lshl_b32 s{sTmp2}, s{sWv}, 11")
        e(f"s_add_u32 s{sTmp}, s{sTmp}, s{sTmp2}")
        e(f"v_lshrrev_b32 v{t+5}, 3, v{t+1}")
        e(f"v_and_b32 v{t+6}, 7, v{t+1}")
        e(f"v_lshrrev_b32 v{t+7}, 4, v{t+1}")
        e(f"v_xor_b32 v{t+8}, v{t+6}, v{t+7}")
        e(f"v_lshlrev_b32 v{t+8}, 4, v{t+8}")
        e(f"v_lshl_add_u32 v{vCD[0]}, v{t+5}, 10, v{t+8}")
        e(f"v_xor_b32 v{vCD[1]}, 64, v{vCD[0]}")
        e(f"v_add_u32 v{vCD[1]}, {8192 - 1024}, v{vCD[1]}")
        e(f"s_lshl_b32 s{sCb}, s{sJ}, 18")
        e(f"s_lshl_b32 s{sTmp2}, s{sWv}, 16")
        e(f"s_add_u32 s{sCb}, s{sCb}, s{sTmp2}")
        e(f"s_and_b32 s{sR}, s{sH}, {self.a.rmask}")
        e(f"s_mul_i32 s{sTmp2}, s{sR}, {(1 << 14) + (1 << 7)}")
        e(f"s_and_b32 s{sTmp2}, s{sTmp2}, {(1 << 15) + (1 << 7)}")
        e(f"s_add_u32 s{sCb}, s{sCb}, s{sTmp2}")
        e(f"s_lshl_b32 s{sM0c}, s{sWv}, 14")
        e(f"s_lshl_b32 s{sM0w}, s{sWv}, 13")
        e(f"s_and_b32 s{sSpin}, s{sJ}, {self.a.jmask}")
        e(f"s_lshl_b32 s{sM0j}, s{sSpin}, 10")
        e(f"s_add_u32 s{sM0j}, s{sM0j}, s{sM0w}")
        e(f"v_and_b32 v{t+9}, 3, v{t+5}")
        e(f"v_lshl_add_u32 v{t+9}, v{t+3}, 3, v{t+9}")
        e(f"v_lshlrev_b32 v{t+10}, 1, v{t+7}")
        e(f"v_xor_b32 v{t+10}, v{t+10}, v{t+6}")
        e(f"v_lshlrev_b32 v{t+10}, 4, v{t+10}")
        e(f"v_lshl_add_u32 v{vW8}, v{t+9}, 13, v{t+10}")
        e(f"v_mul_u32_u24 v{vW1}, 3584, v{t+9}")
        e(f"v_add_u32 v{vW1}, v{vW1}, v{t+10}")
        e(f"s_xor_b32 s{sWp8}, s{sWv}, s{sR}")
        e(f"s_and_b32 s{sWp8}, s{sWp8}, 1")
        e(f"s_lshl_b32 s{sWp8}, s{sWp8}, 19")
        e(f"s_and_b32 s{sTmp2}, s{sSpin}, 1")
        e(f"s_lshl_b32 s{sTmp2}, s{sTmp2}, 15")
        e(f"s_add_u32 s{sWp8}, s{sWp8}, s{sTmp2}")
        e(f"s_lshr_b32 s{sTmp2}, s{sSpin}, 1")
        e(f"s_lshl_b32 s{sTmp2}, s{sTmp2}, 17")
        e(f"s_add_u32 s{sWp8}, s{sWp8}, s{sTmp2}")
        e(f"s_lshr_b32 s{sTmp2}, s{sWv}, 1")
        e(f"s_lshl_b32 s{sTmp2}, s{sTmp2}, 7")
        e(f"s_add_u32 s{sWp8}, s{sWp8}, s{sTmp2}")
        e(f"s_lshl_b32 s{sTmp2}, s{sH}, 8")
        e(f"s_add_u32 s{sWp8}, s{sWp8}, s{sTmp2}")
        e("s_waitcnt lgkmcnt(0)")
        ps = lambda: [e(o) for o in (self.stamp_ops() if self.a.prostamps else [])]
        ps()
        self.mk_srd(e, rX, pX, 2 * MB)
        X = B2
        e(f"buffer_load_dwordx4 {vr(X)}, v{t+4}, {srd(rX)}, s{sTmp} offen")
        e(f"buffer_load_dwordx4 {vr(X+4)}, v{t+4}, {srd(rX)}, s{sTmp} offen offset:512")
        self.mk_srd(e, rC, pC, 2 * MB)
        self.mk_srd(e, rW, pWK, 4 * MB)
        for o in self.pad_m0(self.w_dma(0, 0) + self.c_dma(0)):
            e(o)
        later = [lambda: self.c_dma(1)]
        later += [lambda i=i: self.w_dma(0, i) for i in range(1, 4)] + [lambda: self.c_dma(2)]
        later += [lambda i=i: self.w_dma(0, i) for i in range(4, 8)] + [lambda: self.c_dma(3)]
        for o in self.stamp_ops():
            e(o)
        mark = len(p.ops)
        self.mk_srd(e, rWS, pWS, WS_BYTES)
        self.mk_srd(e, rDBG, pDBG, 256)
        self.mk_srd(e, rH, pWS, WS_BYTES)
        e(f"s_cmp_lt_u32 s{sH}, 28")
        e(f"s_cselect_b32 s{rH+2}, s{rH+2}, 0")
        e(f"s_lshl_b32 s{sPollKV}, s{sH}, 7")
        e(f"s_add_u32 s{sPollKV}, s{sPollKV}, {FLAG_OFF}")
        e(f"s_lshl_b32 s{sTmp}, s{sJ}, 2")
        e(f"s_add_u32 s{sFlagKV}, s{sPollKV}, s{sTmp}")
        e(f"s_lshl_b32 s{sTmp}, s{sJ}, 5")
        e(f"s_add_u32 s{sTmp}, s{sTmp}, s{sH}")
        e(f"s_lshl_b32 s{sFlagH}, s{sTmp}, 2")
        e(f"s_add_u32 s{sFlagH}, s{sFlagH}, {HFLAG_OFF}")
        e(f"s_lshr_b32 s{sTmp}, s{sTmp}, 3")
        e(f"s_lshl_b32 s{sFlagC}, s{sTmp}, 7")
        e(f"s_add_u32 s{sFlagC}, s{sFlagC}, {CFLAG_OFF}")
        e(f"s_cmp_lt_u32 s{sB}, 72")
        e(f"s_cselect_b32 s{sTmp}, s{sWv}, 1")
        e(f"v_or_b32 v{t+11}, s{sTmp}, v{t+3}")
        e(f"v_lshlrev_b32 v{t+11}, 28, v{t+11}")
        e(f"v_lshl_add_u32 v{t+11}, v{t+2}, 2, v{t+11}")
        e(f"v_mov_b32 v{t+12}, 0")
        e(f"s_lshl_b32 s{sTmp}, s{sB}, 7")
        e(f"s_add_u32 s{sTmp}, s{sTmp}, {FLAG_OFF}")
        e(f"buffer_store_dword v{t+12}, v{t+11}, {srd(rWS)}, s{sTmp} offen sc1", tag="clr")
        e(f"s_and_b32 s{sTmp}, s{sR}, 1")
        e(f"s_xor_b32 s{sTmp}, s{sTmp}, s{sWv}")
        e(f"s_mul_i32 s{sWp1}, s{sTmp}, {64 * 3584}")
        e(f"s_lshl_b32 s{sTmp}, s{sH}, 7")
        e(f"s_add_u32 s{sWp1}, s{sWp1}, s{sTmp}")
        e(f"s_lshr_b32 s{sTmp}, s{sR}, 1")
        e(f"s_mul_i32 s{sTmp}, s{sTmp}, {32 * 3584}")
        e(f"s_sub_u32 s{sWp1b}, s{sWp1}, s{sTmp}")
        e(f"s_add_u32 s{sWp1b}, s{sWp1b}, {32 * 3584}")
        e(f"s_add_u32 s{sWp1}, s{sWp1}, s{sTmp}")
        e(f"s_mul_i32 s{sKVst}, s{sH}, {KV_H}")
        e(f"s_lshl_b32 s{sTmp}, s{sJ}, 2")
        e(f"s_add_u32 s{sTmp}, s{sTmp}, s{sWv}")
        e(f"s_mul_i32 s{sTmp}, s{sTmp}, {KV_T}")
        e(f"s_add_u32 s{sKVst}, s{sKVst}, s{sTmp}")
        e(f"s_lshr_b32 s{sTmp}, s{sR}, 1")
        e(f"s_lshl_b32 s{sTmp2}, s{sTmp}, 13")
        e(f"s_add_u32 s{sKa}, s{sKVst}, s{sTmp2}")
        e(f"s_sub_u32 s{sKb}, s{sKVst}, s{sTmp2}")
        e(f"s_lshl_b32 s{sTmp2}, s{sTmp}, 10")
        e(f"s_add_u32 s{sVa}, s{sKVst}, s{sTmp2}")
        e(f"s_sub_u32 s{sVb}, s{sKVst}, s{sTmp2}")
        e(f"s_lshl_b32 s{sTmp}, s{sJ}, 3")
        e(f"s_add_u32 s{sRT[0]}, s{sTmp}, s{sWv}")
        e(f"s_sub_u32 s{sRT[1]}, s{sTmp}, s{sWv}")
        e(f"s_add_u32 s{sRT[1]}, s{sRT[1]}, 7")
        e(f"s_sub_u32 s{sRT[2]}, 127, s{sRT[1]}")
        e(f"s_sub_u32 s{sRT[3]}, 127, s{sRT[0]}")
        for i in range(4):
            e(f"s_lshr_b32 s{sTmp}, s{sRT[i]}, 2")
            e(f"s_mul_i32 s{sAct[i]}, s{sTmp}, {ACT_RG}")
            e(f"s_and_b32 s{sTmp}, s{sRT[i]}, 3")
            e(f"s_lshl_b32 s{sTmp}, s{sTmp}, 10")
            e(f"s_add_u32 s{sAct[i]}, s{sAct[i]}, s{sTmp}")
            e(f"s_add_u32 s{sAct[i]}, s{sAct[i]}, {ACT_OFF}")
            e(f"s_mul_i32 s{sRT[i]}, s{sRT[i]}, {XN_RT}")
        e(f"s_mov_b32 s{sSC}, {f32(SCALE)}")
        e(f"s_mov_b32 s{sL2E}, {f32(LOG2E)}")
        e(f"s_mov_b32 s{sFb}, 0")
        e(f"v_and_b32 v{t+11}, 15, v{t+1}")
        e(f"v_lshrrev_b32 v{t+12}, 1, v{t+11}")
        e(f"v_xor_b32 v{t+12}, v{t+12}, v{t+7}")
        e(f"v_lshlrev_b32 v{t+12}, 4, v{t+12}")
        e(f"v_lshl_add_u32 v{t+12}, v{t+11}, 7, v{t+12}")
        e(f"v_xor_b32 v{t+13}, 64, v{t+12}")
        e(f"s_add_u32 s{sTmp}, s{sM0c}, {CST}")
        e(f"v_add_u32 v{vCR[0]}, s{sTmp}, v{t+12}")
        e(f"v_add_u32 v{vCR[1]}, s{sTmp}, v{t+13}")
        e(f"v_add_u32 v{t+14}, s{sM0w}, v{t+12}")
        e(f"v_add_u32 v{t+15}, s{sM0w}, v{t+13}")
        e(f"v_bfe_u32 v{t+12}, v{t+1}, 2, 3")
        e(f"v_lshlrev_b32 v{t+13}, 7, v{t+12}")
        e(f"v_lshl_add_u32 v{t+13}, v{t+3}, 11, v{t+13}")
        e(f"v_and_b32 v{t+11}, 3, v{t+1}")
        e(f"v_lshl_add_u32 v{t+13}, v{t+11}, 3, v{t+13}")
        e(f"v_lshrrev_b32 v{t+12}, 1, v{t+12}")
        e(f"v_lshl_add_u32 v{vWRa[0]}, v{t+12}, 5, v{t+13}")
        for c in range(1, 4):
            e(f"v_xor_b32 v{vWRa[c]}, {c * 32}, v{vWRa[0]}")
        for c in range(4):
            e(f"v_add_u32 v{vWRb[c]}, {SLOT[0]}, v{vWRa[c]}")
        e(f"v_lshrrev_b32 v{t+12}, 4, v{t+2}")
        e(f"v_lshlrev_b32 v{t+12}, 13, v{t+12}")
        e(f"v_and_b32 v{t+11}, 15, v{t+2}")
        e(f"v_lshl_add_u32 v{t+12}, v{t+11}, 7, v{t+12}")
        e(f"v_lshl_add_u32 v{t+12}, v{t+3}, 4, v{t+12}")
        e(f"s_lshl_b32 s{sTmp}, s{sWv}, 5")
        e(f"v_add_u32 v{t+12}, s{sTmp}, v{t+12}")
        e(f"v_lshlrev_b32 v{t+13}, 4, v{t+6}")
        e(f"v_lshl_add_u32 v{t+13}, v{t+5}, 8, v{t+13}")
        e(f"v_add_u32 v{t+11}, s{sM0w}, v{vL16}")
        F = X + 8
        D = X + 24
        a, b2 = X + 40, X + 41
        ps()
        e(W(vm=True))
        ps()
        for i in range(8):
            e(f"v_lshlrev_b32 v{F+2*i}, 16, v{X+i}")
            e(f"v_and_b32 v{F+2*i+1}, 0xffff0000, v{X+i}")

        def rowsum(src):
            for i in range(8):
                e(f"v_add_f32 v{X+44+i}, v{src+2*i}, v{src+2*i+1}")
            for i in range(4):
                e(f"v_add_f32 v{X+44+i}, v{X+44+i}, v{X+48+i}")
            e(f"v_add_f32 v{X+44}, v{X+44}, v{X+46}")
            e(f"v_add_f32 v{X+45}, v{X+45}, v{X+47}")
            e(f"v_add_f32 v{a}, v{X+44}, v{X+45}")
            for m in ("quad_perm:[1,0,3,2]", "quad_perm:[2,3,0,1]", "row_half_mirror", "row_mirror"):
                e("s_nop 1")
                e(f"v_add_f32_dpp v{a}, v{a}, v{a} {m} row_mask:0xf bank_mask:0xf")
            e(f"v_mov_b32 v{b2}, v{a}")
            e("s_nop 1")
            e(f"v_permlane16_swap_b32 v{a}, v{b2}")
            e(f"v_add_f32 v{a}, v{a}, v{b2}")
            e(f"v_mul_f32 v{a}, {f32(1 / 512)}, v{a}")

        def rnd(r):
            e(f"v_cvt_pk_bf16_f32 v{r}, v{r}, v{r}")
            e(f"v_and_b32 v{r}, 0xffff0000, v{r}")
        rowsum(F)
        mean = X + 42
        e(f"v_mov_b32 v{mean}, v{a}")
        for i in range(16):
            e(f"v_sub_f32 v{D+i}, v{F+i}, v{a}")
        for i in range(16):
            e(f"v_mul_f32 v{D+i}, v{D+i}, v{D+i}")
        rowsum(D)
        rnd(a)
        rnd(mean)
        e(f"v_add_f32 v{a}, {f32(1e-5)}, v{a}")
        rnd(a)
        e(f"v_sqrt_f32 v{a}, v{a}")
        for i in range(16):
            e(f"v_sub_f32 v{F+i}, v{F+i}, v{mean}")
        rnd(a)
        e(f"v_rcp_f32 v{a}, v{a}")
        for i in range(8):
            e(f"v_cvt_pk_bf16_f32 v{X+i}, v{F+2*i}, v{F+2*i+1}")
        for i in range(8):
            e(f"v_lshlrev_b32 v{F+2*i}, 16, v{X+i}")
            e(f"v_and_b32 v{F+2*i+1}, 0xffff0000, v{X+i}")
        for i in range(16):
            e(f"v_mul_f32 v{F+i}, v{F+i}, v{a}")
        for i in range(8):
            e(f"v_cvt_pk_bf16_f32 v{X+i}, v{F+2*i}, v{F+2*i+1}")
        body = p.ops[mark:]
        del p.ops[mark:]
        groups = []
        for f in later:
            cur = []
            for o in self.pad_m0(f()):
                cur.append(o)
                if o.kind == "dma":
                    groups.append(cur)
                    cur = []
        quick = self.a.quick
        step = len(body) / (len(groups) - quick + 1)
        gi = 0
        for k, o in enumerate(body):
            while gi < len(groups) and k >= (gi - quick + 1) * step and ("s", "scc") not in o.reads:
                p.ops += groups[gi]
                gi += 1
            p.ops.append(o)
        assert gi == len(groups)
        ps()
        e(f"ds_write_b128 v{t+12}, {vr(X)} offset:{SLOT[1]}", lds_wr=(("X", 0), "ln", True))
        e(f"ds_write_b128 v{t+12}, {vr(X+4)} offset:{SLOT[1] + 16384}", lds_wr=(("X", 0), "ln", True))
        e(f"s_lshr_b32 s{sTmp}, s{sB}, 1")
        e(f"s_mul_i32 s{sTmp}, s{sTmp}, {XN_RT}")
        e(f"s_and_b32 s{sTmp2}, s{sB}, 1")
        e(f"s_lshl_b32 s{sTmp2}, s{sTmp2}, 7")
        e(f"s_add_u32 s{sTmp}, s{sTmp}, s{sTmp2}")
        e(f"s_lshl_b32 s{sTmp2}, s{sWv}, 12")
        e(f"s_add_u32 s{sTmp}, s{sTmp}, s{sTmp2}")
        e(W(lg=True))
        e("s_barrier")
        ps()
        e(f"ds_read_b128 {vr(X)}, v{t+11} offset:{SLOT[1]}", lds_rd=(("X", 0), "ln", True))
        e(f"ds_read_b128 {vr(X+4)}, v{t+11} offset:{SLOT[1] + 1024}", lds_rd=(("X", 0), "ln", True))
        e(W(lg=True))
        e(f"buffer_store_dwordx4 {vr(X)}, v{t+13}, {srd(rWS)}, s{sTmp} offen sc1")
        e(f"buffer_store_dwordx4 {vr(X+4)}, v{t+13}, {srd(rWS)}, s{sTmp} offen offset:2048 sc1", tag="xn")
        for o in self.pad_m0(self.w_dma(1, 0) + self.c_dma(4)):
            e(o)
        for o in self.stamp_ops():
            e(o)
        e(W(vm=True))
        e("s_barrier")
        for o in self.stamp_ops():
            e(o)
        for o in self.w_reads(0) + self.c_reads(0):
            e(o)
        e(W(lg=True))
        for o in self.c_reads(1) + self.c_reads(2) + self.c_reads(3):
            e(o)
        e(W(lg=True))
        return p

    def acc(self, n, c, rt):
        if n < 10:
            return B0 + 16 * c + 4 * rt
        return (B1 if c % 2 == 0 else B2) + 16 * (c >> 1) + 4 * rt

    def proj(self):
        S = Seg("proj")
        BIASR, BIAS = T0, T0 + 8
        for G in range(14 * 8):
            n, gi = G >> 3, G & 7
            if n in (8, 9):
                kq, c = 2 * (n - 8) + (gi >> 2), gi & 3
            else:
                kq, c = (n % 4 if n < 8 else n - 10), gi
            for rt in range(4):
                d = vr(self.acc(n, c, rt))
                for s in range(4):
                    w = vr(WF + 16 * (G & 1) + 4 * s)
                    x = ar(64 * kq + 16 * rt + 4 * s)
                    cc = d
                    if kq == 0 and s == 0:
                        cc = vr(BIAS + 4 * (c & 1)) if n == 8 else "0"
                    if 4 <= n < 8:
                        S.mfma(f"{MF} {d}, {x}, {w}, {cc}")
                    else:
                        S.mfma(f"{MF} {d}, {w}, {x}, {cc}")
        NG = 14 * 8
        RG = [0, 1, 2, 4, 5, 6, 8, 9]
        VG = (3, 7, 11, 14)
        for G in range(NG - 1):
            for i, o in enumerate(self.w_reads(G + 1)):
                S.put(16 * G + RG[i], o)
            if (G + 1) % 8 == 7:
                S.put(16 * G + 15, W(vm=True, lg=True))
                S.put(16 * G + 15, "s_barrier")
                if self.a.finestamps:
                    for o in self.stamp_ops():
                        S.put(16 * G + 15, o)
            else:
                w = W(lg=True)
                if G % 8 == 2:
                    w.vm = 36
                S.put(16 * G + 15, w)
        CR = {4: 2, 5: 4, 6: 5, 7: 6}
        CR.update({u: 2 * (u - 4) for u in range(8, 16)})
        cpos = [16 * G + k for G in range(24) for k in (10, 12, 13)]
        cdone = {}
        ci = 0
        for u in range(4, 16):
            while cpos[ci] < 16 * CR[u]:
                ci += 1
            g = cpos[ci]
            S.put(g, W(vm=True))
            for o in self.c_reads(u):
                S.put(cpos[ci], o)
                cdone[u] = cpos[ci]
                ci += 1
            assert cdone[u] < 128 * (u >> 2), (u, cdone[u])
        bar_gap = lambda n: 16 * (8 * n + 6) + 15
        jobs = []
        jobs.append((0, lambda: self.c_dma(5)))
        jobs.append((1, lambda: self.c_dma(6)))
        jobs.append((2, lambda: self.c_dma(7)))
        for i in range(1, 8):
            jobs.append((3, lambda i=i: self.w_dma(1, i)))
        for u in range(8, 16):
            rel = 16 * (CR[u] - 6)
            if u >= 10:
                rel = max(rel, (cdone[u - 4] + 6) // 16 * 16 + 16)
            jobs.append((max(rel, 4), lambda u=u: self.c_dma(u)))
        for n in range(2, 14):
            for i in range(8):
                G = 8 * (n - 2) - 1 + i
                if n == 2:
                    G = 6 + i // 2
                if n == 3:
                    G = 10 + (3 * i) // 4
                jobs.append((16 * G + 2, lambda n=n, i=i: self.w_dma(n, i)))
        if self.a.wtouch:
            t0, t1 = T0, T0 + 1
            S.flow([f"v_bfe_u32 v{t0}, v{vL16}, 5, 4", f"v_lshlrev_b32 v{t0}, 13, v{t0}", f"v_bfe_u32 v{t1}, v{vL16}, 4, 1",
                    f"v_lshl_add_u32 v{t0}, v{t1}, 7, v{t0}", f"v_bfe_u32 v{t1}, v{vL16}, 4, 4", f"v_mul_u32_u24 v{t1}, 3584, v{t1}"], 16 * 10, 16 * 14)

            def fq():
                s, s2 = self.st(), self.st()
                return [Op(f"s_mov_b32 s{rX}, s{pWQ}"), Op(f"s_mov_b32 s{rX+1}, s{pWQ+1}"), Op(f"s_mov_b32 s{rX+2}, {4*MB}"),
                        Op(f"s_lshl_b32 s{s}, s{sJ}, 2"), Op(f"s_add_u32 s{s}, s{s}, s{sWv}"), Op(f"s_lshl_b32 s{s}, s{s}, 17"),
                        Op(f"s_lshl_b32 s{s2}, s{sH}, 8"), Op(f"s_add_u32 s{s}, s{s}, s{s2}"),
                        Op(f"buffer_load_dword v{T0+2}, v{t0}, {srd(rX)}, s{s} offen{self.a.tld}")]

            def f1():
                s, s2 = self.st(), self.st()
                return [Op(f"s_mov_b32 s{rX}, s{pW1}"), Op(f"s_mov_b32 s{rX+1}, s{pW1+1}"), Op(f"s_min_u32 s{rX+2}, s{rH+2}, {512*3584}"),
                        Op(f"s_lshl_b32 s{s}, s{sJ}, 2"), Op(f"s_add_u32 s{s}, s{s}, s{sWv}"), Op(f"s_mul_i32 s{s}, s{s}, {16*3584}"),
                        Op(f"s_lshl_b32 s{s2}, s{sH}, 7"), Op(f"s_add_u32 s{s}, s{s}, s{s2}"),
                        Op(f"buffer_load_dword v{T0+2}, v{t1}, {srd(rX)}, s{s} offen{self.a.tld}")]

            def fv():
                s, s2 = self.st(), self.st()
                return [Op(f"s_mov_b32 s{rX}, s{pWV}"), Op(f"s_mov_b32 s{rX+1}, s{pWV+1}"), Op(f"s_mov_b32 s{rX+2}, {4*MB}"),
                        Op(f"s_lshl_b32 s{s}, s{sJ}, 2"), Op(f"s_add_u32 s{s}, s{s}, s{sWv}"), Op(f"s_lshl_b32 s{s}, s{s}, 17"),
                        Op(f"s_lshl_b32 s{s2}, s{sH}, 8"), Op(f"s_add_u32 s{s}, s{s}, s{s2}"),
                        Op(f"buffer_load_dword v{T0+2}, v{t0}, {srd(rX)}, s{s} offen{self.a.tld}")]
            jobs.append((16 * 19 + 8, fv))
            jobs.append((16 * 22 + 8, f1))
            jobs.append((16 * 25 + 8, fq))
        S.flow([f"s_and_b32 s{sTmp}, s{sB}, 3", f"s_lshl_b32 s{sTmp}, s{sTmp}, 6", f"v_mov_b32 v{vD}, 1"], 64, bar_gap(0))
        jobs.append((bar_gap(0) + 13, lambda: [Op(f"buffer_atomic_add v{vD}, v{vSel0}, {srd(rDBG)}, s{sTmp} offen sc1",
                                                  needs=[("xn", True), ("clr", True)])]))
        for u in range(4):
            for rt in range(4):
                k = 4 * u + rt
                rel = max(16 * (32 + 2 * u) + 16, 16 * 32 + 24 + k * 22)

                def f(u=u, rt=rt):
                    s = self.st()
                    return [Op(f"s_add_u32 s{s}, s{sKb if rt >> 1 else sKa}, {K_OFF + rt * 4096}"),
                            Op(f"buffer_store_dwordx4 {vr(B2 + 16*u + 4*rt)}, v{vL16}, {srd(rWS)}, s{s} offen offset:{u*1024}{self.a.st}", tag="kst")]
                jobs.append((rel, f))
        for dt in range(8):
            for kg in range(2):
                k = 2 * dt + kg
                rel = max(16 * (56 + dt) + 40, 16 * 60 + 8 + k * 20)

                def f(dt=dt, kg=kg):
                    s = self.st()
                    return [Op(f"s_add_u32 s{s}, s{sVb if kg else sVa}, {V_OFF + (dt >> 1) * 4096}"),
                            Op(f"buffer_store_dwordx4 {vr(B2 + 8*dt + 4*kg)}, v{vL16}, {srd(rWS)}, s{s} offen offset:{(dt & 1)*2048 + kg*1024}{self.a.st}", tag="vst")]
                jobs.append((rel, f))
        S.flow([f"v_bfe_u32 v{vA}, v{vL16}, 4, 2", f"v_lshlrev_b32 v{vA}, 6, v{vA}"], 16 * 24, 16 * 30)
        ld, chk, br = self.poll("xn", f"buffer_load_dword v{vP}, v{vA}, {srd(rDBG)}, 0 offen sc1", f"v_cmp_gt_u32 vcc, 64, v{vP}")
        jobs.append((16 * 34 + 8, lambda: [ld]))
        self.put_check(S, 16 * 39 + 12, chk, br)
        vX = [4, 5, 6, 7]
        S.flow([f"s_mul_i32 s{sTmp2}, s{sR}, {(1 << 11) + (1 << 9)}", f"s_and_b32 s{sTmp2}, s{sTmp2}, {3 << 10}",
                f"v_xor_b32 v{vX[0]}, s{sTmp2}, v{vL16}"] + [f"v_xor_b32 v{vX[k]}, {k << 10}, v{vX[0]}" for k in range(1, 4)], 16 * 33, 16 * 38)
        for kq in range(4):
            for k in range(4):
                for rt in range(4):
                    def f(kq=kq, rt=rt, k=k):
                        ops = [Op(f"buffer_load_dwordx4 {ar(64*kq + 16*rt + 4*k)}, v{vX[k]}, {srd(rWS)}, s{sRT[rt]} offen{self.a.ld}")]
                        if k == 3 and kq < 3:
                            ops.append(Op(f"s_add_u32 s{sRT[rt]}, s{sRT[rt]}, 4096"))
                        return ops
                    jobs.append((128 * (5 + kq) + 8 * (4 * k + rt), f))
        for kq in range(4):
            g = 16 * (64 + 4 * kq) - 1
            w = S.nv[g][0]
            assert w.kind == "wait"
            w.vm = 63
        S.flow([f"s_mov_b32 s{rX}, s{pB1}", f"s_mov_b32 s{rX+1}, s{pB1+1}", f"s_min_u32 s{rX+2}, s{rH+2}, 3584",
                f"s_lshl_b32 s{sTmp2}, s{sH}, 7", f"v_lshrrev_b32 v{vA}, 8, v{vL16}", f"v_lshlrev_b32 v{vA}, 3, v{vA}"],
               16 * 44, 16 * 47)
        for c in range(4):
            jobs.append((16 * 49 + 8 + 16 * c, lambda c=c: [Op(f"buffer_load_dwordx2 {vr(BIASR + 2*c, 2)}, v{vA}, {srd(rX)}, s{sTmp2} offen offset:{32*c}")]))
        jobs.append((bar_gap(7) + 9, lambda: [Op(f"buffer_store_dword v{vD}, v{vSel0}, {srd(rWS)}, s{sFlagKV} offen sc1", needs=[("kst", True)])]))
        self.extra_jobs(S, jobs, bar_gap)
        HREL = [16 * 84 + 8 + k * 52 for k in range(8)]
        for u in range(2):
            for rt in range(4):
                def f(u=u, rt=rt):
                    s = self.st()
                    return [Op(f"s_lshl_b32 s{s}, s{sH}, 13"), Op(f"s_add_u32 s{s}, s{s}, s{sAct[rt]}"),
                            Op(f"s_add_u32 s{s}, s{s}, {ACT_HOFF + u * 4096}"),
                            Op(f"buffer_store_dwordx4 {vr(B0 + 32*u + 4*rt)}, v{vL16}, {srd(rH)}, s{s} offen{self.a.st}", tag="hst")]
                jobs.append((HREL[4 * u + rt], f))
        jobs.sort(key=lambda x: x[0])
        g = 0
        for rel, f in jobs:
            ops = f()
            nsalu = sum(1 for o in ops if o.kind in ("salu", "wait"))
            first_mem = next(i for i, o in enumerate(ops) if o.kind in VM)
            rels = [max(g, rel - 10) if (i < first_mem and ops[i].kind == "salu") else max(g, rel) for i in range(len(ops))]
            out = S.flow(ops, g, S.n() - 1, rel=rels, allow=lambda gg, op: (gg % 16 in VG) == (op.kind in VM) or gg >= 16 * 111)
            g = out[-1]
            if "a[252:255]" in ops[0].text:
                assert out[0] < 16 * 75
            if out[-1] > rel + 40 and self.a.verbose:
                print(f"  job slipped: rel {rel} -> {out[-1]}: {ops[-1].text}")
        for u in range(4):
            for rt in range(4):
                a0, a1 = self.acc(3, 2 * u, rt), self.acc(3, 2 * u + 1, rt)
                rel0 = 16 * (24 + 2 * u) + 4 * rt + 3 + 3
                rel1 = rel0 + 16
                dl = 16 * (32 + 2 * u) + 4 * rt - 2
                d = B2 + 16 * u + 4 * rt
                for (a, rel, o) in ((a0, rel0, 0), (a1, rel1, 2)):
                    ops = [f"v_mul_f32 v{a+i}, s{sSC}, v{a+i}" for i in range(4)]
                    ops += [f"v_cvt_pk_bf16_f32 v{d+o}, v{a}, v{a+1}", f"v_cvt_pk_bf16_f32 v{d+o+1}, v{a+2}, v{a+3}"]
                    S.flow(ops, rel, dl)
        for dt in range(8):
            for rt in range(4):
                a = self.acc(7, dt, rt)
                rel = 16 * (56 + dt) + 4 * rt + 3 + 3
                d = B2 + 8 * dt + 2 * rt
                S.flow([f"v_cvt_pk_bf16_f32 v{d}, v{a}, v{a+1}", f"v_cvt_pk_bf16_f32 v{d+1}, v{a+2}, v{a+3}"], rel, 16 * (56 + dt) + 38)
        for c in range(4):
            b = BIAS + 4 * (c & 1)
            ops = []
            for i in range(2):
                ops += [f"v_lshlrev_b32 v{b+2*i}, 16, v{BIASR+2*c+i}", f"v_and_b32 v{b+2*i+1}, 0xffff0000, v{BIASR+2*c+i}"]
            S.flow(ops, 16 * (63 + c), 16 * (64 + c) - 2)
        qtail = []
        for u in range(4):
            for rt in range(4):
                a0, a1 = self.acc(13, 2 * u, rt), self.acc(13, 2 * u + 1, rt)
                rel0 = 16 * (104 + 2 * u) + 4 * rt + 3 + 3
                S.flow([f"v_cvt_pk_bf16_f32 v{a0}, v{a0}, v{a0+1}", f"v_cvt_pk_bf16_f32 v{a0+1}, v{a0+2}, v{a0+3}"], rel0, rel0 + 14)
                ops = [f"v_cvt_pk_bf16_f32 v{a0+2}, v{a1}, v{a1+1}", f"v_cvt_pk_bf16_f32 v{a0+3}, v{a1+2}, v{a1+3}"]
                if rel0 + 16 < S.n():
                    S.flow(ops, rel0 + 16, min(S.n() - 1, rel0 + 30))
                else:
                    qtail += ops
        cur = 0
        k = 0
        for u in range(2):
            for rt in range(4):
                a0 = self.acc(9, 2 * u, rt)
                for half in range(2):
                    a = self.acc(9, 2 * u + half, rt)
                    rel = 16 * (76 + 2 * u + half) + 4 * rt + 3 + 3
                    t = T0 + 8 * (k & 1) if False else T0
                    E, U = T0, T0 + 4
                    ops = [f"v_mul_f32 v{E+i}, s{sL2E}, v{a+i}" for i in range(4)]
                    ops += [f"v_exp_f32 v{E+i}, v{E+i}" for i in range(4)]
                    ops += [f"v_add_f32 v{U+i}, 2.0, v{E+i}" for i in range(4)]
                    ops += [f"v_fma_f32 v{E+i}, v{E+i}, v{U+i}, 2.0" for i in range(4)]
                    ops += [f"v_rcp_f32 v{E+i}, v{E+i}" for i in range(4)]
                    ops += [f"v_fma_f32 v{E+i}, v{E+i}, -2.0, 1.0" for i in range(4)]
                    ops += [f"v_mul_f32 v{E+i}, v{E+i}, v{a+i}" for i in range(4)]
                    ops += [f"v_cvt_pk_bf16_f32 v{a0+2*half}, v{E}, v{E+1}", f"v_cvt_pk_bf16_f32 v{a0+2*half+1}, v{E+2}, v{E+3}"]
                    dl = HREL[4 * u + rt] - 1 - (26 if half == 0 else 0)
                    out = S.flow(ops, max(cur, rel), dl)
                    cur = out[-1]
                    k += 1
        S.auto_lg_waits(lat=6, verbose=True)
        S.post += [Op("s_nop 7")] + [Op(x) for x in qtail]
        return S

    def put_check(self, S, g, chk, br):
        while S.used(g) > 1 or S.used(g + 1) > 1 or g % 16 != 12:
            g += 1
        S.put(g, chk[0])
        S.put(g, chk[1])
        S.put(g + 1, br[0])
        S.put(g + 1, br[1])
        return g + 1


    def kv_dma(self, which, xr, creg, nreg, first=False):
        ring = KRING if which == "K" else VRING
        base = creg if (xr >> 1) % 2 == 0 else nreg
        so, r = (sKo, rK) if which == "K" else (sVo, rV)

        def wr(c):
            X = 2 * c["i"] + xr
            al = [(("C", k), (which, X), True) for k in range(4)] if which == "K" else [(("W", 1 + ((X & 3) >> 1)), (which, X), True)]
            return [((which, X & 3), (which, X), True)] + (al if X < 4 else [])
        ops = [Op(f"s_add_u32 m0, s{base}, {ring + (xr & 1) * 16384}")]
        for k in range(4):
            ops.append(Op(f"buffer_load_dwordx4 v{vL16}, {srd(r)}, s{so} offen offset:{k * 1024}{self.a.ld} lds", lds_wr=wr))
        ops.append(Op(f"s_add_u32 s{so}, s{so}, {KV_T}"))
        self.m0 = None
        return ops

    def k_read(self, xr, kt, u, names):
        a = names["Kc"] if (xr >> 1) % 2 == 0 else names["Kn"]
        return Op(f"ds_read_b128 {ar(aK + 16 * (kt & 1) + 4 * u)}, v{a} offset:{(xr & 1) * 16384 + kt * 4096 + u * 1024}",
                  lds_rd=lambda c: (("K", (2 * c["i"] + xr) & 3), ("K", 2 * c["i"] + xr), True))

    def v_read(self, xr, dt, kg, names):
        a = names["Vc"] if (xr >> 1) % 2 == 0 else names["Vn"]
        return Op(f"ds_read_b128 {ar(aV + 8 * (dt & 3) + 4 * kg)}, v{a} offset:{(xr & 1) * 16384 + dt * 2048 + kg * 1024}",
                  lds_rd=lambda c: (("V", (2 * c["i"] + xr) & 3), ("V", 2 * c["i"] + xr), True))

    def mask_ops(self, dst, z, kt, neg):
        ng = neg if isinstance(neg, list) else [neg] * 4
        m = ["vcc", f"s[{sMA}:{sMA+1}]", f"s[{sMB}:{sMB+1}]", "vcc"]
        cmp = lambda r: f"v_cmp_le_i32 {m[r]}, {16 * kt + r}, v{z}"
        cnd = lambda r: f"v_cndmask_b32 v{dst + r}, v{NINF}, v{ng[r]}, {m[r]}"
        return [cmp(0), cmp(1), cmp(2), cnd(0), cmp(3), cnd(1), cnd(2), cnd(3)]

    def att_regs_init(self):
        return [f"v_add_u32 v{vKc}, {KRING}, v{vL16}", f"v_add_u32 v{vKn}, {KRING + 32768}, v{vL16}",
                f"v_mov_b32 v{vVc}, v{vL16}", f"v_add_u32 v{vVn}, 32768, v{vL16}"]

    def att_sregs_init(self):
        return [f"s_lshl_b32 s{sMc}, s{sWv}, 12", f"s_add_u32 s{sMn}, s{sMc}, 32768",
                f"s_mov_b32 s{sKo}, s{sMc}", f"s_mov_b32 s{sVo}, s{sMc}", f"s_mov_b64 s[{sBad}:{sBad+1}], 0"]

    def first_k_reads(self):
        nm = dict(Kc=vKc, Kn=vKn, Vc=vVc, Vn=vVn)
        return [self.k_read(0, 0, u, nm) for u in range(4)] + [self.k_read(0, 1, u, nm) for u in range(2)]

    def extra_jobs(self, S, jobs, bar_gap):
        if self.a.upto == "proj":
            return
        ops = [f"s_mul_i32 s{sTmp}, s{sH}, {KV_H}",
               f"s_lshl_b32 s{rK+2}, s{sJ}, 1", f"s_sub_u32 s{rK+2}, 32, s{rK+2}", f"s_mul_i32 s{rK+2}, s{rK+2}, {KV_T}",
               f"s_mov_b32 s{rV+2}, s{rK+2}", f"s_mov_b32 s{rV+3}, 0x20000",
               f"s_add_u32 s{sTmp}, s{sTmp}, {K_OFF}"]
        g = S.flow(ops + self.att_sregs_init()[:4], 16 * 66, 16 * 74)[-1]
        for (r, off) in ((rK, 0), (rV, V_OFF - K_OFF)):
            g += 1
            while S.used(g) > 1:
                g += 1
            if off:
                S.put(g, f"s_add_u32 s{sTmp}, s{sTmp}, {off}")
            S.put(g, f"s_add_u32 s{r}, s{pWS}, s{sTmp}")
            S.put(g, f"s_addc_u32 s{r+1}, s{pWS+1}, 0")
        S.flow(self.att_regs_init(), 16 * 75, 16 * 80)
        S.flow(self.att_sregs_init()[4:], 16 * 100, 16 * 104)
        ops = [
            f"v_bfe_u32 v{Z0}, v{vL16}, 4, 4", f"v_lshrrev_b32 v{Z1}, 8, v{vL16}", f"v_lshlrev_b32 v{Z1}, 2, v{Z1}",
            f"v_sub_u32 v{Z0}, v{Z0}, v{Z1}", f"v_lshlrev_b32 v{Zt}, 4, s{sWv}", f"v_sub_u32 v{Z1}, v{Z0}, v{Zt}",
            f"v_add_u32 v{Z1}, 48, v{Z1}", f"v_add_u32 v{Z0}, v{Z0}, v{Zt}", f"v_mov_b32 v{NINF}, 0xff800000",
            f"v_mov_b32 v{vD}, 2", f"v_bfe_u32 v{vA}, v{vL16}, 4, 3", f"v_lshlrev_b32 v{vA}, 2, v{vA}",
            f"v_lshlrev_b32 v{Zt}, 7, s{sJ}", f"v_add_u32 v{Zt}, v{Zt}, v{Z0}"]
        S.flow(ops, 16 * 69, 16 * 76)
        S.flow([f"v_mov_b32 v{ZERO+i}, 0" for i in range(4)] + [f"v_mov_b32 v{ONES+i}, 0x3f803f80" for i in range(4)], 16 * 111, 16 * 112 - 1)
        jobs.append((bar_gap(10) + 9, lambda: [Op(f"buffer_store_dword v{vD}, v{vSel0}, {srd(rWS)}, s{sFlagKV} offen sc1", needs=[("vst", True)])]))
        ldt = f"buffer_load_dword v{vP}, v{vA}, {srd(rWS)}, s{sPollKV} offen sc1"
        ld, chk, br = self.poll("k", ldt, f"v_cmp_gt_u32 vcc, 1, v{vP}")
        jobs.append((16 * 90 + 8, lambda ld=ld: [ld]))
        g = self.put_check(S, 16 * 95 + 8, chk, br)
        for X in range(3):
            jobs.append((16 * (96 + 2 * X) + 8, lambda X=X: self.kv_dma("K", X, sMc, sMn)))
        ld, chk, br = self.poll("v", ldt, f"v_cmp_gt_u32 vcc, 2, v{vP}")
        jobs.append((16 * 103 + 8, lambda ld=ld: [ld]))
        g = self.put_check(S, 16 * 107 + 8, chk, br)
        for X in range(2):
            jobs.append((16 * (108 + X) + 8, lambda X=X: self.kv_dma("V", X, sMc, sMn)))
        for i, o in enumerate(self.first_k_reads()):
            S.put(16 * 111 + i, o)

    def rowmax_reduce(self):
        ops = []
        for sw in ("v_permlane16_swap_b32", "v_permlane32_swap_b32"):
            ops += [f"v_mov_b32 v{MX+4+t}, v{MX+t}" for t in range(4)]
            ops += [f"{sw} v{MX+t}, v{MX+4+t}" for t in range(4)]
            ops += [f"v_max_f32 v{MX+t}, v{MX+t}, v{MX+4+t}" for t in range(4)]
        return ops

    def prestep(self):
        S = Seg("prestep")
        S.pre.append(W(lg=True))
        for t in range(4):
            for u in range(4):
                S.mfma(f"{MF} {vr(SB+4*t)}, {ar(aK+4*u)}, {vr(Qf(t, u))}, {vr(SB+4*t) if u else 0}")
        for k in range(9):
            S.mfma(f"{MF32} {ar(16*k, 16)}, {vr(ZERO)}, {vr(ZERO)}, 0")
        S.flow(self.mask_ops(SB, Zt, 0, [SB, SB + 1, SB + 2, SB + 3]), 7, 15)
        ops = [f"v_max3_f32 v{MX+t}, v{SB+4*t}, v{SB+4*t+1}, v{SB+4*t+2}" for t in range(4)]
        ops += [f"v_max_f32 v{MX+t}, v{MX+t}, v{SB+4*t+3}" for t in range(4)]
        ops += self.rowmax_reduce()
        S.flow(ops, 17, 24)
        S.flow([f"v_mov_b32 v{vD}, 1"], 0, 6)
        self.p3_setup(S)
        G = Plain("att_go")
        e = G.e
        e("L_att_go:")
        for r in range(4):
            e(f"v_sub_f32 v{NEG3L+r}, 0, v{MX+3}")
        e(f"v_sub_f32 v{NEG0}, 0, v{MX}")
        for r in range(4):
            e(f"v_sub_f32 v{NEG[2]+r}, 0, v{MX+2}")
        rest = [f"v_sub_f32 v{NEG[t]+r}, 0, v{MX+t}" for t in (1, 3) for r in range(4)]
        for u in range(4):
            e(f"{MF} {vr(SB)}, {ar(aK+4*u)}, {vr(Qf(3, u))}, {vr(SB) if u else vr(NEG3L)}")
            e(rest[2 * u])
            e(rest[2 * u + 1])
        for kt in range(4):
            for o in self.mask_ops(BANK + 4 * kt, Zt, kt, NEG0):
                e(o)
        e(f"s_mov_b32 s{sCnt}, s{sJ}")
        if self.a.otouch and self.a.upto == "full":
            e(f"v_and_b32 v{ET}, {31 * 16}, v{vL16}")
            e(f"v_lshlrev_b32 v{ET}, 3, v{ET}")
            e(f"v_min_u32 v{ET+1}, {13 * 128}, v{ET}")
            e(f"s_lshl_b32 s{sTmp}, s{sB}, 2")
            e(f"s_add_u32 s{sTmp}, s{sTmp}, s{sWv}")
            e(f"s_mul_i32 s{sTmp2}, s{sTmp}, 1792")
            e(f"s_lshl_b32 s{sTmp}, s{sTmp}, 12")
        return S, G

    def att_seg(self, name, Trel, qk, pv, bank_tile, look=True, flip=None, dma=True, bar=True, pvfirst=False, lfirst=False, extra=None):
        S = Seg(name)
        par = Trel & 1
        names = dict(Kc=vKc, Kn=vKn, Vc=vVc, Vn=vVn)
        if flip == 2:
            names = dict(Kc=vKn, Kn=vKc, Vc=vVn, Vn=vVc)
        na = len(qk)
        chains = [(kt, t) for kt in range(4) for t in qk]
        n = len(chains)
        dts = ([8] + list(range(8))) if lfirst else list(range(9))
        pvc = [(dt, t) for dt in dts for t in pv]
        M = len(pvc)
        nmu = max(n, 1)
        cstart, cend = {0: -100}, {0: -100}
        pstart, pend = {}, {}

        def qk_chain(i):
            if i == n:
                kt, t, c = 0, 3, NEG3L
            else:
                kt, t = chains[i]
                c = BANK + 4 * kt if t == bank_tile else NEG[t]
            d = SB + 4 * (i % 4)
            cstart[i] = S.n()
            for u in range(4):
                S.mfma(f"{MF} {vr(d)}, {ar(aK + 16 * (kt & 1) + 4 * u)}, {vr(Qf(t, u))}, {vr(d) if u else vr(c)}")
            cend[i] = S.n() - 1

        def pv_share(mu):
            for k in range(mu * M // nmu, (mu + 1) * M // nmu):
                dt, t = pvc[k]
                pstart.setdefault(dt, S.n())
                for kg in range(2):
                    if dt == 8:
                        d, a = ar(aL + 4 * t), vr(ONES)
                    else:
                        d, a = ar(aO + 32 * t + 4 * dt), ar(aV + 8 * (dt & 3) + 4 * kg)
                    S.mfma(f"{MF} {d}, {a}, {vr(Pf(1 - par, t, kg))}, {d}")
                pend[dt] = S.n() - 1
        for mu in range(nmu):
            if pvfirst:
                pv_share(mu)
            if n and (mu + 1 < n or look):
                qk_chain(mu + 1)
            if not pvfirst:
                pv_share(mu)
        N = S.n()
        T = []
        info = dict(cstart=cstart, cend=cend, pstart=pstart, pend=pend, N=N)
        tail = []
        for i in range(n):
            kt, t = chains[i]
            d = SB + 4 * (i % 4)
            rel = cend[i] + 3
            dl = cstart[i + 4] - 1 if (i + 4) in cstart else N - 1
            p = Pf(par, t, kt >> 1) + 2 * (kt & 1)
            if rel + 5 > N - 1:
                tail += ["s_nop 7"] + [f"v_exp_f32 v{d+r}, v{d+r}" for r in range(4)] + [f"v_cvt_pk_bf16_f32 v{p+h}, v{d+2*h}, v{d+2*h+1}" for h in range(2)]
                continue
            ex = []
            for r in range(4):
                ex.append(Task(f"v_exp_f32 v{d+r}, v{d+r}", rel, dl, [(ex[-1], 0)] if ex else []))
            T += ex
            for h in range(2):
                T.append(Task(f"v_cvt_pk_bf16_f32 v{p+h}, v{d+2*h}, v{d+2*h+1}", rel, dl, [(ex[2 * h + 1], 1)]))
        bg = None
        if bar:
            bg = cstart[3 * na] + 2
            S.put(bg, W(vm=True, lg=True))
            S.put(bg + 1, "s_barrier")
            bg += 1
        info["bar"] = bg
        lastk = None
        if n:
            for kt in range(1, 4):
                first = cstart[kt * na]
                free = cend[(kt - 1) * na - 1] if kt >= 2 else 0
                for u in range(2 if kt == 1 else 0, 4):
                    dl = first + u - LAT
                    if kt == 3 and bar:
                        dl = min(dl, bg - 1 - 5)
                    lastk = Task(self.k_read(Trel, kt, u, names), max(0, free - 3 + u), dl)
                    T.append(lastk)
            if look:
                for u in range(4):
                    T.append(Task(self.k_read(Trel + 1, 0, u, names), bg + 1, cstart[n] + u - LAT))
                for u in range(2):
                    T.append(Task(self.k_read(Trel + 1, 1, u, names), max(bg + 1, cend[n - 1] - 3 + u), N - 2 + u))
        if pv:
            for dt in range(1, 8):
                free = pend[dt - 4] if dt >= 4 else 0
                for kg in range(2):
                    T.append(Task(self.v_read(Trel - 1, dt, kg, names), free, pstart[dt] + kg - LAT))
        v0 = []
        if n:
            free = max(bg + 1, pend[4] if pv else 0)
            for kg in range(2):
                v0.append(Task(self.v_read(Trel, 0, kg, names), free, N + 4 + kg - LAT))
            T += v0
        if dma:
            prev = None
            for which, xr, lo, hi in (("K", Trel + 3, 1, bg - 2), ("V", Trel + 2, bg + 1, N - 2)):
                ops = self.kv_dma(which, xr, sMc, sMn)
                step = (hi - lo + 1) / 4
                m = Task(ops[0], lo - 1 if which == "K" else 0, int(lo + step - 2), [(prev, 0)] if prev else [])
                T.append(m)
                prev = m
                for k in range(4):
                    d = Task(ops[1 + k], int(lo + k * step), int(lo + (k + 1) * step - 1), [(prev, 1 if k == 0 else 3)])
                    T.append(d)
                    prev = d
                T.append(Task(ops[5], 0, N - 2, [(prev, 0)]))
                if which == "V":
                    info["vm0"] = m
        if flip == 1:
            T.append(Task(f"v_xor_b32 v{vVn}, 0x8000, v{vVn}", 0, N - 1))
            T.append(Task(f"v_xor_b32 v{vKc}, 0x8000, v{vKc}", bg, N - 1))
        if flip == 2:
            T.append(Task(f"v_xor_b32 v{vKn}, 0x8000, v{vKn}", 0, N - 1))
            T.append(Task(f"v_xor_b32 v{vVc}, 0x8000, v{vVc}", 0, bg))
            T.append(Task(f"s_xor_b32 s{sMn}, s{sMn}, 0x8000", 0, N - 2))
            T.append(Task(f"s_xor_b32 s{sMc}, s{sMc}, 0x8000", 0, N - 2, [(info["vm0"], 0)]))
        if extra:
            extra(S, T, info)
        schedule(S, T)
        inc = [("a", aK + 16 + r) for r in range(8)] + [("a", aV + r) for r in range(8)]
        S.auto_lg_waits(lat=5, incoming=inc, verbose=self.a.verbose)
        S.post += [Op(x) for x in tail]
        return S

    def chain_tasks(self, T, ops, rel, dl, after=None):
        prev = after
        for o in ops:
            t = Task(o, rel, dl, [(prev, 0)] if prev else [])
            T.append(t)
            prev = t
        return prev

    def bad_check(self, e, tiles):
        for k, t in enumerate(tiles):
            e(f"v_accvgpr_read_b32 v{ET+2*k}, a{aL+4*t}")
        e(f"v_add_f32 v{ET+3}, v{ET}, v{ET+2}")
        e(f"v_rcp_f32 v{ET}, v{ET}")
        e(f"v_cmp_ngt_f32 vcc, 0x5f800000, v{ET+3}")
        e(f"v_rcp_f32 v{ET+2}, v{ET+2}")
        e(f"s_or_b64 s[{sBad}:{sBad+1}], s[{sBad}:{sBad+1}], vcc")

    def epilogue(self, e, tiles):
        e(f"s_mul_i32 s{sTmp2}, s{sH}, {ACT_HD}")
        k = 0
        for ti, t in enumerate(tiles):
            e(f"s_add_u32 s{sTmp}, s{sTmp2}, s{sAct[t]}")
            for u in range(4):
                b = ET + 4
                o = ET + 12 + 4 * (k % 3)
                k += 1
                for i in range(8):
                    e(f"v_accvgpr_read_b32 v{b+i}, a{aO + 32*t + 8*u + i}")
                for i in range(4):
                    e(f"v_pk_mul_f32 {vr(b+2*i, 2)}, {vr(b+2*i, 2)}, {vr(ET+2*ti, 2)} op_sel_hi:[1,0]")
                for i in range(4):
                    e(f"v_cvt_pk_bf16_f32 v{o+i}, v{b+2*i}, v{b+2*i+1}")
                e(f"buffer_store_dwordx4 {vr(o)}, v{vL16}, {srd(rWS)}, s{sTmp} offen{self.a.st}", tag="cst")
                if u < 3:
                    e(f"s_add_u32 s{sTmp}, s{sTmp}, 4096")

    def attention(self):
        D, TH, SS, ONE = [3, 2, 1, 0], [3, 2, 1], [3, 2], [3]
        B = {}

        def x_d0(S, T, info):
            T.append(Task(Op(f"buffer_store_dword v{vD}, v{vSel0}, {srd(rWS)}, s{sFlagH} offen sc1", needs=[("hst", True)]), info["bar"] + 1, info["N"] - 1))
            S.put(info["N"] - 1, f"s_cmp_eq_u32 s{sCnt}, 0")
            if self.a.otouch and self.a.upto == "full":
                T.append(Task(f"buffer_load_dword v{ET+2}, v{ET+1}, {srd(rW)}, s{sTmp2} offen", 8, 12))
                T.append(Task(f"buffer_load_dword v{ET+2}, v{ET}, {srd(rX)}, s{sTmp} offen", 18, 22))
        B["D0"] = self.att_seg("D0", 0, D, [], 0, extra=x_d0)
        B["D0"].post += [Op("s_cbranch_scc1 L_three"), Op(".p2align 4"), Op("L_dloop:")]
        B["Da"] = self.att_seg("Da", 1, D, D, 0, flip=1, extra=lambda S, T, i: S.put(i["N"] - 1, f"s_cmp_eq_u32 s{sCnt}, 1"))
        B["Da"].post += [Op("s_cbranch_scc1 L_dmask"), Op("L_dmask_back:")]

        def x_loop(S, T, info):
            T.append(Task(f"s_sub_u32 s{sCnt}, s{sCnt}, 1", 0, info["N"] - 2))
            S.put(info["N"] - 1, f"s_cmp_lg_u32 s{sCnt}, 0")
        B["Db"] = self.att_seg("Db", 2, D, D, 0, flip=2, extra=x_loop)
        B["Db"].post += [Op("s_cbranch_scc1 L_dloop"), Op("L_three:")]
        p = Plain("dmask")
        p.e("L_dmask:")
        for kt in range(4):
            for o in self.mask_ops(BANK + 4 * kt, Z0, kt, NEG0):
                p.e(o)
        p.e("s_branch L_dmask_back")
        self.ool.append(p)
        B["dmask"] = p

        def x_three(S, T, info):
            cs = info["cstart"]
            last = None
            last = self.chain_tasks(T, self.mask_ops(BANK, Z1, 0, NEG[1]), 0, cs[2] - 2, last)
            last = self.chain_tasks(T, [f"v_sub_u32 v{Zu}, 7, s{sJ}".replace("v_sub_u32", "v_sub_u32_e64"), f"v_lshlrev_b32 v{Zu}, 7, v{Zu}",
                                        f"v_add_u32 v{Zt}, v{Zu}, v{Z0}", f"v_add_u32 v{Zu}, v{Zu}, v{Z1}"], 0, cs[5], last)
            for kt in range(1, 4):
                last = self.chain_tasks(T, self.mask_ops(BANK + 4 * kt, Z1, kt, NEG[1]), 0, cs[3 * kt + 2] - 2, last)
            for kt in range(4):
                last = self.chain_tasks(T, self.mask_ops(BANK + 4 * kt, Zt, kt, NEG[2]), cs[3 * kt + 2] + 2, info["N"] - 2, last)
        B["T3"] = self.att_seg("T3", 1, TH, D, 1, flip=1, extra=x_three)

        def x_s3(S, T, info):
            last = self.chain_tasks(T, self.mask_ops(NEG3L, Zu, 0, NEG[3]), 0, info["cstart"][8] - 2)
            if self.a.upto == "full":
                self.p3_table(T, last, info["N"])
            T.append(Task(f"s_sub_u32 s{sCnt}, 7, s{sJ}", 0, info["N"] - 2))
        B["S3"] = self.att_seg("S3", 2, SS, TH, 2, flip=2, extra=x_s3)
        p = Plain("epiA")
        p.e("s_nop 7")
        self.bad_check(p.e, [0, 1])
        self.epilogue(p.e, [0, 1])
        for o in self.stamp_ops():
            p.e(o)
        p.e(f"s_cmp_eq_u32 s{sCnt}, 0")
        p.e("s_cbranch_scc1 L_one")
        p.e(".p2align 4")
        p.e("L_sloop:")
        B["epiA"] = p
        B["Sa"] = self.att_seg("Sa", 1, SS, SS, 2)
        B["Sb"] = self.att_seg("Sb", 2, SS, SS, 2)
        B["Sc"] = self.att_seg("Sc", 3, SS, SS, 2, extra=lambda S, T, i: S.put(i["N"] - 1, f"s_cmp_eq_u32 s{sCnt}, 1"))
        B["Sc"].post += [Op("s_cbranch_scc1 L_smask"), Op("L_smask_back:")]
        B["Sd"] = self.att_seg("Sd", 4, SS, SS, 2, extra=x_loop)
        B["Sd"].post += [Op("s_cbranch_scc1 L_sloop"), Op("L_one:")]
        p = Plain("smask")
        p.e("L_smask:")
        for kt in range(4):
            for o in self.mask_ops(BANK + 4 * kt, Z0, kt, NEG[2]):
                p.e(o)
        for o in self.mask_ops(NEG3L, Z1, 0, NEG[3]):
            p.e(o)
        p.e("s_branch L_smask_back")
        self.ool.append(p)
        B["smask"] = p

        def x_one(S, T, info):
            last = None
            for kt in range(1, 4):
                last = self.chain_tasks(T, self.mask_ops(BANK + 4 * kt, Z1, kt, NEG[3]), 0, info["cstart"][kt] - 2, last)
            self.one_extra(S, T, info, last)
        B["One"] = self.att_seg("One", 1, ONE, SS, 3, look=False, dma=False, pvfirst=True, extra=x_one)
        B["Dr"] = self.att_seg("Dr", 2, [], ONE, None, look=False, dma=False, bar=False, lfirst=True)
        B["Dr"].pre.insert(0, Op("s_nop 1"))
        p = Plain("check")
        e = p.e
        self.bad_check(e, [2, 3])
        e(f"s_cmp_lg_u64 s[{sBad}:{sBad+1}], 0")
        e(f"s_cselect_b32 s{sTmp}, 1, 0")
        e(f"s_andn2_b32 s{sTmp}, s{sTmp}, s{sFb}")
        e(f"s_lshl_b32 s{sTmp2}, s{sWv}, 2")
        e(f"s_add_u32 s{sTmp2}, s{sTmp2}, {SPARE}")
        e(f"v_mov_b32 v{ET+4}, s{sTmp2}")
        e(f"v_mov_b32 v{ET+5}, s{sTmp}")
        e(f"v_mov_b32 v{ET+6}, {SPARE}")
        e(f"ds_write_b32 v{ET+4}, v{ET+5}", lds_wr=lambda c: [(("F", 0), ("bad", c.get("fb")), True), (("W", 0), "bad", True)])
        e("s_waitcnt lgkmcnt(0)")
        e("s_barrier")
        e(f"ds_read_b128 {vr(ET+8)}, v{ET+6}", lds_rd=lambda c: (("F", 0), ("bad", c.get("fb")), True))
        B["check"] = p
        p = Plain("check2")
        e = p.e
        e(W(lg=True))
        e(f"v_or3_b32 v{ET+8}, v{ET+8}, v{ET+9}, v{ET+10}")
        e(f"v_or_b32 v{ET+8}, v{ET+8}, v{ET+11}")
        e(f"v_cmp_ne_u32 vcc, 0, v{ET+8}")
        e("s_nop 1")
        e("s_cbranch_vccnz L_fallback")
        B["check2"] = p
        B["fb"] = self.fallback()
        return B

    def fallback(self):
        p0, p1, p2 = Plain("fb0"), Plain("fb1"), Plain("fb2")
        e = p0.e
        e("L_fallback:")
        e(f"s_mov_b32 s{sFb}, 1")
        e("s_waitcnt vmcnt(0) lgkmcnt(0)")
        e("s_barrier")
        ZG = BANK
        e(f"s_lshl_b32 s{sTmp}, s{sJ}, 7")
        e(f"s_sub_u32 s{sTmp2}, {15 * 128}, s{sTmp}")
        e(f"v_add_u32 v{ZG}, s{sTmp}, v{Z0}")
        e(f"v_add_u32 v{ZG+1}, s{sTmp}, v{Z1}")
        e(f"v_add_u32 v{ZG+2}, s{sTmp2}, v{Z0}")
        e(f"v_add_u32 v{ZG+3}, s{sTmp2}, v{Z1}")
        e(f"v_add_u32 v{ZG+1}, 64, v{ZG+1}")
        e(f"v_add_u32 v{ZG+3}, 64, v{ZG+3}")
        e(f"v_mov_b32 v{Zt}, v{ZG}")
        for t in range(4):
            e(f"v_mov_b32 v{MX+t}, v{NINF}")
        e(f"s_mov_b32 s{sCnt}, 0")
        e(f"s_lshl_b32 s{sSpin}, s{sJ}, 3")
        e(f"s_sub_u32 s{sSpin}, 128, s{sSpin}")
        e("L_fb_loop:")
        e = p1.e
        e(f"s_lshr_b32 s{sTmp}, s{sCnt}, 2")
        e(f"s_mul_i32 s{sTmp}, s{sTmp}, {KV_T}")
        e(f"s_and_b32 s{sTmp2}, s{sCnt}, 3")
        e(f"s_lshl_b32 s{sTmp2}, s{sTmp2}, 12")
        e(f"s_add_u32 s{sTmp}, s{sTmp}, s{sTmp2}")
        for u in range(4):
            e(f"buffer_load_dwordx4 {ar(aK+4*u)}, v{vL16}, {srd(rK)}, s{sTmp} offen offset:{u*1024} sc1")
        e("s_waitcnt vmcnt(0)")
        for t in range(4):
            for u in range(4):
                e(f"{MF} {vr(SB+4*t)}, {ar(aK+4*u)}, {vr(Qf(t, u))}, {vr(SB+4*t) if u else 0}")
        e("s_nop 7")
        for t in range(4):
            for o in self.mask_ops(SB + 4 * t, ZG + t, 0, [SB + 4 * t + r for r in range(4)]):
                e(o)
            e(f"v_max3_f32 v{MX+t}, v{MX+t}, v{SB+4*t}, v{SB+4*t+1}")
            e(f"v_max3_f32 v{MX+t}, v{MX+t}, v{SB+4*t+2}, v{SB+4*t+3}")
            e(f"v_subrev_u32 v{ZG+t}, 16, v{ZG+t}")
        e(f"s_add_u32 s{sCnt}, s{sCnt}, 1")
        e(f"s_cmp_lt_u32 s{sCnt}, s{sSpin}")
        e("s_cbranch_scc1 L_fb_loop")
        e = p2.e
        for o in self.rowmax_reduce() + self.att_regs_init() + self.att_sregs_init():
            e(o)
        for which, X in (("K", 0), ("K", 1), ("K", 2), ("V", 0), ("V", 1)):
            for o in self.pad_m0(self.kv_dma(which, X, sMc, sMn)):
                e(o)
        for k in range(9):
            e(f"{MF32} {ar(16*k, 16)}, {vr(ZERO)}, {vr(ZERO)}, 0")
        e("s_waitcnt vmcnt(0)")
        e("s_barrier")
        for o in self.first_k_reads():
            e(o)
        e("s_waitcnt lgkmcnt(0)")
        e("s_branch L_att_go")
        self.ool += [p0, p1, p2]
        return p0, p1, p2

    def att_trace(self, B, G, j, fb=0):
        tr = []
        add = lambda b, i: tr.extend((o, {"i": i, "fb": fb}) for o in b.linear())
        add(G, 0)
        add(B["D0"], 0)
        for i in range(j):
            add(B["Da"], i)
            if i == j - 1:
                add(B["dmask"], i)
            add(B["Db"], i)
        add(B["T3"], j)
        add(B["S3"], j)
        add(B["epiA"], j)
        i = j + 1
        for k in range(7 - j):
            for nm in ("Sa", "Sb", "Sc"):
                add(B[nm], i)
            if k == 6 - j:
                add(B["smask"], i)
            add(B["Sd"], i)
            i += 2
        add(B["One"], i)
        add(B["Dr"], i)
        add(B["check"], i)
        return tr

    def dump_q(self):
        p = Plain("dumpq")
        e = p.e
        e(f"s_lshl_b32 s{sTmp}, s{sB}, 2")
        e(f"s_add_u32 s{sTmp}, s{sTmp}, s{sWv}")
        e(f"s_lshl_b32 s{sTmp}, s{sTmp}, 14")
        e(f"s_add_u32 s{sTmp}, s{sTmp}, {QDUMP_OFF}")
        for u in range(4):
            for rt in range(4):
                e(f"buffer_store_dwordx4 {vr(B1 + 16*u + 4*rt)}, v{vL16}, {srd(rWS)}, s{sTmp} offen offset:{rt*1024}")
            e(f"s_add_u32 s{sTmp}, s{sTmp}, 4096")
        return p

    def dump_stamps(self):
        p = Plain("stamps")
        if self.a.stamps:
            p.e("s_waitcnt vmcnt(0)")
            for o in self.stamp_ops() + self.rt_ops(63):
                p.e(o)
            p.e(f"s_lshl_b32 s{sTmp}, s{sB}, 2")
            p.e(f"s_add_u32 s{sTmp}, s{sTmp}, s{sWv}")
            p.e(f"s_lshl_b32 s{sTmp}, s{sTmp}, 8")
            p.e(f"s_add_u32 s{sTmp}, s{sTmp}, {STAMP_OFF}")
            p.e(f"v_lshrrev_b32 v{vL16}, 2, v{vL16}")
            p.e(f"buffer_store_dword v{vSel0}, v{vL16}, {srd(rWS)}, s{sTmp} offen")
        return p

    def build(self):
        pro = self.prologue()
        pj = self.proj()
        pj.post += self.stamp_ops()
        blocks = [pro, pj]
        end = Plain("end")
        lin = lambda bl, c={"i": 0}: [(o, c) for b in bl for o in b.linear()]
        if self.a.upto == "proj":
            blocks += [self.dump_q(), self.dump_stamps(), end]
            traces = [("main", lin(blocks))]
        else:
            S, G = self.prestep()
            for o in self.stamp_ops():
                G.e(o)
            B = self.attention()
            mid, tailb = self.tail(B)
            tailb += [self.dump_stamps(), end]
            blocks += [S, G] + [B[k] for k in ("D0", "Da", "Db", "T3", "S3", "epiA", "Sa", "Sb", "Sc", "Sd", "One", "Dr", "check")] + mid + tailb
            traces = []
            for j in range(8):
                traces.append((f"j{j}", lin([pro, pj, S]) + self.att_trace(B, G, j) + lin(mid) + lin(tailb)))
            f0, f1, f2 = B["fb"]
            for j in (0, 3, 7):
                traces.append((f"fb{j}", lin([pro, pj, S]) + self.att_trace(B, G, j) + lin(mid) + lin([f0, f1, f1, f2])
                               + self.att_trace(B, G, j, 1) + lin(mid, {"i": 0, "fb": 1}) + lin(tailb, {"i": 0, "fb": 1})))
        end.e("L_end:")
        end.e("s_endpgm")
        self.finish(blocks, traces)

    def p3_setup(self, S):
        t = ET
        sal = [f"s_and_b32 s{sRG}, s{sB}, 7", f"s_lshl_b32 s{sRG}, s{sRG}, 2", f"s_bfe_u32 s{sTmp}, s{sB}, 0x20003",
               f"s_add_u32 s{sRG}, s{sRG}, s{sTmp}", f"s_xor_b32 s{sCG}, s{sJ}, {self.a.cgx}", f"s_lshl_b32 s{sCG}, s{sCG}, 7",
               f"s_mul_i32 s{sActH}, s{sRG}, {ACT_RG}", f"s_mul_i32 s{sTmp}, s{sWv}, {8 * ACT_HD}",
               f"s_add_u32 s{sActC}, s{sActH}, s{sTmp}", f"s_mul_i32 s{sTmp}, s{sWv}, {14 * 4096}",
               f"s_add_u32 s{sActH}, s{sActH}, s{sTmp}", f"s_add_u32 s{sActH}, s{sActH}, {ACT_OFF + ACT_HOFF}",
               f"s_add_u32 s{sActC}, s{sActC}, {ACT_OFF}",
               f"s_mul_i32 s{sW2b}, s{sWv}, {14 * 32768}", f"s_add_u32 s{sW2b}, s{sW2b}, s{sCG}",
               f"s_lshl_b32 s{sWob}, s{sWv}, 20", f"s_add_u32 s{sWob}, s{sWob}, s{sCG}",
               f"s_lshl_b32 s{sM0p}, s{sWv}, 15",
               f"s_lshr_b32 s{sTmp}, s{sRG}, 1", f"s_sub_u32 s{sTmp2}, 15, s{sTmp}", f"s_min_u32 s{sTmp}, s{sTmp}, s{sTmp2}",
               f"s_lshl_b32 s{sPollH}, s{sTmp}, 7", f"s_add_u32 s{sPollH}, s{sPollH}, {HFLAG_OFF}",
               f"s_lshl_b32 s{sTmp}, s{sTmp}, 2", f"s_add_u32 s{sTmp}, s{sTmp}, s{sWv}", f"s_lshl_b32 s{sTmp}, s{sTmp}, 7",
               f"s_add_u32 s{sTmp}, s{sTmp}, {CFLAG_OFF}",
               f"s_mov_b32 s{rW}, s{pW2}", f"s_mov_b32 s{rW+1}, s{pW2+1}", f"s_mov_b32 s{rW+2}, {1792 * 1024}",
               f"s_mov_b32 s{rX}, s{pWO}", f"s_mov_b32 s{rX+1}, s{pWO+1}", f"s_mov_b32 s{rX+2}, {4 * MB}",
               f"s_mov_b32 s{rH}, s{pOUT}", f"s_mov_b32 s{rH+1}, s{pOUT+1}", f"s_mov_b32 s{rH+2}, {2 * MB}"]
        g = S.flow(sal, 0, 23)[-1]
        S.put(24, f"s_add_u32 s{sPollC}, s{pWS}, s{sTmp}")
        S.put(24, f"s_addc_u32 s{sPollC+1}, s{pWS+1}, 0")
        val = [f"v_lshrrev_b32 v{t}, 9, v{vL16}", f"v_lshlrev_b32 v{t}, 10, v{t}", f"v_lshlrev_b32 v{t+1}, 15, s{sWv}",
               f"v_sub_u32 v{t}, v{t+1}, v{t}"]
        val += [f"v_add_u32 v{vR[c]}, v{vWRa[c]}, v{t}" for c in range(4)]
        val += [f"v_lshrrev_b32 v{t}, 7, v{vL16}", f"v_and_b32 v{t+1}, 0x7f, v{vW8}", f"v_lshl_add_u32 v{vDm[0]}, v{t}, 10, v{t+1}"]
        val += [f"v_add_u32 v{vDm[i]}, {7168 * i}, v{vDm[0]}" for i in range(1, 4)]
        val += [f"v_lshl_add_u32 v{vAo[0]}, s{sWv}, 10, v{vL16}"]
        for k in range(1, 4):
            val += [f"v_add_u32 v{vAo[k]}, {1024 * k}, v{vAo[0]}", f"v_and_b32 v{vAo[k]}, 0xfff, v{vAo[k]}"]
        val += [f"v_bfe_u32 v{vA}, v{vL16}, 4, 5", f"v_lshlrev_b32 v{vA}, 2, v{vA}"]
        S.flow(val, 0, 24)

    def p3_table(self, T, last, N):
        t = ET
        s1 = self.chain_tasks(T, [f"s_xor_b32 s{sTmp}, s{sRG}, s{sJ}", f"s_and_b32 s{sTmp}, s{sTmp}, {self.a.pmask}",
                                  f"s_and_b32 s{sTmp2}, s{sTmp}, 1", f"s_mul_i32 s{sSpin}, s{sWv}, {self.a.pshift}"], 0, 20)
        m = f"s[{sMA}:{sMA+1}]"
        ops = [f"v_lshrrev_b32 v{t}, 4, v{vL16}",
               f"v_add_u32 v{t+1}, s{sSpin}, v{t}",
               f"v_cmp_le_i32 vcc, 14, v{t+1}",
               f"v_subrev_u32 v{t+2}, 14, v{t+1}",
               f"v_cmp_le_i32 {m}, 14, v{t}",
               f"v_cndmask_b32 v{t+1}, v{t+1}, v{t+2}, vcc",
               f"v_cmp_le_i32 vcc, 12, v{t+1}",
               f"v_xor_b32 v{t+3}, s{sTmp}, v{t+1}",
               f"v_xor_b32 v{t+1}, s{sTmp2}, v{t+1}",
               f"v_cndmask_b32 v{t+1}, v{t+3}, v{t+1}, vcc",
               f"v_xor_b32 v{t+2}, s{sTmp}, v{t+2}",
               f"v_and_b32 v{t+2}, 31, v{t+2}",
               f"v_lshl_add_u32 v{t+3}, v{t+1}, 15, s{sW2b}",
               f"v_lshl_add_u32 v{t+4}, v{t+2}, 15, s{sWob}",
               f"v_cndmask_b32 v{vTW}, v{t+3}, v{t+4}, {m}",
               f"v_lshl_add_u32 v{t+3}, v{t+1}, 12, s{sActH}",
               f"v_lshl_add_u32 v{t+4}, v{t+2}, 12, s{sActC}",
               f"v_lshrrev_b32 v{t+2}, 2, v{t+2}",
               f"v_mul_u32_u24 v{t+2}, {ACT_HD - 16384}, v{t+2}",
               f"v_add_u32 v{t+4}, v{t+4}, v{t+2}",
               f"v_cndmask_b32 v{vTA}, v{t+3}, v{t+4}, {m}"]
        self.chain_tasks(T, ops, 21, N - 1, last)

    def p3_off(self, ks):
        return [Op(f"v_readlane_b32 s{sT[2 * (ks & 1)]}, v{vTW}, {ks}"), Op(f"v_readlane_b32 s{sT[2 * (ks & 1) + 1]}, v{vTA}, {ks}")]

    def p3_w(self, ks):
        ops = []
        if ks == 14:
            ops += [Op(f"s_mov_b32 s{rW}, s{pWO}"), Op(f"s_mov_b32 s{rW+1}, s{pWO+1}"), Op(f"s_mov_b32 s{rW+2}, {4 * MB}")]
        ops.append(Op(f"s_add_u32 m0, s{sM0p}, {(ks & 7) * 4096}"))

        def wr(c):
            al = [((w, k), ("P", ks), True) for w in "KV" for k in range(4)] if ks < 8 else []
            return [(("P", ks & 7), ("P", ks, c.get("fb")), False)] + al
        for i in range(4):
            ops.append(Op(f"buffer_load_dwordx4 v{vDm[i]}, {srd(rW)}, s{sT[2 * (ks & 1)]} offen offset:{i * 1024} lds", lds_wr=wr))
        return ops

    def p3_a(self, ks):
        return [Op(f"buffer_load_dwordx4 {vr(AR + 16 * (ks & 7) + 4 * k)}, v{vAo[k]}, {srd(rWS)}, s{sT[2 * (ks & 1) + 1]} offen{self.a.ld}")
                for k in range(4)]

    def p3_reads(self, ks):
        ops = []
        for c in range(4):
            for hh in range(2):
                ops.append(Op(f"ds_read_b64_tr_b16 {vr(WF2 + 16 * (ks & 1) + 4 * c + 2 * hh, 2)}, v{vR[c]} offset:{(ks & 7) * 4096 + hh * 2048}",
                              lds_rd=lambda cx: (("P", ks & 7), ("P", ks, cx.get("fb")), False)))
        return ops

    def one_extra(self, S, T, info, last):
        if self.a.upto == "attn":
            return
        ld, chk, br = self.poll("h", f"buffer_load_dword v{vP}, v{vA}, {srd(rWS)}, s{sPollH} offen sc1", f"v_cmp_gt_u32 vcc, 1, v{vP}")
        T.append(Task(ld, 8, 20))
        self.hpoll = chk + [Op("s_nop 0")] + br

    def tail(self, B):
        if self.a.upto == "attn":
            p = Plain("epiB")
            for o in self.stamp_ops():
                p.e(o)
            self.epilogue(p.e, [2, 3])
            return [B["check2"]], [p]
        PD = self.a.pd
        m = Plain("p3pre0")
        for o in self.p3_off(0) + self.p3_off(1) + self.hpoll + self.pad_m0(self.p3_w(0)):
            m.e(o)
        p = Plain("p3pre")
        e = p.e
        for o in self.stamp_ops():
            e(o)
        lds = self.p3_a(0)
        for ks in range(1, PD):
            lds += self.p3_off(ks + 1) + self.pad_m0(self.p3_w(ks)) + self.p3_a(ks)
        ep = Plain("tmp")
        self.epilogue(ep.e, [2, 3])
        li = [0]

        def take(n):
            while li[0] < len(lds) and n > 0:
                o = lds[li[0]]
                e(o)
                li[0] += 1
                if o.kind in VM:
                    n -= 1
        take(4)
        k = 0
        for o in ep.ops:
            e(o)
            k += 1
            if k % self.a.epistep == 0:
                take(1)
        take(1000)
        sel = ET + 4
        e(f"v_min_u32 v{Zt}, 1, v{vL16}")
        e(f"v_lshlrev_b32 v{Zt}, 28, v{Zt}")
        e(f"v_bfe_u32 v{Zu}, v{vL16}, 4, 4")
        e(f"v_lshlrev_b32 v{Zu}, 10, v{Zu}")
        e(f"v_lshrrev_b32 v{vA}, 8, v{vL16}")
        e(f"v_lshl_add_u32 v{Zu}, v{vA}, 3, v{Zu}")
        e(f"s_mov_b32 s{rX}, s{pX}")
        e(f"s_mov_b32 s{rX+1}, s{pX+1}")
        e(f"s_mov_b32 s{rX+2}, {2 * MB}")
        e(f"s_lshl_b32 s{sRG}, s{sRG}, 16")
        e(f"s_lshl_b32 s{sTmp}, s{sWv}, 14")
        e(f"s_add_u32 s{sRG}, s{sRG}, s{sTmp}")
        e(f"s_add_u32 s{sRG}, s{sRG}, s{sCG}")
        for o in self.stamp_ops():
            e(o)
        e(W(vm=True))
        for o in self.p3_reads(0):
            e(o)
        for o in self.p3_off(PD + 1) + self.pad_m0(self.p3_w(PD)) + self.p3_a(PD):
            e(o)
        e(W(lg=True))
        S = Seg("p3")
        NK = 46
        for ks in range(NK):
            for c in range(4):
                for k in range(4):
                    d = ar(16 * k + 4 * c)
                    S.mfma(f"{MF} {d}, {vr(WF2 + 16 * (ks & 1) + 4 * c)}, {vr(AR + 16 * (ks & 7) + 4 * k)}, {d if ks else 0}")
        XR = B2 + 32
        for ks in range(NK):
            g0 = 16 * ks
            if ks + 1 < NK:
                S.put(g0, W(vm=True))
                for i, o in enumerate(self.p3_reads(ks + 1)):
                    S.put(g0 + [0, 1, 3, 4, 6, 7, 9, 10][i], o)
            ops = []
            kn = ks + PD + 1
            if ks == PD - 1:
                ops += [Op(f"buffer_atomic_add v{vD}, v{Zt}, {srd(rWS)}, s{sFlagC} offen sc1", needs=[("cst", False)])]
            if kn < NK:
                ops += self.p3_w(kn)
                if kn == 14:
                    keep = lambda l: [setattr(o, "kind", "salu" if o.kind == "valu" else o.kind) or o for o in l]
                    ops += keep(self.stamp_ops()) if self.a.p3stamps else []
                    ops += [Op(f"s_cmp_lt_u32 s{sSpin}, 32"), Op("s_cbranch_scc1 L_spin_c"), Op("L_back_c:")]
                    ops += keep(self.stamp_ops()) if self.a.p3stamps else []
                if kn in (6, 22, 30, 38) and self.a.p3stamps:
                    keep = lambda l: [setattr(o, "kind", "salu" if o.kind == "valu" else o.kind) or o for o in l]
                    ops += keep(self.stamp_ops())
                ops += self.p3_a(kn)
            if ks == NK - PD - 1:
                ops += [Op(f"buffer_load_dwordx2 {vr(XR + 2 * c, 2)}, v{Zu}, {srd(rX)}, s{sRG} offen offset:{32 * c}") for c in range(4)]
            S.flow(ops, g0 + 1, g0 + 15)
            if kn + 1 < NK:
                S.flow(self.p3_off(kn + 1), g0 + 3, g0 + 10)
            if kn == 13:
                S.put(g0 + 11, f"s_load_dword s{sSpin}, s[{sPollC}:{sPollC+1}], 0x0 glc", front=True)
                S.put(g0 + 15, "s_waitcnt lgkmcnt(0)")
            elif ks + 1 < NK:
                S.put(g0 + 15, W(lg=True))
        q = Plain("spin_c")
        q.e("L_spin_c:")
        q.e(f"s_mov_b32 s{sCnt}, 0")
        q.e("L_spin2_c:")
        q.e(f"s_load_dword s{sSpin}, s[{sPollC}:{sPollC+1}], 0x0 glc")
        q.e(f"s_add_u32 s{sCnt}, s{sCnt}, 1")
        q.e(f"s_cmp_gt_u32 s{sCnt}, 400000")
        q.e("s_waitcnt lgkmcnt(0)")
        q.e("s_cbranch_scc1 L_back_c")
        q.e(f"s_cmp_lt_u32 s{sSpin}, 32")
        q.e("s_cbranch_scc0 L_back_c")
        q.e("s_sleep 2")
        q.e("s_branch L_spin2_c")
        self.ool.append(q)
        f = Plain("final")
        e = f.e
        for o in self.stamp_ops():
            e(o)
        a0 = AR
        e(f"v_add_u32 v{a0}, s{sM0p}, v{vL16}")
        for k in range(1, 4):
            e(f"v_subrev_u32 v{a0+k}, {32768 * k}, v{a0}")
            e(f"v_and_b32 v{a0+k}, 0x1ffff, v{a0+k}")
        e("s_nop 3")
        for k in range(1, 4):
            for c in range(4):
                e(f"ds_write_b128 v{a0}, {ar(16 * k + 4 * c)} offset:{k * 4096 + c * 1024}", lds_wr=(("P", k), "red", False))
        O = AR + 16
        for i in range(16):
            e(f"v_accvgpr_read_b32 v{O+i}, a{i}")
        e(W(vm=True))
        U = AR + 32
        for i in range(8):
            e(f"v_lshlrev_b32 v{U+2*i}, 16, v{XR+i}")
            e(f"v_and_b32 v{U+2*i+1}, 0xffff0000, v{XR+i}")
        for i in range(8):
            e(f"v_pk_add_f32 {vr(O+2*i, 2)}, {vr(O+2*i, 2)}, {vr(U+2*i, 2)}")
        e(W(lg=True))
        e("s_barrier")
        R = AR + 48
        for c in range(4):
            for k in range(1, 4):
                e(f"ds_read_b128 {vr(R + 16 * (k - 1) + 4 * c)}, v{a0+k} offset:{k * 4096 + c * 1024}", lds_rd=(("P", k), "red", True))
        for c in range(4):
            e(W(lg=True))
            for k in range(3):
                for h in range(2):
                    e(f"v_pk_add_f32 {vr(O+4*c+2*h, 2)}, {vr(O+4*c+2*h, 2)}, {vr(R+16*k+4*c+2*h, 2)}")
            for h in range(2):
                e(f"v_cvt_pk_bf16_f32 v{U+2*c+h}, v{O+4*c+2*h}, v{O+4*c+2*h+1}")
            e(f"buffer_store_dwordx2 {vr(U+2*c, 2)}, v{Zu}, {srd(rH)}, s{sRG} offen offset:{32 * c}")
        return [m, B["check2"]], [p, S, f]

    def finish(self, blocks, traces):
        for it in range(2):
            for name, tr in traces:
                Tracer(name, tr).run(resolve=True)
        soft = 0
        for name, tr in traces:
            T = Tracer(name, tr)
            T.run(resolve=False)
            soft += T.hazards()
        for b in blocks:
            n = b.n() if isinstance(b, Seg) else 0
            print(f"  block {b.name:12s} mfma={n:5d} est.cycles={b.cycles():6d}" + (f" (ideal {16*n})" if n else ""))
        print("  mfma distances satisfied by pipe timing only:", soft, " stamps:", self.nstamp)
        hdr = open(self.a.ref).read().split("; Override launch")[0]
        out = [hdr.rstrip("\n"),
               "; generated by gen/gen.py (hand-written generator)",
               f"; @launch grid=(256,1,1) block=(256,1,1) lds={LDS_BYTES}",
               '.amdgcn_target "amdgcn-amd-amdhsa--gfx950"', ".text", f".globl {NAME}_kernel", ".p2align 8",
               f".type {NAME}_kernel,@function", f"{NAME}_kernel:"]
        for b in blocks + self.ool:
            out.append(f"; ---- {b.name} ----")
            for o in b.linear():
                t = o.render()
                out.append(t if o.kind == "label" else " " + t)
        out += ["L_code_end:", " s_endpgm"]
        out += ['.section .rodata,"a"', ".p2align 6", f".amdhsa_kernel {NAME}_kernel",
                "  .amdhsa_next_free_vgpr 512", "  .amdhsa_next_free_sgpr 102", "  .amdhsa_accum_offset 256",
                "  .amdhsa_group_segment_fixed_size 0", "  .amdhsa_kernarg_size 104", "  .amdhsa_user_sgpr_count 2",
                "  .amdhsa_user_sgpr_kernarg_segment_ptr 1", "  .amdhsa_system_sgpr_workgroup_id_x 1", ".end_amdhsa_kernel", ""]
        open(self.a.out, "w").write("\n".join(out))


def args():
    ap = argparse.ArgumentParser()
    ap.add_argument("--out", default="k.s")
    ap.add_argument("--ref", default=f"cdna_kernels/{NAME}.s.ref")
    ap.add_argument("--upto", default="full")
    ap.add_argument("--stamps", action="store_true")
    ap.add_argument("--finestamps", action="store_true")
    ap.add_argument("--wld", default="")
    ap.add_argument("--tld", default="")
    ap.add_argument("--prostamps", action="store_true")
    ap.add_argument("--rmask", type=int, default=3)
    ap.add_argument("--jmask", type=int, default=7)
    ap.add_argument("--ctouch", type=int, default=1)
    ap.add_argument("--wtouch", type=int, default=1)
    ap.add_argument("--otouch", type=int, default=1)
    ap.add_argument("--quick", type=int, default=4)
    ap.add_argument("--pd", type=int, default=3)
    ap.add_argument("--rt", action="store_true")
    ap.add_argument("--p3stamps", action="store_true")
    ap.add_argument("--cgx", type=int, default=0)
    ap.add_argument("--pmask", type=int, default=3)
    ap.add_argument("--pshift", type=int, default=1)
    ap.add_argument("--epistep", type=int, default=12)
    ap.add_argument("--verbose", action="store_true")
    ap.add_argument("--ld", default=" sc1")
    ap.add_argument("--st", default=" sc1")
    return ap.parse_args()


if __name__ == "__main__":
    Gen(args()).build()
```

```python
import re

TRANS = ("v_exp_f32", "v_log_f32", "v_rcp_f32", "v_rsq_f32", "v_sqrt_f32")
REG_RE = re.compile(r"^(-?)(?:abs\()?([vas])(?:(\d+)|\[(\d+):(\d+)\])\)?$")


def regs_of(tok):
    tok = tok.strip()
    if tok == "vcc":
        return [("s", "vcc")]
    if tok in ("m0", "exec"):
        return [("s", tok)]
    m = REG_RE.match(tok)
    if not m:
        return []
    f = m.group(2)
    if m.group(3) is not None:
        return [(f, int(m.group(3)))]
    return [(f, i) for i in range(int(m.group(4)), int(m.group(5)) + 1)]


class Op:
    __slots__ = ("text", "kind", "reads", "writes", "tag", "needs", "lds_wr", "lds_rd", "vm", "lg",
                 "fixed", "srcc", "passes", "mn", "comment", "ab", "expect", "after")

    def __init__(self, text, tag=None, needs=(), lds_wr=None, lds_rd=None, comment=None, expect=None, after=None):
        self.text = text
        self.tag = tag
        self.needs = list(needs)
        self.lds_wr = lds_wr
        self.lds_rd = lds_rd
        self.vm = None
        self.lg = None
        self.fixed = False
        self.srcc = []
        self.ab = []
        self.passes = 0
        self.comment = comment
        self.expect = expect
        self.after = after
        self.parse()

    def parse(self):
        t = self.text
        if t.endswith(":"):
            self.kind, self.mn, self.reads, self.writes = "label", "", [], []
            return
        if t.startswith("."):
            self.kind, self.mn, self.reads, self.writes = "label", "", [], []
            return
        parts = t.split(None, 1)
        mn = parts[0]
        self.mn = mn
        rest = parts[1] if len(parts) > 1 else ""
        toks = [x.strip() for x in rest.split(",")] if rest else []
        mods = ""
        if toks:
            out = []
            for i, x in enumerate(toks):
                if " " in x:
                    out.append(x.split()[0])
                    mods = " ".join([x.split(None, 1)[1]] + toks[i + 1:])
                    break
                out.append(x)
            toks = out
        R = [regs_of(x) for x in toks]
        flat = lambda l: [r for x in l for r in x]
        rd, wr = [], []
        if mn.startswith("v_mfma"):
            self.kind = "mfma"
            wr = R[0]
            rd = flat(R[1:])
            self.srcc = R[3]
            self.ab = R[1] + R[2]
            self.passes = 4 if "16x16x32" in mn else 8
        elif mn.startswith("v_cmp"):
            self.kind = "valu"
            wr = R[0]
            rd = flat(R[1:])
        elif mn.startswith("v_permlane") or mn.startswith("v_swap"):
            self.kind = "valu"
            wr = flat(R)
            rd = flat(R)
        elif mn.startswith("v_nop"):
            self.kind = "valu"
        elif mn.startswith("v_"):
            self.kind = "trans" if mn.startswith(TRANS) else "valu"
            wr = R[0]
            rd = flat(R[1:])
            if mn.startswith(("v_fmac", "v_dot2c")) or "_dpp" in mn:
                rd = rd + R[0]
        elif mn.startswith("ds_read") or mn.startswith("ds_bpermute"):
            self.kind = "ds"
            wr = R[0]
            rd = flat(R[1:])
        elif mn.startswith("ds_write"):
            self.kind = "dsw"
            rd = flat(R)
        elif mn.startswith(("buffer_load", "global_load")):
            if re.search(r"\blds\b", mods):
                self.kind = "dma"
                rd = flat(R) + [("s", "m0")]
            else:
                self.kind = "vld"
                wr = R[0]
                rd = flat(R[1:])
        elif mn.startswith(("buffer_store", "buffer_atomic", "global_store")):
            self.kind = "vst"
            rd = flat(R)
        elif mn == "s_waitcnt":
            self.kind = "wait"
            self.fixed = True
            m = re.search(r"vmcnt\((\d+)\)", t)
            self.vm = int(m.group(1)) if m else None
            m = re.search(r"lgkmcnt\((\d+)\)", t)
            self.lg = int(m.group(1)) if m else None
        elif mn == "s_barrier":
            self.kind = "bar"
        elif mn.startswith(("s_cbranch", "s_branch", "s_endpgm", "s_setpc")):
            self.kind = "branch"
            if "scc" in mn:
                rd = [("s", "scc")]
            if "vcc" in mn:
                rd = [("s", "vcc")]
        elif mn in ("s_nop", "s_sleep", "s_setprio"):
            self.kind = "salu"
        elif mn.startswith(("s_load", "s_memtime", "s_memrealtime")):
            self.kind = "smem"
            wr = R[0]
            rd = flat(R[1:])
        elif mn.startswith(("s_cmp", "s_bitcmp")):
            self.kind = "salu"
            rd = flat(R)
            wr = [("s", "scc")]
        elif mn.startswith("s_"):
            self.kind = "salu"
            wr = list(R[0])
            rd = flat(R[1:])
            if mn.startswith(("s_add", "s_sub", "s_and", "s_or", "s_xor", "s_lshl", "s_lshr", "s_min", "s_max", "s_bfe", "s_ashr")):
                wr.append(("s", "scc"))
            if mn.startswith(("s_addc", "s_subb", "s_cselect")):
                rd.append(("s", "scc"))
            if mn.startswith("s_addk"):
                rd += R[0]
            if "saveexec" in mn:
                wr.append(("s", "exec"))
        else:
            raise ValueError("unknown instr: " + t)
        self.reads, self.writes = rd, wr

    def render(self):
        if self.kind == "wait" and not self.fixed:
            p = []
            if self.vm is not None and self.vm < 63:
                p.append(f"vmcnt({self.vm})")
            if self.lg is not None and self.lg < 15:
                p.append(f"lgkmcnt({self.lg})")
            t = "s_waitcnt " + " ".join(p) if p else "s_nop 0"
        else:
            t = self.text
        return t

    def states(self):
        if self.mn == "s_nop":
            return int(self.text.split()[1]) + 1
        if self.kind == "label":
            return 0
        return 1


def W(vm=False, lg=False):
    o = Op("s_waitcnt")
    o.fixed = False
    o.vm = 63 if vm else None
    o.lg = 15 if lg else None
    return o


COST = {"valu": 1, "trans": 2, "ds": 2, "dsw": 6, "dma": 3, "vld": 3, "vst": 6, "salu": 1, "wait": 1,
        "bar": 1, "branch": 1, "label": 0, "smem": 1}


def op_cost(o):
    if o.kind == "dsw":
        return 6 if "b128" in o.mn else 3
    if o.kind == "vst":
        return 6 if "x4" in o.mn else 4
    if o.mn == "s_nop":
        return o.states()
    return COST[o.kind]


def gap_slots(ops):
    t = 1
    for o in ops:
        if o.kind in ("valu", "trans"):
            t = max(t, 2)
        t += op_cost(o)
    return t


class Seg:
    def __init__(self, name):
        self.name = name
        self.pre = []
        self.mf = []
        self.nv = []
        self.va = []
        self.post = []

    def mfma(self, text):
        self.mf.append(Op(text))
        self.nv.append([])
        self.va.append([])
        return len(self.mf) - 1

    def n(self):
        return len(self.mf)

    def gap(self, g):
        return self.nv[g] + self.va[g]

    def used(self, g):
        return gap_slots(self.gap(g))

    def put(self, g, op, front=False):
        if isinstance(op, str):
            op = Op(op)
        lst = self.va[g] if op.kind in ("valu", "trans") else self.nv[g]
        if front:
            lst.insert(0, op)
        else:
            lst.append(op)
        return g

    def cap(self, g):
        return 4 if self.mf[g].passes == 4 else 8

    def extra(self, g, op):
        if op.kind in ("valu", "trans"):
            new = gap_slots(self.nv[g] + self.va[g] + [op])
        else:
            new = gap_slots(self.nv[g] + [op] + self.va[g])
        c = self.cap(g)
        return max(new, c) - max(self.used(g), c)

    def intrinsic(self, op):
        return max(0, gap_slots([op]) - 4)

    def place(self, op, lo, hi, latest=False, allow=None):
        if isinstance(op, str):
            op = Op(op)
        lo = max(lo, 0)
        hi = min(hi, self.n() - 1)
        assert lo <= hi, (self.name, op.text, lo, hi)
        rng = range(hi, lo - 1, -1) if latest else range(lo, hi + 1)
        best, bg = None, None
        base = self.intrinsic(op)
        for g in rng:
            if allow is not None and not allow(g, op):
                continue
            e = self.extra(g, op)
            if e <= base:
                return self.put(g, op)
            if best is None or e < best:
                best, bg = e, g
        if bg is None:
            bg = hi
        return self.put(bg, op)

    def flow(self, ops, lo, hi, rel=None, dl=None, spread=False, allow=None):
        g = lo
        last_valu_gap = -1
        out = []
        n = len(ops)
        for i, op in enumerate(ops):
            if isinstance(op, str):
                op = Op(op)
            r = g
            if rel is not None and rel[i] is not None:
                r = max(r, rel[i])
            if spread:
                r = max(r, lo + (i * (hi - lo + 1)) // n)
            if op.kind not in ("valu", "trans") and last_valu_gap >= r:
                r = last_valu_gap + 1
            d = hi
            if dl is not None and dl[i] is not None:
                d = min(d, dl[i])
            d = max(d, r)
            d = min(d, self.n() - 1)
            r = min(r, d)
            g = self.place(op, r, d, allow=allow)
            if op.kind in ("valu", "trans"):
                last_valu_gap = g
            out.append(g)
        return out

    def linear(self):
        L = list(self.pre)
        for i, m in enumerate(self.mf):
            L.append(m)
            L += self.nv[i] + self.va[i]
        return L + list(self.post)

    def cycles(self):
        c = 4 * sum(op_cost(o) if o.kind != "mfma" else o.passes for o in self.pre + self.post)
        for g in range(self.n()):
            c += 4 * max(self.cap(g), self.used(g))
        return c

    def auto_lg_waits(self, lat=6, incoming=(), verbose=False):
        pend = {r: -10 ** 6 for r in incoming}
        waits = [g for g in range(self.n()) if any(o.kind == "wait" and o.lg is not None for o in self.nv[g])]
        late = 0
        for o in self.pre:
            if o.kind == "ds":
                for r in o.writes:
                    pend[r] = -1
            elif o.kind == "wait" and o.lg is not None:
                pend = {}
        for i in range(self.n()):
            m = self.mf[i]
            need = [pend[r] for r in m.reads if r in pend]
            if need:
                rg = max(need)
                if not any(rg < w <= i - 1 and w >= rg + min(lat, i - 1 - rg) for w in waits):
                    lo = max(0, rg + 1, min(rg + lat, i - 1))
                    if i == 0:
                        self.pre.append(W(lg=True))
                    else:
                        g = None
                        for c in range(i - 1, lo - 1, -1):
                            for o in self.nv[c]:
                                if o.kind == "wait" and not o.fixed and o.lg is None and self.nv[c].index(o) == 0:
                                    o.lg = 15
                                    g = c
                                    break
                            if g is not None:
                                break
                        if g is None:
                            w = W(lg=True)
                            best = None
                            for c in range(i - 1, lo - 1, -1):
                                e = self.extra(c, w)
                                if best is None or e < best[0]:
                                    best = (e, c)
                                if e == 0:
                                    break
                            g = best[1]
                            self.put(g, w, front=True)
                        waits.append(g)
                        if g - rg < lat:
                            late += 1
                            if verbose:
                                print(f"  [{self.name}] short lds latency: read gap {rg}, wait gap {g}, use {i}")
                for r in m.reads:
                    pend.pop(r, None)
            for o in self.nv[i]:
                if o.kind == "ds":
                    for r in o.writes:
                        pend[r] = i
        return late


class Plain:
    def __init__(self, name):
        self.name = name
        self.ops = []

    def e(self, x, **kw):
        if isinstance(x, str):
            x = Op(x, **kw)
        self.ops.append(x)
        return x

    def linear(self):
        return list(self.ops)

    def cycles(self):
        return 4 * sum(op_cost(o) if o.kind != "mfma" else o.passes for o in self.ops)


def ev(x, ctx):
    return x(ctx) if callable(x) else x


VM = ("dma", "vld", "vst")
LG = ("ds", "dsw", "smem")


class TraceError(Exception):
    pass


class Tracer:
    def __init__(self, name, trace):
        self.name = name
        self.tr = [(o, c) for (o, c) in trace if o.kind != "label"]

    def err(self, i, msg):
        lo = max(0, i - 12)
        ctxt = "\n".join(f"   {'>>' if k == i else '  '} {self.tr[k][0].render()}" for k in range(lo, min(len(self.tr), i + 2)))
        raise TraceError(f"[{self.name}] at {i}: {msg}\n{ctxt}")

    def run(self, resolve):
        tr = self.tr
        n = len(tr)
        cls = lambda o: "vm" if o.kind in VM else ("lg" if o.kind in LG else None)
        cnt = {"vm": [0] * (n + 1), "lg": [0] * (n + 1)}
        waits = {"vm": [], "lg": []}
        bars = []
        for i, (o, c) in enumerate(tr):
            for k in cnt:
                cnt[k][i + 1] = cnt[k][i] + (1 if cls(o) == k else 0)
        import bisect
        done = {"vm": -1, "lg": -1}
        donepos = {"vm": [], "lg": []}

        def covered(k, p, limit):
            ordn = cnt[k][p]
            lst = waits[k]
            a = bisect.bisect_right(lst, p)
            b = bisect.bisect_right(lst, limit)
            for w in lst[a:b]:
                N = getattr(tr[w][0], k)
                if cnt[k][w] - N > ordn:
                    return True
            return False

        def require(i, p, shared, what):
            k = cls(tr[p][0])
            limit = i
            if shared:
                b = bisect.bisect_left(bars, i) - 1
                if b < 0 or bars[b] < p:
                    self.err(i, f"no barrier between producer {p} ({tr[p][0].text}) and consumer for {what}")
                limit = bars[b]
            if covered(k, p, limit):
                return
            if resolve:
                lst = waits[k]
                b = bisect.bisect_right(lst, limit) - 1
                while b >= 0 and lst[b] > p and tr[lst[b]][0].fixed:
                    b -= 1
                if b < 0 or lst[b] < p:
                    self.err(i, f"no {k} wait between producer {p} ({tr[p][0].text}) and consumer for {what}")
                w = lst[b]
                N = cnt[k][w] - cnt[k][p] - 1
                setattr(tr[w][0], k, min(getattr(tr[w][0], k), N))
            else:
                self.err(i, f"uncovered {k} dependency on {p} ({tr[p][0].text}) for {what}")

        pendreg = {}
        tagpos = {}
        lds = {}
        smem_out = False
        for i, (o, c) in enumerate(tr):
            if o.kind == "wait":
                if o.vm is not None:
                    waits["vm"].append(i)
                if o.lg is not None:
                    waits["lg"].append(i)
                    if smem_out and o.lg != 0:
                        self.err(i, "counted lgkm wait with smem outstanding")
                    if o.lg == 0:
                        smem_out = False
                continue
            if o.kind == "bar":
                bars.append(i)
                continue
            for r in o.reads + o.writes:
                if r in pendreg:
                    p = pendreg[r]
                    if r in o.writes and r not in o.reads and cls(o) == cls(tr[p][0]) and o.kind != "smem":
                        continue
                    require(i, p, False, f"reg {r}")
                    del pendreg[r]
            for (tag, shared) in o.needs:
                tag = ev(tag, c)
                if tag not in tagpos:
                    self.err(i, f"needs unknown tag {tag}")
                require(i, tagpos[tag], shared, f"tag {tag}")
            if o.lds_rd is not None:
                phys, tag, shared = ev(o.lds_rd, c)
                st = lds.get(phys)
                if st is None or st["tag"] != tag:
                    self.err(i, f"lds region {phys} holds {st and st['tag']} but {tag} expected")
                require(i, st["wr"], shared, f"lds RAW {phys} {tag}")
                st["rd"] = i
            if o.lds_wr is not None:
                lw = ev(o.lds_wr, c)
                for (phys, tag, shared) in (lw if isinstance(lw, list) else [lw]):
                    st = lds.get(phys)
                    if st is not None and st["rd"] is not None:
                        require(i, st["rd"], shared, f"lds WAR {phys} {st['tag']}->{tag}")
                    if st is not None and st["tag"] != tag:
                        if st["rd"] is None and (cls(tr[st["wr"]][0]) != cls(o) or (shared and tag[0] in ("P", "bad") and st["tag"][0] != tag[0])):
                            require(i, st["wr"], shared, f"lds WAW {phys}")
                        st = None
                    if st is None:
                        st = lds[phys] = {"tag": tag, "wr": i, "rd": None}
                    st["wr"] = i
            if o.kind in ("ds", "vld", "smem"):
                for r in o.writes:
                    pendreg[r] = i
                if o.kind == "smem":
                    smem_out = True
            if o.tag is not None:
                tagpos[ev(o.tag, c)] = i
        if not resolve:
            for k, mx in (("vm", 63), ("lg", 15)):
                dn = 0
                for i, (o, c) in enumerate(tr):
                    if o.kind == "wait" and getattr(o, k) is not None:
                        dn = max(dn, cnt[k][i] - getattr(o, k))
                    if cls(o) == k and cnt[k][i + 1] - dn > mx:
                        if k == "vm":
                            self.err(i, f"more than {mx} outstanding {k} ops")

    def intent(self):
        last, passed, closed = {}, set(), set()
        for i, (o, c) in enumerate(self.tr):
            if o.kind == "branch" and "L_spin_" in o.text:
                passed.add(o.text.split("L_spin_")[1])
            if o.after is not None and o.after not in passed:
                self.err(i, f"load before poll {o.after}")
            for r, txt in (o.expect or {}).items():
                if last.get(r) != txt:
                    self.err(i, f"{r} last written by '{last.get(r)}', expected '{txt}'")
            if o.tag in closed:
                self.err(i, f"store {o.tag} after its flag")
            for (tag, sh) in o.needs:
                closed.add(tag)
            for r in o.writes:
                if not o.mn.startswith("v_writelane"):
                    last[r] = o.text

    def hazards(self):
        tr = self.tr
        t = 0
        last_mfma_t, last_mfma_p = -100, 0
        wr_valu = {}
        wr_mfma = {}
        rd_srcc = {}
        st_data = {}
        wr_salu = {}
        soft = 0
        idx = 0
        for i, (o, c) in enumerate(tr):
            if o.kind == "mfma":
                t = max(t, last_mfma_t + last_mfma_p)
            now = t

            def chk(tab, r, need, what, timed=False):
                nonlocal soft
                if r in tab:
                    pt, pi, po = tab[r]
                    d_i = idx - pi - 1
                    d_t = now - pt - 1
                    if timed:
                        if d_t < need + 1 and d_i < need:
                            self.err(i, f"hazard {what} on {r}: {d_t} timed / {d_i} counted states < {need} after: {po.text}")
                        if d_i < need:
                            soft += 1
                    elif d_i < need:
                        self.err(i, f"hazard {what} on {r}: {d_i} < {need} after: {po.text}")

            isv = o.kind in ("valu", "trans")
            if o.kind == "mfma":
                for r in o.reads:
                    chk(wr_valu, r, 2, "valu->mfma")
                for r in o.ab:
                    if r in wr_mfma:
                        chk(wr_mfma, r, {4: 8, 8: 12}[wr_mfma[r][2].passes], "mfma->mfma A/B", True)
                for r in o.srcc:
                    if r in wr_mfma:
                        po = wr_mfma[r][2]
                        if not (po.writes == o.srcc and po.passes == o.passes):
                            chk(wr_mfma, r, {4: 6, 8: 10}[po.passes], "mfma->mfma C overlap", True)
                for r in o.writes:
                    if r in wr_mfma and r not in o.srcc:
                        po = wr_mfma[r][2]
                        if po.passes > o.passes:
                            chk(wr_mfma, r, {4: 6, 8: 10}[po.passes], "mfma WAW", True)
            else:
                for r in o.reads + o.writes:
                    if r in wr_mfma:
                        chk(wr_mfma, r, {4: 8, 8: 12}[wr_mfma[r][2].passes], "mfma->other", True)
            if isv:
                for r in o.writes:
                    if r in rd_srcc:
                        chk(rd_srcc, r, {4: 3, 8: 7}[rd_srcc[r][2].passes], "srcC WAR", True)
                    chk(st_data, r, 2, "store data WAR")
                for r in o.reads:
                    if r in wr_valu:
                        po = wr_valu[r][2]
                        if r[0] == "s":
                            chk(wr_valu, r, 2, "valu sgpr->valu")
                        if po.kind == "trans" and o.kind != "trans":
                            chk(wr_valu, r, 1, "trans->valu")
                        if o.mn.startswith("v_permlane") or "_dpp" in o.mn:
                            chk(wr_valu, r, 2, "valu->permlane/dpp")
                        if o.mn.startswith(("v_readfirstlane", "v_readlane")):
                            chk(wr_valu, r, 1, "valu->readlane")
            elif o.kind in ("vld", "ds"):
                for r in o.writes:
                    chk(st_data, r, 1, "store data WAR (load)")
            if o.kind in VM:
                for r in o.reads:
                    if r[0] == "s":
                        chk(wr_valu, r, 5, "valu sgpr->vmem")
                if o.kind == "dma":
                    chk(wr_salu, ("s", "m0"), 1, "m0->dma")
                for r in o.reads:
                    if r in wr_valu and wr_valu[r][2].kind == "trans":
                        chk(wr_valu, r, 1, "trans->vmem")
            if o.kind in ("salu", "branch"):
                for r in o.reads:
                    if r in wr_valu:
                        chk(wr_valu, r, 1, "valu sgpr->salu (pad)")
            if ("s", "scc") in o.reads:
                po = wr_salu.get(("s", "scc"))
                if po is None:
                    self.err(i, "scc read without writer")
                pm = po[2].mn
                ok = pm.startswith("s_add_u32") and idx - po[1] == 1 if o.mn.startswith("s_addc") else pm.startswith("s_cmp")
                if not ok:
                    self.err(i, "scc clobbered by " + po[2].text)
            if o.kind == "branch" and ("s", "vcc") in o.reads:
                po = wr_valu.get(("s", "vcc"))
                if po is None or "_le_i32" in po[2].mn or idx - po[1] > 6:
                    self.err(i, "vcc branch without its compare")
            if o.mn.startswith("v_cndmask"):
                po = wr_valu.get(o.reads[-1])
                if po is None or "_le_i32" not in po[2].mn:
                    self.err(i, "cndmask mask clobbered")
            rec = (now, idx, o)
            for r in o.writes:
                wr_valu.pop(r, None)
                wr_mfma.pop(r, None)
                wr_salu.pop(r, None)
                if isv:
                    wr_valu[r] = rec
                elif o.kind == "mfma":
                    wr_mfma[r] = rec
                elif o.kind == "salu":
                    wr_salu[r] = rec
            if o.kind == "mfma":
                for r in o.srcc:
                    rd_srcc[r] = rec
                last_mfma_t, last_mfma_p = now, o.passes
            if o.kind == "vst" and ("x4" in o.mn or "x3" in o.mn):
                for r in regs_of(o.text.split(None, 1)[1].split(",")[0]):
                    st_data[r] = rec
            s = o.states()
            t += s
            idx += s
        return soft


class Task:
    __slots__ = ("op", "rel", "dl", "preds", "gap", "idx")

    def __init__(self, op, rel, dl, preds=()):
        self.op = Op(op) if isinstance(op, str) else op
        self.rel, self.dl = rel, dl
        self.preds = list(preds)
        self.gap = None


def schedule(S, tasks, start=0):
    N = S.n()
    for i, t in enumerate(tasks):
        t.idx = i
        t.rel = max(0, t.rel)
        t.dl = min(N - 1, t.dl)
    for _ in range(2000):
        ch = False
        for t in tasks:
            for p, d in t.preds:
                if t.rel < p.rel + d:
                    t.rel = p.rel + d
                    ch = True
                if p.dl > t.dl - d:
                    p.dl = t.dl - d
                    ch = True
        if not ch:
            break
    for t in tasks:
        if t.dl < t.rel:
            assert t.rel <= N - 1, (S.name, t.op.text, t.rel, t.dl)
            t.dl = t.rel
    big = lambda t: t.op.kind in ("ds", "trans", "dma", "vld", "vst", "dsw")
    left = list(tasks)

    def ready(t, g):
        if t.rel > g:
            return False
        for p, d in t.preds:
            if p.gap is None or p.gap + d > g:
                return False
            if p.gap == g and p.op.kind in ("valu", "trans") and t.op.kind not in ("valu", "trans"):
                return False
        return True

    def put(t, g):
        S.put(g, t.op)
        t.gap = g
        left.remove(t)

    key = lambda t: (t.dl, t.idx)
    last_dbl = [-8]
    for g in range(start, N):
        while True:
            c = sorted((t for t in left if t.dl <= g and ready(t, g)), key=key)
            if not c:
                break
            put(c[0], g)
        def feasible_without(kind_ds):
            bl = sorted(t.dl for t in left if big(t) and (t.op.kind == "ds") == kind_ds)
            return all(k + 1 <= dl - g for k, dl in enumerate(bl))
        c = sorted((t for t in left if big(t) and ready(t, g)), key=key)
        c0 = [t for t in c if S.extra(g, t.op) <= S.intrinsic(t.op)]
        if c0:
            pick = c0[0]
            prev_ds = g > 0 and any(o.kind == "ds" for o in S.nv[g - 1])
            bl = sorted(t.dl for t in left if big(t))
            alt = [t for t in c0 if (t.op.kind == "ds") != prev_ds]
            if alt and alt[0] is not pick:
                ok = all(k + 1 <= dl - g for k, dl in enumerate(bl) if dl < alt[0].dl)
                if ok:
                    pick = alt[0]
            put(pick, g)
        bl = sorted(t.dl for t in left if big(t))
        over = [(k + 1 - (dl - g), dl) for k, dl in enumerate(bl) if k + 1 > dl - g]
        if over:
            need, dl = max(over, key=lambda x: x[0] / max(1, x[1] - g))
            if (g - last_dbl[0]) * need >= (dl - g) // 1 or dl - g <= 2 * need:
                c = sorted((t for t in left if big(t) and ready(t, g) and t.dl <= dl), key=key)
                has_ds = any(o.kind == "ds" for o in S.nv[g])
                c1 = [t for t in c if S.extra(g, t.op) <= 1 and S.used(g) <= 4 and not (has_ds and t.op.kind == "ds")]
                if c1:
                    put(c1[0], g)
                    last_dbl[0] = g
        while True:
            c = sorted((t for t in left if not big(t) and ready(t, g) and S.extra(g, t.op) == 0), key=key)
            if not c:
                break
            put(c[0], g)
    assert not left, (S.name, [(t.op.text, t.rel, t.dl) for t in left])
```

```python
import sys, struct, argparse
from fw import *

NAME = "parallel_sum__compressed_kv_cla__dense_activation_mish__prompt"
MB = 1 << 20
KB = 1024
XN_RT = 17 * KB
KV_T = 17 * KB
KV_H = 32 * KV_T + 5 * KB
ACT_HD = 17 * KB
ACT_HOFF = 32 * ACT_HD
ACT_RG = ACT_HOFF + 56 * 4096 + 5 * KB
XN_OFF = 0
K_OFF = 3 * MB
V_OFF = 21 * MB + 10 * KB
ACT_OFF = 39 * MB
FLAG_OFF = 66 * MB
HFLAG_OFF = FLAG_OFF + 4096
CFLAG_OFF = FLAG_OFF + 5120
STAMP_OFF = 68 * MB
QDUMP_OFF = 72 * MB
WS_BYTES = 256 * MB

SLOT = [128 * 1024, 0, 32 * 1024]
CST = 64 * 1024
VRING = 0
KRING = 64 * 1024
SPARE = 128 * 1024
LDS_BYTES = 160 * 1024


def f32(x):
    return "0x%08x" % struct.unpack("<I", struct.pack("<f", x))[0]


LOG2E = 1.4426950408889634
SCALE = LOG2E * 128 ** -0.5

pX, pC, pWQ, pWK, pWV, pWO, pBX, pW1, pB1, pW2, pOUT, pDBG, pWS = [4 + 2 * i for i in range(13)]
rW, rC, rWS, rH, rDBG, rX, rV = 32, 36, 40, 44, 48, 52, 56
rK = rC
sB = 2
sWv, sH, sJ = 60, 61, 62
sWp8, sWp1 = 63, 64
sT = [65, 66, 67, 68]
sCb = 69
sM0c, sM0w = 70, 71
sKVst = 72
sRT = [73, 74, 75, 76]
sAct = [77, 78, 79, 80]
sFlagKV, sFlagH, sFlagC = 81, 82, 83
sSC = 84
sTmp, sTmp2 = 85, 86
sSpin = 87
sBad = 88
sKo, sVo = 90, 91
sMc, sMn = 92, 93
sCnt = 94
sFb = 95
sStamp = 96
sMask = 98
sPollKV = 3
sL2E = 30
sWp1b = 31
sPC = 16
sKa, sKb, sVa, sVb = 98, 99, 100, 101
sM0j = 88
sR = 89


def srd(r):
    return f"s[{r}:{r+3}]"


def vr(b, n=4):
    return f"v[{b}:{b+n-1}]" if n > 1 else f"v{b}"


def ar(b, n=4):
    return f"a[{b}:{b+n-1}]" if n > 1 else f"a{b}"


vSel0 = 0
vL16 = 1
vW8, vW1 = 2, 3
vCD = [4, 5]
vCR = [6, 7]
vWRa = [8, 9, 10, 11]
vWRb = [12, 13, 14, 15]
B0, B1, B2 = 16, 80, 144
WF = 208
T0 = 240

MF = "v_mfma_f32_16x16x32_bf16"
MF32 = "v_mfma_f32_32x32x16_bf16"
vKc, vKn, vVc, vVn = 4, 5, 6, 7
SB = B2
BANK = B2 + 16
NEG = {1: B2 + 32, 2: B2 + 36, 3: B2 + 40}
NEG3L = B2 + 44
NEG0 = B2 + 48
MX = B2 + 52
ZERO, ONES = WF, WF + 4
ET = WF + 8
Z0, Z1, NINF, vP, vA, vD, Zt, Zu = [T0 + 8 + i for i in range(8)]
aO, aL, aK, aV = 0, 128, 144, 176
sMA, sMB = 98, 100
LAT = 7
vR = [8, 9, 10, 11]
vDm = [12, 13, 14, 15]
vAo = [B2 + 60 + i for i in range(4)]
AR = B0
WF2 = B2
sRG, sCG = sRT[0], sRT[1]
sActH, sActC = sRT[2], sRT[3]
sW2b, sWob = sWp8, sWp1
sM0p = sCb
sPollH = sKVst
sPollC = 70
vTA, vTW = 2, 3


def Qf(t, u):
    return B1 + 32 * (u & 1) + 16 * (u >> 1) + 4 * t


def Pf(par, t, kg):
    return B0 + 32 * par + 8 * t + 4 * kg


def negsrc(t):
    return NEG0 if t == 0 else NEG[t]


class Gen:
    def __init__(self, a):
        self.a = a
        self.blocks = []
        self.ool = []
        self.nstamp = 0
        self.rot = 0
        self.m0 = None
        self.nct = 0

    def st(self):
        self.rot = (self.rot + 1) % 4
        return sT[self.rot]

    def stamp_ops(self):
        if not self.a.stamps or self.a.lite:
            return []
        i = self.nstamp
        self.nstamp += 1
        if self.a.rt:
            return [Op(f"s_memrealtime s[{sStamp}:{sStamp+1}]"), Op("s_waitcnt lgkmcnt(0)"), Op(f"s_mul_i32 s{sStamp}, s{sStamp}, 4"),
                    Op(f"s_bitset1_b32 s{sStamp}, 31"), Op(f"s_bitset0_b32 s{sStamp}, 30"),
                    Op(f"v_writelane_b32 v{vSel0}, s{sStamp}, {i + 1}")]
        return [Op(f"s_memtime s[{sStamp}:{sStamp+1}]"), Op("s_waitcnt lgkmcnt(0)"),
                Op(f"s_bitset1_b32 s{sStamp}, 31"), Op(f"s_bitset0_b32 s{sStamp}, 30"), Op(f"s_bitset0_b32 s{sStamp}, 0"), Op(f"s_bitset0_b32 s{sStamp}, 1"),
                Op(f"v_writelane_b32 v{vSel0}, s{sStamp}, {i + 1}")]

    def rt_ops(self, lane):
        if not self.a.stamps:
            return []
        return [Op(f"s_memrealtime s[{sStamp}:{sStamp+1}]"), Op("s_waitcnt lgkmcnt(0)"), Op(f"s_lshl_b32 s{sStamp}, s{sStamp}, 2"),
                Op(f"s_bitset1_b32 s{sStamp}, 31"), Op(f"s_bitset0_b32 s{sStamp}, 30"),
                Op(f"v_writelane_b32 v{vSel0}, s{sStamp}, {lane}")]

    def set_m0(self, text):
        if text == self.m0:
            return []
        self.m0 = text
        return [Op(text)]

    def mk_srd(self, e, r, p, nbytes):
        e(f"s_mov_b32 s{r}, s{p}")
        e(f"s_mov_b32 s{r+1}, s{p+1}")
        e(f"s_mov_b32 s{r+2}, {nbytes}")
        e(f"s_mov_b32 s{r+3}, 0x20000")

    def w_dma(self, n, i):
        slot = (n + 2) % 3
        ops = []
        if i == 0 and n in (4, 8, 10):
            p = {4: pWV, 8: pW1, 10: pWQ}[n]
            ops += [Op(f"s_mov_b32 s{rW}, s{p}"), Op(f"s_mov_b32 s{rW+1}, s{p+1}")]
            if n == 8:
                ops.append(Op(f"s_min_u32 s{rW+2}, s{rH+2}, {512*3584}"))
            if n == 10:
                s = self.st()
                ops += [Op(f"s_mov_b32 s{rW+2}, {4*MB}"), Op(f"s_lshr_b32 s{s}, s{sR}, 1"), Op(f"s_lshl_b32 s{s}, s{s}, 18"),
                        Op(f"s_xor_b32 s{sWp8}, s{sWp8}, s{s}"), Op(f"s_lshr_b32 s{s}, s{sWv}, 1"),
                        Op(f"s_mul_i32 s{s}, s{s}, {(1 << 20) + (1 << 7)}"), Op(f"s_xor_b32 s{sWp8}, s{sWp8}, s{s}")]
        s = self.st()
        wr = [(("W", slot), ("W", n), True)]
        if n == 2:
            wr += [(("X", 0), ("W", n), False), (("X", 1), ("W", n), False)]
        if n in (8, 9):
            ops += self.set_m0(f"s_add_u32 m0, s{sM0w}, {SLOT[slot] + (i >> 2) * 4096}")
            off = (n - 8) * 256 * 3584 + (16 * ((i >> 1) & 1) + 4 * (i & 1)) * 3584 - (i & 3) * 1024
            ops.append(Op(f"s_add_u32 s{s}, s{sWp1b if i >> 2 else sWp1}, {off}"))
            ops.append(Op(f"buffer_load_dwordx4 v{vW1}, {srd(rW)}, s{s} offen offset:{(i & 3) * 1024}{self.a.wld} lds", lds_wr=wr))
        else:
            base = (n % 4) << 20 if n < 8 else ((n & 1) << 21) + (((n - 10) >> 1) << 7)
            ops += self.set_m0(f"s_xor_b32 m0, s{sM0j}, {SLOT[slot] + i * 1024}")
            ops.append(Op(f"s_xor_b32 s{s}, s{sWp8}, {base + (16 * (i >> 1) + 4 * (i & 1)) * 8192}"))
            fl = self.a.lead if (i == 0 and n < 2) else self.a.wld
            ops.append(Op(f"buffer_load_dwordx4 v{vW8}, {srd(rW)}, s{s} offen{fl} lds", lds_wr=wr))
        return ops

    def c_region(self, u):
        if u < 4:
            return ("C", u)
        if u == 4:
            return ("X", 1)
        return ("C", (u - 5) % 4)

    def c_dma(self, u):
        kq, p0, p1 = u >> 2, u & 1, (u >> 1) & 1
        reg = self.c_region(u)
        s, s2 = self.st(), self.st()
        if reg[0] == "C":
            m = f"s_add_u32 m0, s{sM0c}, {CST + reg[1] * 4096}"
        else:
            m = f"s_add_u32 m0, s{sM0w}, {SLOT[1] + reg[1] * 4096}"
        ops = self.set_m0(m)
        ops += [Op(f"s_xor_b32 s{s}, s{sCb}, {(p1 << 15) + (kq << 8) + (p0 << 7)}"), Op(f"s_add_u32 s{s2}, s{s}, 14336")]
        for q in range(4):
            ops.append(Op(f"buffer_load_dwordx4 v{vCD[q & 1]}, {srd(rC)}, s{s2 if q >> 1 else s} offen offset:{q * 1024} lds",
                          lds_wr=(reg, ("c", u), False)))
        return ops

    def c_reads(self, u):
        kq, p0, p1 = u >> 2, u & 1, (u >> 1) & 1
        reg = self.c_region(u)
        ops = []
        for t in range(2):
            for sb in range(2):
                a = vCR[sb] if reg[0] == "C" else T0 + 14 + sb
                ops.append(Op(f"ds_read_b128 {ar(64*kq + 16*(2*p1 + t) + 4*(2*p0 + sb))}, v{a} offset:{reg[1] * 4096 + t * 2048}",
                              lds_rd=(reg, ("c", u), False)))
        return ops

    def w_reads(self, G):
        n, gi = G >> 3, G & 7
        slot = (n + 2) % 3
        hf, c4 = gi >> 2, gi & 3
        a = (vWRb if slot == 0 else vWRa)[c4]
        base = (0 if slot == 0 else SLOT[slot]) + hf * 16384
        ops = []
        for s in range(4):
            for hh in range(2):
                d = WF + 16 * (G & 1) + 4 * s + 2 * hh
                ops.append(Op(f"ds_read_b64_tr_b16 {vr(d, 2)}, v{a} offset:{base + s * 4096 + hh * 1024}",
                              lds_rd=(("W", slot), ("W", n), True)))
        return ops

    def code_touch(self, vt, vd, skip):
        self.nct += 1
        lab = f"L_pc{self.nct}"
        val = [f"v_lshrrev_b32 v{vt}, 9, v{vL16}", f"v_lshlrev_b32 v{vt}, 14, v{vt}", f"v_lshl_add_u32 v{vt}, s{sWv}, 7, v{vt}",
               f"v_lshrrev_b32 v{vd}, 3, s{sB}", f"v_lshl_add_u32 v{vt}, v{vd}, 9, v{vt}", f"v_add_u32 v{vt}, {skip}, v{vt}",
               f"v_min_u32 v{vt}, L_code_end-{lab}-4, v{vt}"]
        o = Op(f"s_getpc_b64 s[{sPC}:{sPC+1}]")
        o.text += f"\n{lab}:"
        return val, [o, Op(f"global_load_dword v{vd}, v{vt}, s[{sPC}:{sPC+1}]")]

    def pad_m0(self, ops):
        out = []
        for o in ops:
            if o.kind == "dma" and out and ("s", "m0") in out[-1].writes:
                out.append(Op("s_nop 0"))
            out.append(o)
        return out

    def poll(self, name, load_text, cmp_text, expect=None, after=None):
        p = Plain("spin_" + name)
        p.e(f"L_spin_{name}:")
        p.e(f"s_mov_b32 s{sSpin}, 0")
        p.e(f"L_spin2_{name}:")
        p.e("s_sleep 4")
        p.e(load_text)
        p.e(f"s_add_u32 s{sSpin}, s{sSpin}, 1")
        p.e(f"s_cmp_gt_u32 s{sSpin}, 200000")
        p.e("s_waitcnt vmcnt(0)")
        p.e(f"s_cbranch_scc1 L_back_{name}")
        p.e(cmp_text)
        p.e("s_nop 1")
        p.e(f"s_cbranch_vccnz L_spin2_{name}")
        p.e(f"s_branch L_back_{name}")
        self.ool.append(p)
        return (Op(load_text, expect=expect, after=after), [W(vm=True), Op(cmp_text, expect={("v", vP): load_text})],
                [Op(f"s_cbranch_vccnz L_spin_{name}", expect=expect), Op(f"L_back_{name}:")])

    def prologue(self):
        p = Plain("prologue")
        e = p.e
        e(f"s_cmp_ge_u32 s{sB}, 256")
        e("s_cbranch_scc1 L_end")
        e("s_load_dwordx16 s[4:19], s[0:1], 0")
        e("s_load_dwordx8 s[20:27], s[0:1], 64")
        e("s_load_dwordx2 s[28:29], s[0:1], 96")
        t = T0
        if self.a.ctouch:
            e(f"s_getpc_b64 s[{sStamp}:{sStamp+1}]")
            e("L_pc:")
            e(f"s_lshr_b32 s{sTmp}, s{sB}, 3")
            e(f"s_lshl_b32 s{sTmp}, s{sTmp}, 9")
            e(f"v_and_b32 v{t+6}, 7, v0")
            e(f"v_lshl_add_u32 v{t+11}, v{t+6}, 14, s{sTmp}")
            e(f"v_and_b32 v{t+6}, 0xc0, v0")
            e(f"v_lshl_add_u32 v{t+11}, v{t+6}, 1, v{t+11}")
            e(f"v_min_u32 v{t+11}, L_code_end-L_pc-4, v{t+11}")
            e(f"global_load_dword v{B2+63}, v{t+11}, s[{sStamp}:{sStamp+1}]")
        e(f"v_lshrrev_b32 v{t}, 6, v0")
        e(f"v_and_b32 v{t+1}, 63, v0")
        e(f"v_readfirstlane_b32 s{sWv}, v{t}")
        e(f"v_lshlrev_b32 v{vL16}, 4, v{t+1}")
        e(f"v_min_u32 v0, 1, v0")
        e(f"v_lshlrev_b32 v{vSel0}, 28, v0")
        for o in self.rt_ops(62) + self.stamp_ops():
            e(o)
        e(f"s_and_b32 s{sH}, s{sB}, 7")
        e(f"s_lshl_b32 s{sH}, s{sH}, 2")
        e(f"s_bfe_u32 s{sTmp}, s{sB}, 0x20003")
        e(f"s_add_u32 s{sH}, s{sH}, s{sTmp}")
        e(f"s_lshr_b32 s{sJ}, s{sB}, 5")
        e(f"v_and_b32 v{t+2}, 31, v{t+1}")
        e(f"v_lshrrev_b32 v{t+3}, 5, v{t+1}")
        e(f"v_lshlrev_b32 v{t+4}, 10, v{t+3}")
        e(f"v_lshl_add_u32 v{t+4}, v{t+2}, 4, v{t+4}")
        e(f"s_lshl_b32 s{sTmp}, s{sB}, 13")
        e(f"s_lshl_b32 s{sTmp2}, s{sWv}, 11")
        e(f"s_add_u32 s{sTmp}, s{sTmp}, s{sTmp2}")
        e(f"v_lshrrev_b32 v{t+5}, 3, v{t+1}")
        e(f"v_and_b32 v{t+6}, 7, v{t+1}")
        e(f"v_lshrrev_b32 v{t+7}, 4, v{t+1}")
        e(f"v_xor_b32 v{t+8}, v{t+6}, v{t+7}")
        e(f"v_lshlrev_b32 v{t+8}, 4, v{t+8}")
        e(f"v_lshl_add_u32 v{vCD[0]}, v{t+5}, 10, v{t+8}")
        e(f"v_xor_b32 v{vCD[1]}, 64, v{vCD[0]}")
        e(f"v_add_u32 v{vCD[1]}, {8192 - 1024}, v{vCD[1]}")
        e(f"s_lshl_b32 s{sCb}, s{sJ}, 18")
        e(f"s_lshl_b32 s{sTmp2}, s{sWv}, 16")
        e(f"s_add_u32 s{sCb}, s{sCb}, s{sTmp2}")
        e(f"s_and_b32 s{sR}, s{sH}, {self.a.rmask}")
        e(f"s_mul_i32 s{sTmp2}, s{sR}, {(1 << 14) + (1 << 7)}")
        e(f"s_and_b32 s{sTmp2}, s{sTmp2}, {(1 << 15) + (1 << 7)}")
        e(f"s_add_u32 s{sCb}, s{sCb}, s{sTmp2}")
        e(f"s_lshl_b32 s{sM0c}, s{sWv}, 14")
        e(f"s_lshl_b32 s{sM0w}, s{sWv}, 13")
        e(f"s_and_b32 s{sSpin}, s{sJ}, {self.a.jmask}")
        e(f"s_lshl_b32 s{sM0j}, s{sSpin}, 10")
        e(f"s_add_u32 s{sM0j}, s{sM0j}, s{sM0w}")
        e(f"v_and_b32 v{t+9}, 3, v{t+5}")
        e(f"v_lshl_add_u32 v{t+9}, v{t+3}, 3, v{t+9}")
        e(f"v_lshlrev_b32 v{t+10}, 1, v{t+7}")
        e(f"v_xor_b32 v{t+10}, v{t+10}, v{t+6}")
        e(f"v_lshlrev_b32 v{t+10}, 4, v{t+10}")
        e(f"v_lshl_add_u32 v{vW8}, v{t+9}, 13, v{t+10}")
        e(f"v_mul_u32_u24 v{vW1}, 3584, v{t+9}")
        e(f"v_add_u32 v{vW1}, v{vW1}, v{t+10}")
        e(f"s_xor_b32 s{sWp8}, s{sWv}, s{sR}")
        e(f"s_and_b32 s{sWp8}, s{sWp8}, 1")
        e(f"s_lshl_b32 s{sWp8}, s{sWp8}, 19")
        e(f"s_and_b32 s{sTmp2}, s{sSpin}, 1")
        e(f"s_lshl_b32 s{sTmp2}, s{sTmp2}, 15")
        e(f"s_add_u32 s{sWp8}, s{sWp8}, s{sTmp2}")
        e(f"s_lshr_b32 s{sTmp2}, s{sSpin}, 1")
        e(f"s_lshl_b32 s{sTmp2}, s{sTmp2}, 17")
        e(f"s_add_u32 s{sWp8}, s{sWp8}, s{sTmp2}")
        e(f"s_lshr_b32 s{sTmp2}, s{sWv}, 1")
        e(f"s_lshl_b32 s{sTmp2}, s{sTmp2}, 7")
        e(f"s_add_u32 s{sWp8}, s{sWp8}, s{sTmp2}")
        e(f"s_lshl_b32 s{sTmp2}, s{sH}, 8")
        e(f"s_add_u32 s{sWp8}, s{sWp8}, s{sTmp2}")
        e("s_waitcnt lgkmcnt(0)")
        ps = lambda: [e(o) for o in (self.stamp_ops() if self.a.prostamps else [])]
        ps()
        self.mk_srd(e, rX, pX, 2 * MB)
        X = B2
        e(f"buffer_load_dwordx4 {vr(X)}, v{t+4}, {srd(rX)}, s{sTmp} offen{self.a.xld}")
        e(f"buffer_load_dwordx4 {vr(X+4)}, v{t+4}, {srd(rX)}, s{sTmp} offen offset:512{self.a.xld}")
        self.mk_srd(e, rC, pC, 2 * MB)
        self.mk_srd(e, rW, pWK, 4 * MB)
        if self.a.win1:
            e(f"s_lshl_b32 s{sTmp}, s{sJ}, 5")
            e(f"s_add_u32 s{sTmp}, s{sTmp}, s{sH}")
            e(f"s_lshl_b32 s{sTmp}, s{sTmp}, 2")
            e(f"s_add_u32 s{sTmp}, s{sTmp}, s{sWv}")
            e(f"s_lshl_b32 s{sTmp}, s{sTmp}, 11")
            e(f"v_and_b32 v{t+11}, 15, v{t+1}")
            e(f"v_lshlrev_b32 v{t+11}, 7, v{t+11}")
            e(f"buffer_load_dword v{B2+62}, v{t+11}, {srd(rC)}, s{sTmp} offen")
            for o in self.pad_m0(self.w_dma(0, 0) + self.w_dma(1, 0)):
                e(o)
            e(f"v_and_b32 v{t+11}, 1, v{t+1}")
            e(f"v_lshlrev_b32 v{t+11}, 20, v{t+11}")
            e(f"v_lshl_add_u32 v{t+11}, v{t+9}, 13, v{t+11}")
            e(f"s_add_u32 s{sTmp}, s{sWp8}, {2 << 20}")
            e(f"buffer_load_dword v{B2+61}, v{t+11}, {srd(rW)}, s{sTmp} offen{self.a.t23}")
            later = [lambda: self.c_dma(0), lambda: self.c_dma(1)]
        else:
            for o in self.pad_m0(self.w_dma(0, 0) + self.c_dma(0)):
                e(o)
            later = [lambda: self.c_dma(1)]
        later += [lambda i=i: self.w_dma(0, i) for i in range(1, 4)] + [lambda: self.c_dma(2)]
        later += [lambda i=i: self.w_dma(0, i) for i in range(4, 8)] + [lambda: self.c_dma(3)]
        for o in self.stamp_ops():
            e(o)
        mark = len(p.ops)
        self.mk_srd(e, rWS, pWS, WS_BYTES)
        self.mk_srd(e, rDBG, pDBG, 256)
        self.mk_srd(e, rH, pWS, WS_BYTES)
        e(f"s_cmp_lt_u32 s{sH}, 28")
        e(f"s_cselect_b32 s{rH+2}, s{rH+2}, 0")
        e(f"s_lshl_b32 s{sPollKV}, s{sH}, 7")
        e(f"s_add_u32 s{sPollKV}, s{sPollKV}, {FLAG_OFF}")
        e(f"s_lshl_b32 s{sTmp}, s{sJ}, 2")
        e(f"s_add_u32 s{sFlagKV}, s{sPollKV}, s{sTmp}")
        e(f"s_lshl_b32 s{sTmp}, s{sJ}, 5")
        e(f"s_add_u32 s{sTmp}, s{sTmp}, s{sH}")
        e(f"s_lshl_b32 s{sFlagH}, s{sTmp}, 2")
        e(f"s_add_u32 s{sFlagH}, s{sFlagH}, {HFLAG_OFF}")
        e(f"s_lshr_b32 s{sTmp}, s{sTmp}, 3")
        e(f"s_lshl_b32 s{sFlagC}, s{sTmp}, 7")
        e(f"s_add_u32 s{sFlagC}, s{sFlagC}, {CFLAG_OFF}")
        e(f"s_cmp_lt_u32 s{sB}, 72")
        e(f"s_cselect_b32 s{sTmp}, s{sWv}, 1")
        e(f"v_or_b32 v{t+11}, s{sTmp}, v{t+3}")
        e(f"v_lshlrev_b32 v{t+11}, 28, v{t+11}")
        e(f"v_lshl_add_u32 v{t+11}, v{t+2}, 2, v{t+11}")
        e(f"v_mov_b32 v{t+12}, 0")
        e(f"s_lshl_b32 s{sTmp}, s{sB}, 7")
        e(f"s_add_u32 s{sTmp}, s{sTmp}, {FLAG_OFF}")
        e(f"buffer_store_dword v{t+12}, v{t+11}, {srd(rWS)}, s{sTmp} offen sc1", tag="clr")
        e(f"s_and_b32 s{sTmp}, s{sR}, 1")
        e(f"s_xor_b32 s{sTmp}, s{sTmp}, s{sWv}")
        e(f"s_mul_i32 s{sWp1}, s{sTmp}, {64 * 3584}")
        e(f"s_lshl_b32 s{sTmp}, s{sH}, 7")
        e(f"s_add_u32 s{sWp1}, s{sWp1}, s{sTmp}")
        e(f"s_lshr_b32 s{sTmp}, s{sR}, 1")
        e(f"s_mul_i32 s{sTmp}, s{sTmp}, {32 * 3584}")
        e(f"s_sub_u32 s{sWp1b}, s{sWp1}, s{sTmp}")
        e(f"s_add_u32 s{sWp1b}, s{sWp1b}, {32 * 3584}")
        e(f"s_add_u32 s{sWp1}, s{sWp1}, s{sTmp}")
        e(f"s_mul_i32 s{sKVst}, s{sH}, {KV_H}")
        e(f"s_lshl_b32 s{sTmp}, s{sJ}, 2")
        e(f"s_add_u32 s{sTmp}, s{sTmp}, s{sWv}")
        e(f"s_mul_i32 s{sTmp}, s{sTmp}, {KV_T}")
        e(f"s_add_u32 s{sKVst}, s{sKVst}, s{sTmp}")
        e(f"s_lshr_b32 s{sTmp}, s{sR}, 1")
        e(f"s_lshl_b32 s{sTmp2}, s{sTmp}, 13")
        e(f"s_add_u32 s{sKa}, s{sKVst}, s{sTmp2}")
        e(f"s_sub_u32 s{sKb}, s{sKVst}, s{sTmp2}")
        e(f"s_lshl_b32 s{sTmp2}, s{sTmp}, 10")
        e(f"s_add_u32 s{sVa}, s{sKVst}, s{sTmp2}")
        e(f"s_sub_u32 s{sVb}, s{sKVst}, s{sTmp2}")
        e(f"s_lshl_b32 s{sTmp}, s{sJ}, 3")
        e(f"s_add_u32 s{sRT[0]}, s{sTmp}, s{sWv}")
        e(f"s_sub_u32 s{sRT[1]}, s{sTmp}, s{sWv}")
        e(f"s_add_u32 s{sRT[1]}, s{sRT[1]}, 7")
        e(f"s_sub_u32 s{sRT[2]}, 127, s{sRT[1]}")
        e(f"s_sub_u32 s{sRT[3]}, 127, s{sRT[0]}")
        for i in range(4):
            e(f"s_lshr_b32 s{sTmp}, s{sRT[i]}, 2")
            e(f"s_mul_i32 s{sAct[i]}, s{sTmp}, {ACT_RG}")
            e(f"s_and_b32 s{sTmp}, s{sRT[i]}, 3")
            e(f"s_lshl_b32 s{sTmp}, s{sTmp}, 10")
            e(f"s_add_u32 s{sAct[i]}, s{sAct[i]}, s{sTmp}")
            e(f"s_add_u32 s{sAct[i]}, s{sAct[i]}, {ACT_OFF}")
            e(f"s_mul_i32 s{sRT[i]}, s{sRT[i]}, {XN_RT}")
        e(f"s_mov_b32 s{sSC}, {f32(SCALE)}")
        e(f"s_mov_b32 s{sL2E}, {f32(LOG2E)}")
        e(f"s_mov_b32 s{sFb}, 0")
        e(f"v_and_b32 v{t+11}, 15, v{t+1}")
        e(f"v_lshrrev_b32 v{t+12}, 1, v{t+11}")
        e(f"v_xor_b32 v{t+12}, v{t+12}, v{t+7}")
        e(f"v_lshlrev_b32 v{t+12}, 4, v{t+12}")
        e(f"v_lshl_add_u32 v{t+12}, v{t+11}, 7, v{t+12}")
        e(f"v_xor_b32 v{t+13}, 64, v{t+12}")
        e(f"s_add_u32 s{sTmp}, s{sM0c}, {CST}")
        e(f"v_add_u32 v{vCR[0]}, s{sTmp}, v{t+12}")
        e(f"v_add_u32 v{vCR[1]}, s{sTmp}, v{t+13}")
        e(f"v_add_u32 v{t+14}, s{sM0w}, v{t+12}")
        e(f"v_add_u32 v{t+15}, s{sM0w}, v{t+13}")
        e(f"v_bfe_u32 v{t+12}, v{t+1}, 2, 3")
        e(f"v_lshlrev_b32 v{t+13}, 7, v{t+12}")
        e(f"v_lshl_add_u32 v{t+13}, v{t+3}, 11, v{t+13}")
        e(f"v_and_b32 v{t+11}, 3, v{t+1}")
        e(f"v_lshl_add_u32 v{t+13}, v{t+11}, 3, v{t+13}")
        e(f"v_lshrrev_b32 v{t+12}, 1, v{t+12}")
        e(f"v_lshl_add_u32 v{vWRa[0]}, v{t+12}, 5, v{t+13}")
        for c in range(1, 4):
            e(f"v_xor_b32 v{vWRa[c]}, {c * 32}, v{vWRa[0]}")
        for c in range(4):
            e(f"v_add_u32 v{vWRb[c]}, {SLOT[0]}, v{vWRa[c]}")
        e(f"v_lshrrev_b32 v{t+12}, 4, v{t+2}")
        e(f"v_lshlrev_b32 v{t+12}, 13, v{t+12}")
        e(f"v_and_b32 v{t+11}, 15, v{t+2}")
        e(f"v_lshl_add_u32 v{t+12}, v{t+11}, 7, v{t+12}")
        e(f"v_lshl_add_u32 v{t+12}, v{t+3}, 4, v{t+12}")
        e(f"s_lshl_b32 s{sTmp}, s{sWv}, 5")
        e(f"v_add_u32 v{t+12}, s{sTmp}, v{t+12}")
        e(f"v_lshlrev_b32 v{t+13}, 4, v{t+6}")
        e(f"v_lshl_add_u32 v{t+13}, v{t+5}, 8, v{t+13}")
        e(f"v_add_u32 v{t+11}, s{sM0w}, v{vL16}")
        e(f"s_lshr_b32 s{sTmp}, s{sB}, 1")
        e(f"s_mul_i32 s{sTmp}, s{sTmp}, {XN_RT}")
        e(f"s_and_b32 s{sTmp2}, s{sB}, 1")
        e(f"s_lshl_b32 s{sTmp2}, s{sTmp2}, 7")
        e(f"s_add_u32 s{sTmp}, s{sTmp}, s{sTmp2}")
        e(f"s_lshl_b32 s{sTmp2}, s{sWv}, 12")
        e(f"s_add_u32 s{sTmp}, s{sTmp}, s{sTmp2}")
        F = X + 8
        D = X + 24
        a, b2 = X + 40, X + 41
        ps()
        e(W(vm=True))
        ps()
        for i in range(8):
            e(f"v_lshlrev_b32 v{F+2*i}, 16, v{X+i}")
            e(f"v_and_b32 v{F+2*i+1}, 0xffff0000, v{X+i}")

        def rowsum(src):
            for i in range(8):
                e(f"v_add_f32 v{X+44+i}, v{src+2*i}, v{src+2*i+1}")
            for i in range(4):
                e(f"v_add_f32 v{X+44+i}, v{X+44+i}, v{X+48+i}")
            e(f"v_add_f32 v{X+44}, v{X+44}, v{X+46}")
            e(f"v_add_f32 v{X+45}, v{X+45}, v{X+47}")
            e(f"v_add_f32 v{a}, v{X+44}, v{X+45}")
            for m in ("quad_perm:[1,0,3,2]", "quad_perm:[2,3,0,1]", "row_half_mirror", "row_mirror"):
                e("s_nop 1")
                e(f"v_add_f32_dpp v{a}, v{a}, v{a} {m} row_mask:0xf bank_mask:0xf")
            e(f"v_mov_b32 v{b2}, v{a}")
            e("s_nop 1")
            e(f"v_permlane16_swap_b32 v{a}, v{b2}")
            e(f"v_add_f32 v{a}, v{a}, v{b2}")
            e(f"v_mul_f32 v{a}, {f32(1 / 512)}, v{a}")

        def rnd(r):
            e(f"v_cvt_pk_bf16_f32 v{r}, v{r}, v{r}")
            e(f"v_and_b32 v{r}, 0xffff0000, v{r}")
        rowsum(F)
        mean = X + 42
        e(f"v_mov_b32 v{mean}, v{a}")
        for i in range(16):
            e(f"v_sub_f32 v{D+i}, v{F+i}, v{a}")
        for i in range(16):
            e(f"v_mul_f32 v{D+i}, v{D+i}, v{D+i}")
        rowsum(D)
        rnd(a)
        rnd(mean)
        e(f"v_add_f32 v{a}, {f32(1e-5)}, v{a}")
        rnd(a)
        e(f"v_sqrt_f32 v{a}, v{a}")
        for i in range(16):
            e(f"v_sub_f32 v{F+i}, v{F+i}, v{mean}")
        rnd(a)
        e(f"v_rcp_f32 v{a}, v{a}")
        for i in range(8):
            e(f"v_cvt_pk_bf16_f32 v{X+i}, v{F+2*i}, v{F+2*i+1}")
        for i in range(8):
            e(f"v_lshlrev_b32 v{F+2*i}, 16, v{X+i}")
            e(f"v_and_b32 v{F+2*i+1}, 0xffff0000, v{X+i}")
        for i in range(16):
            e(f"v_mul_f32 v{F+i}, v{F+i}, v{a}")
        for i in range(8):
            e(f"v_cvt_pk_bf16_f32 v{X+i}, v{F+2*i}, v{F+2*i+1}")
        body = p.ops[mark:]
        del p.ops[mark:]
        groups = []
        for f in later:
            cur = []
            for o in self.pad_m0(f()):
                cur.append(o)
                if o.kind == "dma":
                    groups.append(cur)
                    cur = []
        quick = self.a.quick
        step = len(body) / (len(groups) - quick + 1)
        gi = 0
        for k, o in enumerate(body):
            while gi < len(groups) and k >= (gi - quick + 1) * step and ("s", "scc") not in o.reads:
                p.ops += groups[gi]
                gi += 1
            p.ops.append(o)
        assert gi == len(groups)
        ps()
        e(f"ds_write_b128 v{t+12}, {vr(X)} offset:{SLOT[1]}", lds_wr=(("X", 0), "ln", True))
        e(f"ds_write_b128 v{t+12}, {vr(X+4)} offset:{SLOT[1] + 16384}", lds_wr=(("X", 0), "ln", True))
        early = ([] if self.a.win1 else self.w_dma(1, 0)) + self.c_dma(4)
        for i in range(1, self.a.w1early):
            early += self.w_dma(1, i)
        for o in self.pad_m0(early):
            e(o)
        for o in self.stamp_ops():
            e(o)
        e(W(vm=True, lg=True))
        e("s_barrier")
        for o in self.stamp_ops():
            e(o)
        for o in self.w_reads(0) + self.c_reads(0):
            e(o)
        e(W(lg=True))
        for o in self.c_reads(1) + self.c_reads(2) + self.c_reads(3):
            e(o)
        e(W(lg=True))
        return p

    def acc(self, n, c, rt):
        base = B0 if n < 10 else (B1 if n < 12 else B2)
        return base + 16 * c + 4 * rt

    def proj(self):
        S = Seg("proj")
        A = self.a
        BIASR, BIAS = T0, T0 + 8
        NG = 14 * 8
        for G in range(NG):
            n, gi = G >> 3, G & 7
            if n >= 8:
                kq, c = 2 * (n & 1) + (gi >> 2), gi & 3
            else:
                kq, c = n % 4, gi
            for rt in range(4):
                d = vr(self.acc(n, c, rt))
                for s in range(4):
                    w = vr(WF + 16 * (G & 1) + 4 * s)
                    x = ar(64 * kq + 16 * rt + 4 * s)
                    cc = d
                    if kq == 0 and s == 0:
                        cc = vr(BIAS + 4 * (c & 1)) if n == 8 else "0"
                    if 4 <= n < 8:
                        S.mfma(f"{MF} {d}, {x}, {w}, {cc}")
                    else:
                        S.mfma(f"{MF} {d}, {w}, {x}, {cc}")
        RG = [0, 1, 2, 4, 5, 6, 8, 9]
        for G in range(NG - 1):
            for i, o in enumerate(self.w_reads(G + 1)):
                S.put(16 * G + RG[i], o)
            if (G + 1) % 8 == 7:
                S.put(16 * G + 15, W(vm=True, lg=True))
                S.put(16 * G + 15, "s_barrier")
                if A.finestamps:
                    for o in self.stamp_ops():
                        S.put(16 * G + 15, o)
            else:
                w = W(lg=True)
                if G % 8 == 2:
                    w.vm = 36
                S.put(16 * G + 15, w)
        bar_gap = lambda n: 16 * (8 * n + 6) + 15
        gp = lambda x: int(16 * x)
        jobs = []
        pos = {}
        J = lambda rel, f, name=None: jobs.append((rel, f, name))
        X = B2
        S.put(10, Op(f"ds_read_b128 {vr(X)}, v{T0+11} offset:{SLOT[1]}", lds_rd=(("X", 0), "ln", True)))
        S.put(12, Op(f"ds_read_b128 {vr(X+4)}, v{T0+11} offset:{SLOT[1] + 1024}", lds_rd=(("X", 0), "ln", True)))
        J(gp(2), lambda: [Op(f"buffer_store_dwordx4 {vr(X)}, v{T0+13}, {srd(rWS)}, s{sTmp} offen sc1"),
                          Op(f"buffer_store_dwordx4 {vr(X+4)}, v{T0+13}, {srd(rWS)}, s{sTmp} offen offset:2048 sc1", tag="xn")], "xnst")
        CR = {4: 1, 5: 4.5, 6: 5.7, 7: 6.8}
        CR.update({u: 2 * (u - 4) + 0.5 - (0.5 if u & 3 == 3 else 0) for u in range(8, 16)})
        cpos = [16 * G + k for G in range(1, 24) for k in (10, 12, 13)]
        cdone = {}
        ci = 0
        for u in range(4, 16):
            while cpos[ci] < gp(CR[u]):
                ci += 1
            S.put(cpos[ci], W(vm=True))
            for o in self.c_reads(u):
                S.put(cpos[ci], o)
                cdone[u] = cpos[ci]
                ci += 1
            assert cdone[u] < 128 * (u >> 2), (u, cdone[u])
        J(0, lambda: self.c_dma(5))
        J(1, lambda: self.c_dma(6))
        for i in range(A.w1early, 8):
            J(gp(2) + 1, lambda i=i: self.w_dma(1, i))
        J(gp(2) + 2, lambda: self.c_dma(7))
        for u in range(8, 16):
            rel = gp(CR[u] - A.clead)
            if u >= 9:
                rel = max(rel, (cdone[u - 4] + 6) // 16 * 16 + 16)
            J(max(rel, gp(2) + 3), lambda u=u: self.c_dma(u))
        wrel = 0
        for n in range(2, 14):
            for i in range(8):
                if n < 4:
                    G = 8 * (n - 1) + 6 - A.wlead - 7 + i
                else:
                    G = A.wstart[n - 4] + i * A.wstep[n - 4]
                wrel = max(wrel, gp(G), bar_gap(n - 3) + 1 if n > 2 else 0)
                J(wrel, lambda n=n, i=i: self.w_dma(n, i), f"w{n}")
        S.flow([f"v_lshrrev_b32 v{vA}, 8, v{vL16}", f"v_lshlrev_b32 v{vA}, 3, v{vA}"], gp(8), gp(12))

        def fb():
            s = self.st()
            return [Op(f"s_mov_b32 s{rX}, s{pB1}"), Op(f"s_mov_b32 s{rX+1}, s{pB1+1}"), Op(f"s_min_u32 s{rX+2}, s{rH+2}, 3584"),
                    Op(f"s_lshl_b32 s{s}, s{sH}, 7")] + \
                   [Op(f"buffer_load_dwordx2 {vr(BIASR + 2*c, 2)}, v{vA}, {srd(rX)}, s{s} offen offset:{32*c}") for c in range(4)]
        J(gp(A.tg[3]), fb, "bias")
        if A.wtouch:
            t0, t1, td = T0 + 8, T0 + 9, T0 + 10
            S.flow([f"v_and_b32 v{t0}, {31 * 16}, v{vL16}", f"v_lshlrev_b32 v{t0}, 3, v{t0}", f"v_min_u32 v{t1}, {13 * 128}, v{t0}"], gp(1), gp(4))

            def ft(p, w1, fl):
                s = self.st()
                return [Op(f"s_mov_b32 s{rX}, s{p}"), Op(f"s_mov_b32 s{rX+1}, s{p+1}"),
                        Op(f"s_mov_b32 s{rX+2}, {512 * 3584 if w1 else 4 * MB}"),
                        Op(f"s_lshl_b32 s{s}, s{sB}, 2"), Op(f"s_add_u32 s{s}, s{s}, s{sWv}"),
                        Op(f"s_mul_i32 s{s}, s{s}, {1792 if w1 else 4096}"),
                        Op(f"buffer_load_dword v{td}, v{t1 if w1 else t0}, {srd(rX)}, s{s} offen{fl}")]
            for k, (p, w1) in enumerate(((pWV, 0), (pW1, 1), (pWQ, 0))):
                if A.tg[k] >= 0:
                    J(gp(A.tg[k]), lambda p=p, w1=w1, k=k: ft(p, w1, " nt" if A.tnt[k] else ""))
                    if A.tnt[k] > 1:
                        J(gp(A.tg[k] + A.tnt[k]), lambda p=p, w1=w1: ft(p, w1, ""))
        for G in A.ct2:
            if G > 0:
                vt, vd = (T0 + 14, T0 + 15) if G < 60 else (3, T0 + 15)
                val, ops = self.code_touch(vt, vd, 2048)
                S.flow(val, gp(G - 3), gp(G) - 1)
                J(gp(G), lambda ops=ops: ops)
        SEL = {("v", vSel0): f"v_lshlrev_b32 v{vSel0}, 28, v0"}
        S.flow([f"s_and_b32 s{sTmp2}, s{sB}, 3", f"s_lshl_b32 s{sTmp2}, s{sTmp2}, 6", f"v_mov_b32 v{vD}, 1"], gp(5), bar_gap(0))
        J(bar_gap(0) + 1, lambda: [Op(f"buffer_atomic_add v{vD}, v{vSel0}, {srd(rDBG)}, s{sTmp2} offen sc1",
                                      needs=[("xn", True), ("clr", True)],
                                      expect={("v", vD): f"v_mov_b32 v{vD}, 1", ("s", sTmp2): f"s_lshl_b32 s{sTmp2}, s{sTmp2}, 6", **SEL})])
        KREL, VREL = {}, {}
        for u in range(4):
            for rt in range(4):
                k = 4 * u + rt
                KREL[k] = max(gp(A.kst[0] + k * A.kst[1]), gp(28.5 + 2.4 * u + 0.6 * rt))

                def f(u=u, rt=rt):
                    s = self.st()
                    return [Op(f"s_add_u32 s{s}, s{sKb if rt >> 1 else sKa}, {K_OFF + rt * 4096}"),
                            Op(f"buffer_store_dwordx4 {vr(B2 + 16*u + 4*rt)}, v{vL16}, {srd(rWS)}, s{s} offen offset:{u*1024}{A.st}", tag="kst")]
                J(KREL[k], f, f"k{k}")
        for dt in range(8):
            for kg in range(2):
                k = 2 * dt + kg
                VREL[k] = max(gp(56 + dt) + 40, gp(A.vst[0] + k * A.vst[1]))

                def f(dt=dt, kg=kg):
                    s = self.st()
                    return [Op(f"s_add_u32 s{s}, s{sVb if kg else sVa}, {V_OFF + (dt >> 1) * 4096}"),
                            Op(f"buffer_store_dwordx4 {vr(B2 + 8*dt + 4*kg)}, v{vL16}, {srd(rWS)}, s{s} offen offset:{(dt & 1)*2048 + kg*1024}{A.st}", tag="vst")]
                J(VREL[k], f, f"v{k}")
        S.flow([f"v_bfe_u32 v{vA}, v{vL16}, 4, 2", f"v_lshlrev_b32 v{vA}, 6, v{vA}"], gp(31), gp(33))
        ld, chk, br = self.poll("xn", f"buffer_load_dword v{vP}, v{vA}, {srd(rDBG)}, 0 offen sc1", f"v_cmp_gt_u32 vcc, 64, v{vP}",
                                expect={("v", vA): f"v_lshlrev_b32 v{vA}, 6, v{vA}"})
        J(gp(34), lambda: [ld])
        self.put_check(S, gp(39), chk, br)
        vX = [4, 5, 6, 7]
        S.flow([f"s_mul_i32 s{sTmp2}, s{sR}, {(1 << 11) + (1 << 9)}", f"s_and_b32 s{sTmp2}, s{sTmp2}, {3 << 10}",
                f"v_xor_b32 v{vX[0]}, s{sTmp2}, v{vL16}"] + [f"v_xor_b32 v{vX[k]}, {k << 10}, v{vX[0]}" for k in range(1, 4)], gp(35), gp(39))
        for kq in range(4):
            for k in range(4):
                for rt in range(4):
                    def f(kq=kq, rt=rt, k=k):
                        ops = [Op(f"buffer_load_dwordx4 {ar(64*kq + 16*rt + 4*k)}, v{vX[k]}, {srd(rWS)}, s{sRT[rt]} offen{A.ld}", after="xn")]
                        if k == 3 and kq < 3:
                            ops.append(Op(f"s_add_u32 s{sRT[rt]}, s{sRT[rt]}, 4096"))
                        return ops
                    J(max(128 * (5 + kq), gp(A.xn[0] + (16 * kq + 4 * k + rt) * A.xn[1])), f, f"x{kq}")
        for kq in range(4):
            w = S.nv[gp(64 + 4 * kq) - 1][0]
            assert w.kind == "wait"
            w.vm = 63
        FL = {("v", vWRb[0]): f"v_add_u32 v{vWRb[0]}, {SLOT[0]}, v{vWRa[0]}", ("s", sFlagKV): f"s_add_u32 s{sFlagKV}, s{sPollKV}, s{sTmp}", **SEL}
        J(bar_gap(A.kflag) + 1, lambda: [Op(f"buffer_store_dword v{vWRb[0]}, v{vSel0}, {srd(rWS)}, s{sFlagKV} offen sc1",
                                            needs=[("kst", True)], after="xn", expect=FL)])
        if A.upto != "proj":
            J(bar_gap(A.vflag) + 1, lambda: [Op(f"buffer_store_dword v{vWRb[0]}, v{vSel0}, {srd(rWS)}, s{sFlagKV} offen offset:32 sc1",
                                                needs=[("vst", True)], after="xn", expect=FL)])
        self.extra_jobs(S, J, gp)
        HREL = [gp(A.hst[0] + k * A.hst[1]) for k in range(8)]
        S.flow([f"s_lshl_b32 s{sWp1b}, s{sH}, 13", f"s_add_u32 s{sWp1b}, s{sWp1b}, {ACT_HOFF}"], gp(72), gp(76))
        for u in range(2):
            for rt in range(4):
                def f(u=u, rt=rt):
                    s = self.st()
                    ops = [Op(f"s_add_u32 s{s}, s{sWp1b}, s{sAct[rt]}"),
                           Op(f"buffer_store_dwordx4 {vr(B0 + 32*u + 4*rt)}, v{vL16}, {srd(rH)}, s{s} offen{A.st}", tag="hst")]
                    if (u, rt) == (0, 3):
                        ops.append(Op(f"s_add_u32 s{sWp1b}, s{sWp1b}, 4096"))
                    return ops
                J(HREL[4 * u + rt], f)
        jobs.sort(key=lambda x: x[0])
        g = 0
        last_vm, bucket = -3, 0.0
        isfree = lambda gg: S.used(gg) == 1 and (gg % 16 != 15 or gg >= gp(111))
        for rel, f, name in jobs:
            ops = f()
            k = 0
            while k < len(ops):
                k2 = k
                while k2 < len(ops) and ops[k2].kind not in VM:
                    k2 += 1
                sal = ops[k:k2]
                if k2 == len(ops):
                    g = S.flow(sal, g + 1, S.n() - 1)[-1]
                    break
                tgt = max(rel, last_vm + A.vmin, int(bucket), g + (1 if sal else 0))
                while True:
                    while not isfree(tgt):
                        tgt += 1
                    lo = max(g, tgt - 14)
                    cand = [x for x in range(lo, tgt) if not S.nv[x]]
                    if len(cand) >= len(sal):
                        place = cand[len(cand) - len(sal):]
                        break
                    cap = []
                    for x in range(lo, tgt):
                        cap += [x] * max(0, 4 - S.used(x))
                    if len(cap) >= len(sal):
                        place = cap[len(cap) - len(sal):]
                        break
                    tgt += 1
                for o, x in zip(sal, place):
                    S.put(x, o)
                S.put(tgt, ops[k2])
                g = last_vm = tgt
                bucket = max(bucket, tgt - A.vburst) + A.vrate
                k = k2 + 1
            if name:
                pos[name] = last_vm
            if last_vm > rel + 40 and A.verbose:
                print(f"  job slipped: rel {rel/16:.1f} -> {last_vm/16:.1f}: {ops[-1].text}")
        if A.verbose:
            print("  job last positions:", {k: round(v / 16, 1) for k, v in pos.items()})
        assert pos["xnst"] < gp(5) and pos["x3"] < gp(75) and pos["bias"] < gp(31) and pos["w9"] < gp(72)
        for u in range(4):
            for rt in range(4):
                a0, a1 = self.acc(3, 2 * u, rt), self.acc(3, 2 * u + 1, rt)
                rel0 = gp(24 + 2 * u) + 4 * rt + 3 + 3
                rel1 = rel0 + 16
                dl = min(gp(32 + 2 * u) + 4 * rt - 2, pos[f"k{4 * u + rt}"] - 1)
                d = B2 + 16 * u + 4 * rt
                for (a, rel, o) in ((a0, rel0, 0), (a1, rel1, 2)):
                    ops = [f"v_mul_f32 v{a+i}, s{sSC}, v{a+i}" for i in range(4)]
                    ops += [f"v_cvt_pk_bf16_f32 v{d+o}, v{a}, v{a+1}", f"v_cvt_pk_bf16_f32 v{d+o+1}, v{a+2}, v{a+3}"]
                    S.flow(ops, rel, dl)
        for dt in range(8):
            for rt in range(4):
                a = self.acc(7, dt, rt)
                rel = max(gp(56 + dt) + 4 * rt + 3 + 3, pos[f"k{2 * dt + (rt >> 1)}"] + 1)
                dl = pos[f"v{2 * dt + (rt >> 1)}"] - 1
                dl = min(dl, gp(64 + dt) + 4 * rt - 2 if dt < 4 else gp(76))
                assert rel <= dl
                d = B2 + 8 * dt + 2 * rt
                S.flow([f"v_cvt_pk_bf16_f32 v{d}, v{a}, v{a+1}", f"v_cvt_pk_bf16_f32 v{d+1}, v{a+2}, v{a+3}"], rel, dl)
        for k in range(16):
            assert pos[f"v{k}"] < gp(96 + (k >> 2)) + 4 * (k & 3), k
        for c in range(4):
            b = BIAS + 4 * (c & 1)
            ops = []
            for i in range(2):
                ops += [f"v_lshlrev_b32 v{b+2*i}, 16, v{BIASR+2*c+i}", f"v_and_b32 v{b+2*i+1}, 0xffff0000, v{BIASR+2*c+i}"]
            S.flow(ops, gp(63 + c), gp(64 + c) - 2)
        T = []
        qtail = []
        qa = {}
        for u in range(4):
            n = 11 if u < 2 else 13
            for rt in range(4):
                d = Qf(rt, u)
                prev = None
                for half in range(2):
                    c = 2 * (u & 1) + half
                    a = self.acc(n, c, rt)
                    rel = gp(8 * n + 4 + c) + 4 * rt + 3 + 3
                    for h in range(2):
                        txt = f"v_cvt_pk_bf16_f32 v{d+2*half+h}, v{a+2*h}, v{a+2*h+1}"
                        if rel >= S.n():
                            qtail.append(txt)
                        else:
                            prev = Task(txt, rel, gp(104) if u < 2 else S.n() - 1, [(prev, 0)] if prev else [])
                            T.append(prev)
        free = [None] * 8
        k = 0
        for u in range(2):
            for rt in range(4):
                a0 = self.acc(9, 2 * u, rt)
                dl = HREL[4 * u + rt] - 1
                prevc = None
                for half in range(2):
                    a = self.acc(9, 2 * u + half, rt)
                    rel = gp(76 + 2 * u + half) + 4 * rt + 3 + 3
                    E = T0 + 4 * (k & 1)
                    k += 1
                    last = []
                    for i in range(4):
                        e = E + i
                        seq = [(f"v_mul_f32 v{e}, s{sL2E}, v{a+i}", 0), (f"v_exp_f32 v{e}, v{e}", 0), (f"v_add_f32 v{e}, 1.0, v{e}", 1),
                               (f"v_fma_f32 v{e}, v{e}, v{e}, 1.0", 0), (f"v_rcp_f32 v{e}, v{e}", 0), (f"v_fma_f32 v{e}, v{e}, -2.0, 1.0", 1),
                               (f"v_mul_f32 v{e}, v{e}, v{a+i}", 0)]
                        prev = free[e - T0]
                        for txt, dist in seq:
                            prev = Task(txt, rel, dl, [(prev, dist)] if prev else [])
                            T.append(prev)
                        last.append(prev)
                    for h in range(2):
                        pre = [(last[2 * h], 0), (last[2 * h + 1], 0)] + ([(prevc, 0)] if prevc else [])
                        prevc = Task(f"v_cvt_pk_bf16_f32 v{a0+2*half+h}, v{E+2*h}, v{E+2*h+1}", rel, dl, pre)
                        T.append(prevc)
                        free[E - T0 + 2 * h] = free[E - T0 + 2 * h + 1] = prevc
        schedule(S, T, start=gp(76))
        S.auto_lg_waits(lat=6, verbose=A.verbose)
        S.post += [Op("s_nop 7")] + [Op(x) for x in qtail]
        if A.verbose:
            print("  est cycles per stage:", [sum(4 * max(4, S.used(g)) for g in range(128 * n, 128 * n + 128)) for n in range(14)])
        return S

    def put_check(self, S, g, chk, br):
        while S.used(g) > 1 or S.used(g + 1) > 1 or g % 16 != 12:
            g += 1
        S.put(g, chk[0])
        S.put(g, chk[1])
        S.put(g + 1, br[0])
        S.put(g + 1, br[1])
        return g + 1


    def kv_dma(self, which, xr, creg, nreg, first=False):
        ring = KRING if which == "K" else VRING
        base = creg if (xr >> 1) % 2 == 0 else nreg
        so, r = (sKo, rK) if which == "K" else (sVo, rV)

        def wr(c):
            X = 2 * c["i"] + xr
            al = [(("C", k), (which, X), True) for k in range(4)] if which == "K" else [(("W", 1 + ((X & 3) >> 1)), (which, X), True)]
            return [((which, X & 3), (which, X), True)] + (al if X < 4 else [])
        ops = [Op(f"s_add_u32 m0, s{base}, {ring + (xr & 1) * 16384}")]
        for k in range(4):
            ops.append(Op(f"buffer_load_dwordx4 v{vL16}, {srd(r)}, s{so} offen offset:{k * 1024}{self.a.ld} lds", lds_wr=wr, after=which.lower()))
        ops.append(Op(f"s_add_u32 s{so}, s{so}, {KV_T}"))
        self.m0 = None
        return ops

    def k_read(self, xr, kt, u, names):
        a = names["Kc"] if (xr >> 1) % 2 == 0 else names["Kn"]
        return Op(f"ds_read_b128 {ar(aK + 16 * (kt & 1) + 4 * u)}, v{a} offset:{(xr & 1) * 16384 + kt * 4096 + u * 1024}",
                  lds_rd=lambda c: (("K", (2 * c["i"] + xr) & 3), ("K", 2 * c["i"] + xr), True))

    def v_read(self, xr, dt, kg, names):
        a = names["Vc"] if (xr >> 1) % 2 == 0 else names["Vn"]
        return Op(f"ds_read_b128 {ar(aV + 8 * (dt & 3) + 4 * kg)}, v{a} offset:{(xr & 1) * 16384 + dt * 2048 + kg * 1024}",
                  lds_rd=lambda c: (("V", (2 * c["i"] + xr) & 3), ("V", 2 * c["i"] + xr), True))

    def mask_ops(self, dst, z, kt, neg):
        ng = neg if isinstance(neg, list) else [neg] * 4
        m = ["vcc", f"s[{sMA}:{sMA+1}]", f"s[{sMB}:{sMB+1}]", "vcc"]
        cmp = lambda r: f"v_cmp_le_i32 {m[r]}, {16 * kt + r}, v{z}"
        cnd = lambda r: f"v_cndmask_b32 v{dst + r}, v{NINF}, v{ng[r]}, {m[r]}"
        return [cmp(0), cmp(1), cmp(2), cnd(0), cmp(3), cnd(1), cnd(2), cnd(3)]

    def att_regs_init(self):
        return [f"v_add_u32 v{vKc}, {KRING}, v{vL16}", f"v_add_u32 v{vKn}, {KRING + 32768}, v{vL16}",
                f"v_mov_b32 v{vVc}, v{vL16}", f"v_add_u32 v{vVn}, 32768, v{vL16}"]

    def att_sregs_init(self):
        return [f"s_lshl_b32 s{sMc}, s{sWv}, 12", f"s_add_u32 s{sMn}, s{sMc}, 32768",
                f"s_mov_b32 s{sKo}, s{sMc}", f"s_mov_b32 s{sVo}, s{sMc}", f"s_mov_b64 s[{sBad}:{sBad+1}], 0"]

    def first_k_reads(self):
        nm = dict(Kc=vKc, Kn=vKn, Vc=vVc, Vn=vVn)
        return [self.k_read(0, 0, u, nm) for u in range(4)] + [self.k_read(0, 1, u, nm) for u in range(2)]

    def extra_jobs(self, S, J, gp):
        if self.a.upto == "proj":
            return
        ops = [f"s_mul_i32 s{sTmp}, s{sH}, {KV_H}",
               f"s_lshl_b32 s{rK+2}, s{sJ}, 1", f"s_sub_u32 s{rK+2}, 32, s{rK+2}", f"s_mul_i32 s{rK+2}, s{rK+2}, {KV_T}",
               f"s_mov_b32 s{rV+2}, s{rK+2}", f"s_mov_b32 s{rV+3}, 0x20000",
               f"s_add_u32 s{sTmp}, s{sTmp}, {K_OFF}"]
        g = S.flow(ops + self.att_sregs_init()[:4], 16 * 66, 16 * 74)[-1]
        for (r, off) in ((rK, 0), (rV, V_OFF - K_OFF)):
            g += 1
            while S.used(g) > 1:
                g += 1
            if off:
                S.put(g, f"s_add_u32 s{sTmp}, s{sTmp}, {off}")
            S.put(g, f"s_add_u32 s{r}, s{pWS}, s{sTmp}")
            S.put(g, f"s_addc_u32 s{r+1}, s{pWS+1}, 0")
        S.flow(self.att_regs_init(), 16 * 75, 16 * 80)
        S.flow(self.att_sregs_init()[4:], 16 * 100, 16 * 104)
        ops = [
            f"v_bfe_u32 v{Z0}, v{vL16}, 4, 4", f"v_lshrrev_b32 v{Z1}, 8, v{vL16}", f"v_lshlrev_b32 v{Z1}, 2, v{Z1}",
            f"v_sub_u32 v{Z0}, v{Z0}, v{Z1}", f"v_lshlrev_b32 v{Zt}, 4, s{sWv}", f"v_sub_u32 v{Z1}, v{Z0}, v{Zt}",
            f"v_add_u32 v{Z1}, 48, v{Z1}", f"v_add_u32 v{Z0}, v{Z0}, v{Zt}", f"v_mov_b32 v{NINF}, 0xff800000",
            f"v_bfe_u32 v{vA}, v{vL16}, 2, 5",
            f"v_lshlrev_b32 v{Zt}, 7, s{sJ}", f"v_add_u32 v{Zt}, v{Zt}, v{Z0}"]
        S.flow(ops, 16 * 69, 16 * 76)
        S.flow([f"v_mov_b32 v{ZERO+i}, 0" for i in range(4)] + [f"v_mov_b32 v{ONES+i}, 0x3f803f80" for i in range(4)], 16 * 111, 16 * 112 - 1)
        ldt = f"buffer_load_dword v{vP}, v{vA}, {srd(rWS)}, s{sPollKV} offen sc1"
        ex = {("v", vA): f"v_bfe_u32 v{vA}, v{vL16}, 2, 5", ("s", sPollKV): f"s_add_u32 s{sPollKV}, s{sPollKV}, {FLAG_OFF}"}
        ld, chk, br = self.poll("k", ldt, f"v_cmp_eq_u32 vcc, 0, v{vP}", expect=ex, after="xn")
        J(gp(self.a.kv[0] - 5), lambda ld=ld: [ld])
        g = self.put_check(S, gp(self.a.kv[0] - 1), chk, br)
        for X in range(3):
            J(gp(self.a.kv[0] + self.a.kv[1] * X), lambda X=X: self.kv_dma("K", X, sMc, sMn))
        ld, chk, br = self.poll("v", ldt.replace("offen", "offen offset:32"), f"v_cmp_eq_u32 vcc, 0, v{vP}", expect=ex, after="xn")
        J(gp(self.a.kv[2] - 4), lambda ld=ld: [ld])
        g = self.put_check(S, gp(self.a.kv[2] - 1), chk, br)
        for X in range(2):
            J(gp(self.a.kv[2] + X), lambda X=X: self.kv_dma("V", X, sMc, sMn))
        for i, o in enumerate(self.first_k_reads()):
            S.put(16 * 111 + i, o)

    def rowmax_reduce(self):
        ops = []
        for sw in ("v_permlane16_swap_b32", "v_permlane32_swap_b32"):
            ops += [f"v_mov_b32 v{MX+4+t}, v{MX+t}" for t in range(4)]
            ops += [f"{sw} v{MX+t}, v{MX+4+t}" for t in range(4)]
            ops += [f"v_max_f32 v{MX+t}, v{MX+t}, v{MX+4+t}" for t in range(4)]
        return ops

    def prestep(self):
        S = Seg("prestep")
        S.pre.append(W(lg=True))
        for t in range(4):
            for u in range(4):
                S.mfma(f"{MF} {vr(SB+4*t)}, {ar(aK+4*u)}, {vr(Qf(t, u))}, {vr(SB+4*t) if u else 0}")
        for k in range(9):
            S.mfma(f"{MF32} {ar(16*k, 16)}, {vr(ZERO)}, {vr(ZERO)}, 0")
        S.flow(self.mask_ops(SB, Zt, 0, [SB, SB + 1, SB + 2, SB + 3]), 7, 15)
        ops = [f"v_max3_f32 v{MX+t}, v{SB+4*t}, v{SB+4*t+1}, v{SB+4*t+2}" for t in range(4)]
        ops += [f"v_max_f32 v{MX+t}, v{MX+t}, v{SB+4*t+3}" for t in range(4)]
        ops += self.rowmax_reduce()
        S.flow(ops, 17, 24)
        S.flow([f"v_mov_b32 v{vD}, 1"], 0, 6)
        self.p3_setup(S)
        G = Plain("att_go")
        e = G.e
        e("L_att_go:")
        for r in range(4):
            e(f"v_sub_f32 v{NEG3L+r}, 0, v{MX+3}")
        e(f"v_sub_f32 v{NEG0}, 0, v{MX}")
        for r in range(4):
            e(f"v_sub_f32 v{NEG[2]+r}, 0, v{MX+2}")
        rest = [f"v_sub_f32 v{NEG[t]+r}, 0, v{MX+t}" for t in (1, 3) for r in range(4)]
        for u in range(4):
            e(f"{MF} {vr(SB)}, {ar(aK+4*u)}, {vr(Qf(3, u))}, {vr(SB) if u else vr(NEG3L)}")
            e(rest[2 * u])
            e(rest[2 * u + 1])
        for kt in range(4):
            for o in self.mask_ops(BANK + 4 * kt, Zt, kt, NEG0):
                e(o)
        e(f"s_mov_b32 s{sCnt}, s{sJ}")
        return S, G

    def att_seg(self, name, Trel, qk, pv, bank_tile, look=True, flip=None, dma=True, bar=True, pvfirst=False, lfirst=False, extra=None):
        S = Seg(name)
        par = Trel & 1
        names = dict(Kc=vKc, Kn=vKn, Vc=vVc, Vn=vVn)
        if flip == 2:
            names = dict(Kc=vKn, Kn=vKc, Vc=vVn, Vn=vVc)
        na = len(qk)
        chains = [(kt, t) for kt in range(4) for t in qk]
        n = len(chains)
        dts = ([8] + list(range(8))) if lfirst else list(range(9))
        pvc = [(dt, t) for dt in dts for t in pv]
        M = len(pvc)
        nmu = max(n, 1)
        cstart, cend = {0: -100}, {0: -100}
        pstart, pend = {}, {}

        def qk_chain(i):
            if i == n:
                kt, t, c = 0, 3, NEG3L
            else:
                kt, t = chains[i]
                c = BANK + 4 * kt if t == bank_tile else NEG[t]
            d = SB + 4 * (i % 4)
            cstart[i] = S.n()
            for u in range(4):
                S.mfma(f"{MF} {vr(d)}, {ar(aK + 16 * (kt & 1) + 4 * u)}, {vr(Qf(t, u))}, {vr(d) if u else vr(c)}")
            cend[i] = S.n() - 1

        def pv_share(mu):
            for k in range(mu * M // nmu, (mu + 1) * M // nmu):
                dt, t = pvc[k]
                pstart.setdefault(dt, S.n())
                for kg in range(2):
                    if dt == 8:
                        d, a = ar(aL + 4 * t), vr(ONES)
                    else:
                        d, a = ar(aO + 32 * t + 4 * dt), ar(aV + 8 * (dt & 3) + 4 * kg)
                    S.mfma(f"{MF} {d}, {a}, {vr(Pf(1 - par, t, kg))}, {d}")
                pend[dt] = S.n() - 1
        for mu in range(nmu):
            if pvfirst:
                pv_share(mu)
            if n and (mu + 1 < n or look):
                qk_chain(mu + 1)
            if not pvfirst:
                pv_share(mu)
        N = S.n()
        T = []
        info = dict(cstart=cstart, cend=cend, pstart=pstart, pend=pend, N=N)
        tail = []
        for i in range(n):
            kt, t = chains[i]
            d = SB + 4 * (i % 4)
            rel = cend[i] + 3
            dl = cstart[i + 4] - 1 if (i + 4) in cstart else N - 1
            p = Pf(par, t, kt >> 1) + 2 * (kt & 1)
            if rel + 5 > N - 1:
                tail += ["s_nop 7"] + [f"v_exp_f32 v{d+r}, v{d+r}" for r in range(4)] + [f"v_cvt_pk_bf16_f32 v{p+h}, v{d+2*h}, v{d+2*h+1}" for h in range(2)]
                continue
            ex = []
            for r in range(4):
                ex.append(Task(f"v_exp_f32 v{d+r}, v{d+r}", rel, dl, [(ex[-1], 0)] if ex else []))
            T += ex
            for h in range(2):
                T.append(Task(f"v_cvt_pk_bf16_f32 v{p+h}, v{d+2*h}, v{d+2*h+1}", rel, dl, [(ex[2 * h + 1], 1)]))
        bg = None
        if bar:
            bg = cstart[3 * na] + 2
            S.put(bg, W(vm=True, lg=True))
            S.put(bg + 1, "s_barrier")
            bg += 1
        info["bar"] = bg
        lastk = None
        if n:
            for kt in range(1, 4):
                first = cstart[kt * na]
                free = cend[(kt - 1) * na - 1] if kt >= 2 else 0
                for u in range(2 if kt == 1 else 0, 4):
                    dl = first + u - LAT
                    if kt == 3 and bar:
                        dl = min(dl, bg - 1 - 5)
                    lastk = Task(self.k_read(Trel, kt, u, names), max(0, free - 3 + u), dl)
                    T.append(lastk)
            if look:
                for u in range(4):
                    T.append(Task(self.k_read(Trel + 1, 0, u, names), bg + 1, cstart[n] + u - LAT))
                for u in range(2):
                    T.append(Task(self.k_read(Trel + 1, 1, u, names), max(bg + 1, cend[n - 1] - 3 + u), N - 2 + u))
        if pv:
            for dt in range(1, 8):
                free = pend[dt - 4] if dt >= 4 else 0
                for kg in range(2):
                    T.append(Task(self.v_read(Trel - 1, dt, kg, names), free, pstart[dt] + kg - LAT))
        v0 = []
        if n:
            free = max(bg + 1, pend[4] if pv else 0)
            for kg in range(2):
                v0.append(Task(self.v_read(Trel, 0, kg, names), free, N + 4 + kg - LAT))
            T += v0
        if dma:
            prev = None
            for which, xr, lo, hi in (("K", Trel + 3, 1, bg - 2), ("V", Trel + 2, bg + 1, N - 2)):
                ops = self.kv_dma(which, xr, sMc, sMn)
                step = (hi - lo + 1) / 4
                m = Task(ops[0], lo - 1 if which == "K" else 0, int(lo + step - 2), [(prev, 0)] if prev else [])
                T.append(m)
                prev = m
                for k in range(4):
                    d = Task(ops[1 + k], int(lo + k * step), int(lo + (k + 1) * step - 1), [(prev, 1 if k == 0 else 3)])
                    T.append(d)
                    prev = d
                T.append(Task(ops[5], 0, N - 2, [(prev, 0)]))
                if which == "V":
                    info["vm0"] = m
        if flip == 1:
            T.append(Task(f"v_xor_b32 v{vVn}, 0x8000, v{vVn}", 0, N - 1))
            T.append(Task(f"v_xor_b32 v{vKc}, 0x8000, v{vKc}", bg, N - 1))
        if flip == 2:
            T.append(Task(f"v_xor_b32 v{vKn}, 0x8000, v{vKn}", 0, N - 1))
            T.append(Task(f"v_xor_b32 v{vVc}, 0x8000, v{vVc}", 0, bg))
            T.append(Task(f"s_xor_b32 s{sMn}, s{sMn}, 0x8000", 0, N - 2))
            T.append(Task(f"s_xor_b32 s{sMc}, s{sMc}, 0x8000", 0, N - 2, [(info["vm0"], 0)]))
        if extra:
            extra(S, T, info)
        schedule(S, T)
        inc = [("a", aK + 16 + r) for r in range(8)] + [("a", aV + r) for r in range(8)]
        S.auto_lg_waits(lat=5, incoming=inc, verbose=self.a.verbose)
        S.post += [Op(x) for x in tail]
        return S

    def chain_tasks(self, T, ops, rel, dl, after=None):
        prev = after
        for o in ops:
            t = Task(o, rel, dl, [(prev, 0)] if prev else [])
            T.append(t)
            prev = t
        return prev

    def bad_check(self, e, tiles):
        for k, t in enumerate(tiles):
            e(f"v_accvgpr_read_b32 v{ET+2*k}, a{aL+4*t}")
        e(f"v_add_f32 v{ET+3}, v{ET}, v{ET+2}")
        e(f"v_rcp_f32 v{ET}, v{ET}")
        e(f"v_cmp_ngt_f32 vcc, 0x5f800000, v{ET+3}")
        e(f"v_rcp_f32 v{ET+2}, v{ET+2}")
        e(f"s_or_b64 s[{sBad}:{sBad+1}], s[{sBad}:{sBad+1}], vcc")

    def epilogue(self, e, tiles):
        e(f"s_mul_i32 s{sTmp2}, s{sH}, {ACT_HD}")
        k = 0
        for ti, t in enumerate(tiles):
            e(f"s_add_u32 s{sTmp}, s{sTmp2}, s{sAct[t]}")
            for u in range(4):
                b = ET + 4
                o = ET + 12 + 4 * (k % 3)
                k += 1
                for i in range(8):
                    e(f"v_accvgpr_read_b32 v{b+i}, a{aO + 32*t + 8*u + i}")
                for i in range(4):
                    e(f"v_pk_mul_f32 {vr(b+2*i, 2)}, {vr(b+2*i, 2)}, {vr(ET+2*ti, 2)} op_sel_hi:[1,0]")
                for i in range(4):
                    e(f"v_cvt_pk_bf16_f32 v{o+i}, v{b+2*i}, v{b+2*i+1}")
                e(f"buffer_store_dwordx4 {vr(o)}, v{vL16}, {srd(rWS)}, s{sTmp} offen{self.a.st}", tag="cst")
                if u < 3:
                    e(f"s_add_u32 s{sTmp}, s{sTmp}, 4096")

    def attention(self):
        D, TH, SS, ONE = [3, 2, 1, 0], [3, 2, 1], [3, 2], [3]
        B = {}

        def x_d0(S, T, info):
            T.append(Task(Op(f"buffer_store_dword v{vD}, v{vSel0}, {srd(rWS)}, s{sFlagH} offen sc1", needs=[("hst", True)],
                             expect={("v", vD): f"v_mov_b32 v{vD}, 1", ("s", sFlagH): f"s_add_u32 s{sFlagH}, s{sFlagH}, {HFLAG_OFF}", ("v", vSel0): f"v_lshlrev_b32 v{vSel0}, 28, v0"}), info["bar"] + 1, info["N"] - 1))
            S.put(info["N"] - 1, f"s_cmp_eq_u32 s{sCnt}, 0")
        B["D0"] = self.att_seg("D0", 0, D, [], 0, extra=x_d0)
        B["D0"].post += [Op("s_cbranch_scc1 L_three"), Op(".p2align 4"), Op("L_dloop:")]
        B["Da"] = self.att_seg("Da", 1, D, D, 0, flip=1, extra=lambda S, T, i: S.put(i["N"] - 1, f"s_cmp_eq_u32 s{sCnt}, 1"))
        B["Da"].post += [Op("s_cbranch_scc1 L_dmask"), Op("L_dmask_back:")]

        def x_loop(S, T, info):
            T.append(Task(f"s_sub_u32 s{sCnt}, s{sCnt}, 1", 0, info["N"] - 2))
            S.put(info["N"] - 1, f"s_cmp_lg_u32 s{sCnt}, 0")
        B["Db"] = self.att_seg("Db", 2, D, D, 0, flip=2, extra=x_loop)
        B["Db"].post += [Op("s_cbranch_scc1 L_dloop"), Op("L_three:")]
        p = Plain("dmask")
        p.e("L_dmask:")
        for kt in range(4):
            for o in self.mask_ops(BANK + 4 * kt, Z0, kt, NEG0):
                p.e(o)
        p.e("s_branch L_dmask_back")
        self.ool.append(p)
        B["dmask"] = p

        def x_three(S, T, info):
            cs = info["cstart"]
            last = None
            last = self.chain_tasks(T, self.mask_ops(BANK, Z1, 0, NEG[1]), 0, cs[2] - 2, last)
            last = self.chain_tasks(T, [f"v_sub_u32 v{Zu}, 7, s{sJ}".replace("v_sub_u32", "v_sub_u32_e64"), f"v_lshlrev_b32 v{Zu}, 7, v{Zu}",
                                        f"v_add_u32 v{Zt}, v{Zu}, v{Z0}", f"v_add_u32 v{Zu}, v{Zu}, v{Z1}"], 0, cs[5], last)
            for kt in range(1, 4):
                last = self.chain_tasks(T, self.mask_ops(BANK + 4 * kt, Z1, kt, NEG[1]), 0, cs[3 * kt + 2] - 2, last)
            for kt in range(4):
                last = self.chain_tasks(T, self.mask_ops(BANK + 4 * kt, Zt, kt, NEG[2]), cs[3 * kt + 2] + 2, info["N"] - 2, last)
        B["T3"] = self.att_seg("T3", 1, TH, D, 1, flip=1, extra=x_three)

        def x_s3(S, T, info):
            last = self.chain_tasks(T, self.mask_ops(NEG3L, Zu, 0, NEG[3]), 0, info["cstart"][8] - 2)
            if self.a.upto == "full":
                self.p3_table(T, last, info["N"])
            T.append(Task(f"s_sub_u32 s{sCnt}, 7, s{sJ}", 0, info["N"] - 2))
        B["S3"] = self.att_seg("S3", 2, SS, TH, 2, flip=2, extra=x_s3)
        p = Plain("epiA")
        if self.a.otouch and self.a.upto == "full":
            p.e(f"s_lshl_b32 s{sTmp}, s{sB}, 2")
            p.e(f"s_add_u32 s{sTmp}, s{sTmp}, s{sWv}")
            p.e(f"s_lshl_b32 s{sTmp}, s{sTmp}, 13")
            p.e(f"v_lshl_add_u32 v{MX}, v{vL16}, 3, s{sTmp}")
            p.e(f"v_subrev_u32 v{MX+1}, {4 * MB}, v{MX}")
            p.e(f"buffer_load_dword v{MX+2}, v{MX}, {srd(rX)}, 0 offen")
            p.e(f"buffer_load_dword v{MX+2}, v{MX+1}, {srd(rW)}, 0 offen")
            p.e("s_nop 0")
        else:
            p.e("s_nop 7")
        self.bad_check(p.e, [0, 1])
        self.epilogue(p.e, [0, 1])
        for o in self.stamp_ops():
            p.e(o)
        p.e(f"s_cmp_eq_u32 s{sCnt}, 0")
        p.e("s_cbranch_scc1 L_one")
        p.e(".p2align 4")
        p.e("L_sloop:")
        B["epiA"] = p
        B["Sa"] = self.att_seg("Sa", 1, SS, SS, 2)
        B["Sb"] = self.att_seg("Sb", 2, SS, SS, 2)
        B["Sc"] = self.att_seg("Sc", 3, SS, SS, 2, extra=lambda S, T, i: S.put(i["N"] - 1, f"s_cmp_eq_u32 s{sCnt}, 1"))
        B["Sc"].post += [Op("s_cbranch_scc1 L_smask"), Op("L_smask_back:")]
        B["Sd"] = self.att_seg("Sd", 4, SS, SS, 2, extra=x_loop)
        B["Sd"].post += [Op("s_cbranch_scc1 L_sloop"), Op("L_one:")]
        p = Plain("smask")
        p.e("L_smask:")
        for kt in range(4):
            for o in self.mask_ops(BANK + 4 * kt, Z0, kt, NEG[2]):
                p.e(o)
        for o in self.mask_ops(NEG3L, Z1, 0, NEG[3]):
            p.e(o)
        p.e("s_branch L_smask_back")
        self.ool.append(p)
        B["smask"] = p

        def x_one(S, T, info):
            last = None
            for kt in range(1, 4):
                last = self.chain_tasks(T, self.mask_ops(BANK + 4 * kt, Z1, kt, NEG[3]), 0, info["cstart"][kt] - 2, last)
            self.one_extra(S, T, info, last)
        B["One"] = self.att_seg("One", 1, ONE, SS, 3, look=False, dma=False, pvfirst=True, extra=x_one)
        B["Dr"] = self.att_seg("Dr", 2, [], ONE, None, look=False, dma=False, bar=False, lfirst=True)
        B["Dr"].pre.insert(0, Op("s_nop 1"))
        p = Plain("check")
        e = p.e
        self.bad_check(e, [2, 3])
        e(f"s_cmp_lg_u64 s[{sBad}:{sBad+1}], 0")
        e(f"s_cselect_b32 s{sTmp}, 1, 0")
        e(f"s_andn2_b32 s{sTmp}, s{sTmp}, s{sFb}")
        e(f"s_lshl_b32 s{sTmp2}, s{sWv}, 2")
        e(f"s_add_u32 s{sTmp2}, s{sTmp2}, {SPARE}")
        e(f"v_mov_b32 v{ET+4}, s{sTmp2}")
        e(f"v_mov_b32 v{ET+5}, s{sTmp}")
        e(f"v_mov_b32 v{ET+6}, {SPARE}")
        e(f"ds_write_b32 v{ET+4}, v{ET+5}", lds_wr=lambda c: [(("F", 0), ("bad", c.get("fb")), True), (("W", 0), "bad", True)])
        e("s_waitcnt lgkmcnt(0)")
        e("s_barrier")
        e(f"ds_read_b128 {vr(ET+8)}, v{ET+6}", lds_rd=lambda c: (("F", 0), ("bad", c.get("fb")), True))
        B["check"] = p
        p = Plain("check2")
        e = p.e
        e(W(lg=True))
        e(f"v_or3_b32 v{ET+8}, v{ET+8}, v{ET+9}, v{ET+10}")
        e(f"v_or_b32 v{ET+8}, v{ET+8}, v{ET+11}")
        e(f"v_cmp_ne_u32 vcc, 0, v{ET+8}")
        e("s_nop 1")
        e("s_cbranch_vccnz L_fallback")
        B["check2"] = p
        B["fb"] = self.fallback()
        return B

    def fallback(self):
        p0, p1, p2 = Plain("fb0"), Plain("fb1"), Plain("fb2")
        e = p0.e
        e("L_fallback:")
        e(f"s_mov_b32 s{sFb}, 1")
        e("s_waitcnt vmcnt(0) lgkmcnt(0)")
        e("s_barrier")
        ZG = BANK
        e(f"s_lshl_b32 s{sTmp}, s{sJ}, 7")
        e(f"s_sub_u32 s{sTmp2}, {15 * 128}, s{sTmp}")
        e(f"v_add_u32 v{ZG}, s{sTmp}, v{Z0}")
        e(f"v_add_u32 v{ZG+1}, s{sTmp}, v{Z1}")
        e(f"v_add_u32 v{ZG+2}, s{sTmp2}, v{Z0}")
        e(f"v_add_u32 v{ZG+3}, s{sTmp2}, v{Z1}")
        e(f"v_add_u32 v{ZG+1}, 64, v{ZG+1}")
        e(f"v_add_u32 v{ZG+3}, 64, v{ZG+3}")
        e(f"v_mov_b32 v{Zt}, v{ZG}")
        for t in range(4):
            e(f"v_mov_b32 v{MX+t}, v{NINF}")
        e(f"s_mov_b32 s{sCnt}, 0")
        e(f"s_lshl_b32 s{sSpin}, s{sJ}, 3")
        e(f"s_sub_u32 s{sSpin}, 128, s{sSpin}")
        e("L_fb_loop:")
        e = p1.e
        e(f"s_lshr_b32 s{sTmp}, s{sCnt}, 2")
        e(f"s_mul_i32 s{sTmp}, s{sTmp}, {KV_T}")
        e(f"s_and_b32 s{sTmp2}, s{sCnt}, 3")
        e(f"s_lshl_b32 s{sTmp2}, s{sTmp2}, 12")
        e(f"s_add_u32 s{sTmp}, s{sTmp}, s{sTmp2}")
        for u in range(4):
            e(f"buffer_load_dwordx4 {ar(aK+4*u)}, v{vL16}, {srd(rK)}, s{sTmp} offen offset:{u*1024} sc1")
        e("s_waitcnt vmcnt(0)")
        for t in range(4):
            for u in range(4):
                e(f"{MF} {vr(SB+4*t)}, {ar(aK+4*u)}, {vr(Qf(t, u))}, {vr(SB+4*t) if u else 0}")
        e("s_nop 7")
        for t in range(4):
            for o in self.mask_ops(SB + 4 * t, ZG + t, 0, [SB + 4 * t + r for r in range(4)]):
                e(o)
            e(f"v_max3_f32 v{MX+t}, v{MX+t}, v{SB+4*t}, v{SB+4*t+1}")
            e(f"v_max3_f32 v{MX+t}, v{MX+t}, v{SB+4*t+2}, v{SB+4*t+3}")
            e(f"v_subrev_u32 v{ZG+t}, 16, v{ZG+t}")
        e(f"s_add_u32 s{sCnt}, s{sCnt}, 1")
        e(f"s_cmp_lt_u32 s{sCnt}, s{sSpin}")
        e("s_cbranch_scc1 L_fb_loop")
        e = p2.e
        for o in self.rowmax_reduce() + self.att_regs_init() + self.att_sregs_init():
            e(o)
        for which, X in (("K", 0), ("K", 1), ("K", 2), ("V", 0), ("V", 1)):
            for o in self.pad_m0(self.kv_dma(which, X, sMc, sMn)):
                e(o)
        for k in range(9):
            e(f"{MF32} {ar(16*k, 16)}, {vr(ZERO)}, {vr(ZERO)}, 0")
        e("s_waitcnt vmcnt(0)")
        e("s_barrier")
        for o in self.first_k_reads():
            e(o)
        e("s_waitcnt lgkmcnt(0)")
        e("s_branch L_att_go")
        self.ool += [p0, p1, p2]
        return p0, p1, p2

    def att_trace(self, B, G, j, fb=0):
        tr = []
        add = lambda b, i: tr.extend((o, {"i": i, "fb": fb}) for o in b.linear())
        add(G, 0)
        add(B["D0"], 0)
        for i in range(j):
            add(B["Da"], i)
            if i == j - 1:
                add(B["dmask"], i)
            add(B["Db"], i)
        add(B["T3"], j)
        add(B["S3"], j)
        add(B["epiA"], j)
        i = j + 1
        for k in range(7 - j):
            for nm in ("Sa", "Sb", "Sc"):
                add(B[nm], i)
            if k == 6 - j:
                add(B["smask"], i)
            add(B["Sd"], i)
            i += 2
        add(B["One"], i)
        add(B["Dr"], i)
        add(B["check"], i)
        return tr

    def dump_q(self):
        p = Plain("dumpq")
        e = p.e
        e(f"s_lshl_b32 s{sTmp}, s{sB}, 2")
        e(f"s_add_u32 s{sTmp}, s{sTmp}, s{sWv}")
        e(f"s_lshl_b32 s{sTmp}, s{sTmp}, 14")
        e(f"s_add_u32 s{sTmp}, s{sTmp}, {QDUMP_OFF}")
        for u in range(4):
            for rt in range(4):
                e(f"buffer_store_dwordx4 {vr(Qf(rt, u))}, v{vL16}, {srd(rWS)}, s{sTmp} offen offset:{rt*1024}")
            e(f"s_add_u32 s{sTmp}, s{sTmp}, 4096")
        return p

    def dump_stamps(self):
        p = Plain("stamps")
        if self.a.stamps:
            p.e("s_waitcnt vmcnt(0)")
            for o in self.stamp_ops() + self.rt_ops(63):
                p.e(o)
            p.e(f"s_lshl_b32 s{sTmp}, s{sB}, 2")
            p.e(f"s_add_u32 s{sTmp}, s{sTmp}, s{sWv}")
            p.e(f"s_lshl_b32 s{sTmp}, s{sTmp}, 8")
            p.e(f"s_add_u32 s{sTmp}, s{sTmp}, {STAMP_OFF}")
            p.e(f"v_lshrrev_b32 v{vL16}, 2, v{vL16}")
            p.e(f"buffer_store_dword v{vSel0}, v{vL16}, {srd(rWS)}, s{sTmp} offen")
        return p

    def build(self):
        pro = self.prologue()
        pj = self.proj()
        pj.post += self.stamp_ops()
        blocks = [pro, pj]
        end = Plain("end")
        lin = lambda bl, c={"i": 0}: [(o, c) for b in bl for o in b.linear()]
        if self.a.upto == "proj":
            blocks += [self.dump_q(), self.dump_stamps(), end]
            traces = [("main", lin(blocks))]
        else:
            S, G = self.prestep()
            for o in self.stamp_ops():
                G.e(o)
            B = self.attention()
            mid, tailb = self.tail(B)
            tailb += [self.dump_stamps(), end]
            blocks += [S, G] + [B[k] for k in ("D0", "Da", "Db", "T3", "S3", "epiA", "Sa", "Sb", "Sc", "Sd", "One", "Dr", "check")] + mid + tailb
            traces = []
            for j in range(8):
                traces.append((f"j{j}", lin([pro, pj, S]) + self.att_trace(B, G, j) + lin(mid) + lin(tailb)))
            f0, f1, f2 = B["fb"]
            for j in (0, 3, 7):
                traces.append((f"fb{j}", lin([pro, pj, S]) + self.att_trace(B, G, j) + lin(mid) + lin([f0, f1, f1, f2])
                               + self.att_trace(B, G, j, 1) + lin(mid, {"i": 0, "fb": 1}) + lin(tailb, {"i": 0, "fb": 1})))
        end.e("L_end:")
        end.e("s_endpgm")
        self.finish(blocks, traces)

    def p3_setup(self, S):
        t = ET
        sal = [f"s_and_b32 s{sRG}, s{sB}, 7", f"s_lshl_b32 s{sRG}, s{sRG}, 2", f"s_bfe_u32 s{sTmp}, s{sB}, 0x20003",
               f"s_add_u32 s{sRG}, s{sRG}, s{sTmp}", f"s_xor_b32 s{sCG}, s{sJ}, {self.a.cgx}", f"s_lshl_b32 s{sCG}, s{sCG}, 7",
               f"s_mul_i32 s{sActH}, s{sRG}, {ACT_RG}", f"s_mul_i32 s{sTmp}, s{sWv}, {8 * ACT_HD}",
               f"s_add_u32 s{sActC}, s{sActH}, s{sTmp}", f"s_mul_i32 s{sTmp}, s{sWv}, {14 * 4096}",
               f"s_add_u32 s{sActH}, s{sActH}, s{sTmp}", f"s_add_u32 s{sActH}, s{sActH}, {ACT_OFF + ACT_HOFF}",
               f"s_add_u32 s{sActC}, s{sActC}, {ACT_OFF}",
               f"s_mul_i32 s{sW2b}, s{sWv}, {14 * 32768}", f"s_add_u32 s{sW2b}, s{sW2b}, s{sCG}",
               f"s_lshl_b32 s{sWob}, s{sWv}, 20", f"s_add_u32 s{sWob}, s{sWob}, s{sCG}",
               f"s_lshl_b32 s{sM0p}, s{sWv}, 15",
               f"s_lshr_b32 s{sTmp}, s{sRG}, 1", f"s_sub_u32 s{sTmp2}, 15, s{sTmp}", f"s_min_u32 s{sTmp}, s{sTmp}, s{sTmp2}",
               f"s_lshl_b32 s{sPollH}, s{sTmp}, 7", f"s_add_u32 s{sPollH}, s{sPollH}, {HFLAG_OFF}",
               f"s_lshl_b32 s{sTmp}, s{sTmp}, 2", f"s_add_u32 s{sTmp}, s{sTmp}, s{sWv}", f"s_lshl_b32 s{sTmp}, s{sTmp}, 7",
               f"s_add_u32 s{sTmp}, s{sTmp}, {CFLAG_OFF}",
               f"s_mov_b32 s{rW}, s{pW2}", f"s_mov_b32 s{rW+1}, s{pW2+1}", f"s_mov_b32 s{rW+2}, {1792 * 1024}",
               f"s_mov_b32 s{rX}, s{pWO}", f"s_mov_b32 s{rX+1}, s{pWO+1}", f"s_mov_b32 s{rX+2}, {4 * MB}",
               f"s_mov_b32 s{rH}, s{pOUT}", f"s_mov_b32 s{rH+1}, s{pOUT+1}", f"s_mov_b32 s{rH+2}, {2 * MB}"]
        g = S.flow(sal, 0, 23)[-1]
        S.put(24, f"s_add_u32 s{sPollC}, s{pWS}, s{sTmp}")
        S.put(24, f"s_addc_u32 s{sPollC+1}, s{pWS+1}, 0")
        val = [f"v_lshrrev_b32 v{t}, 9, v{vL16}", f"v_lshlrev_b32 v{t}, 10, v{t}", f"v_lshlrev_b32 v{t+1}, 15, s{sWv}",
               f"v_sub_u32 v{t}, v{t+1}, v{t}"]
        val += [f"v_add_u32 v{vR[c]}, v{vWRa[c]}, v{t}" for c in range(4)]
        val += [f"v_lshrrev_b32 v{t}, 7, v{vL16}", f"v_and_b32 v{t+1}, 0x7f, v{vW8}", f"v_lshl_add_u32 v{vDm[0]}, v{t}, 10, v{t+1}"]
        val += [f"v_add_u32 v{vDm[i]}, {7168 * i}, v{vDm[0]}" for i in range(1, 4)]
        val += [f"v_lshl_add_u32 v{vAo[0]}, s{sWv}, 10, v{vL16}"]
        for k in range(1, 4):
            val += [f"v_add_u32 v{vAo[k]}, {1024 * k}, v{vAo[0]}", f"v_and_b32 v{vAo[k]}, 0xfff, v{vAo[k]}"]
        val += [f"v_bfe_u32 v{vA}, v{vL16}, 2, 7"]
        S.flow(val, 0, 24)

    def p3_table(self, T, last, N):
        t = ET
        s1 = self.chain_tasks(T, [f"s_xor_b32 s{sTmp}, s{sRG}, s{sJ}", f"s_and_b32 s{sTmp}, s{sTmp}, {self.a.pmask}",
                                  f"s_and_b32 s{sTmp2}, s{sTmp}, 1", f"s_mul_i32 s{sSpin}, s{sWv}, {self.a.pshift}"], 0, 20)
        m = f"s[{sMA}:{sMA+1}]"
        ops = [f"v_lshrrev_b32 v{t}, 4, v{vL16}",
               f"v_add_u32 v{t+1}, s{sSpin}, v{t}",
               f"v_cmp_le_i32 vcc, 14, v{t+1}",
               f"v_subrev_u32 v{t+2}, 14, v{t+1}",
               f"v_cmp_le_i32 {m}, 14, v{t}",
               f"v_cndmask_b32 v{t+1}, v{t+1}, v{t+2}, vcc",
               f"v_cmp_le_i32 vcc, 12, v{t+1}",
               f"v_xor_b32 v{t+3}, s{sTmp}, v{t+1}",
               f"v_xor_b32 v{t+1}, s{sTmp2}, v{t+1}",
               f"v_cndmask_b32 v{t+1}, v{t+3}, v{t+1}, vcc",
               f"v_xor_b32 v{t+2}, s{sTmp}, v{t+2}",
               f"v_and_b32 v{t+2}, 31, v{t+2}",
               f"v_lshl_add_u32 v{t+3}, v{t+1}, 15, s{sW2b}",
               f"v_lshl_add_u32 v{t+4}, v{t+2}, 15, s{sWob}",
               f"v_cndmask_b32 v{vTW}, v{t+3}, v{t+4}, {m}",
               f"v_lshl_add_u32 v{t+3}, v{t+1}, 12, s{sActH}",
               f"v_lshl_add_u32 v{t+4}, v{t+2}, 12, s{sActC}",
               f"v_lshrrev_b32 v{t+2}, 2, v{t+2}",
               f"v_mul_u32_u24 v{t+2}, {ACT_HD - 16384}, v{t+2}",
               f"v_add_u32 v{t+4}, v{t+4}, v{t+2}",
               f"v_cndmask_b32 v{vTA}, v{t+3}, v{t+4}, {m}"]
        self.chain_tasks(T, ops, 21, N - 1, last)

    def p3_off(self, ks):
        return [Op(f"v_readlane_b32 s{sT[2 * (ks & 1)]}, v{vTW}, {ks}"), Op(f"v_readlane_b32 s{sT[2 * (ks & 1) + 1]}, v{vTA}, {ks}")]

    def p3_w(self, ks):
        ops = []
        if ks == 14:
            ops += [Op(f"s_mov_b32 s{rW}, s{pWO}"), Op(f"s_mov_b32 s{rW+1}, s{pWO+1}"), Op(f"s_mov_b32 s{rW+2}, {4 * MB}")]
        ops.append(Op(f"s_add_u32 m0, s{sM0p}, {(ks & 7) * 4096}"))

        def wr(c):
            al = [((w, k), ("P", ks), True) for w in "KV" for k in range(4)] if ks < 8 else []
            return [(("P", ks & 7), ("P", ks, c.get("fb")), False)] + al
        for i in range(4):
            ops.append(Op(f"buffer_load_dwordx4 v{vDm[i]}, {srd(rW)}, s{sT[2 * (ks & 1)]} offen offset:{i * 1024} lds", lds_wr=wr))
        return ops

    def p3_a(self, ks):
        return [Op(f"buffer_load_dwordx4 {vr(AR + 16 * (ks & 7) + 4 * k)}, v{vAo[k]}, {srd(rWS)}, s{sT[2 * (ks & 1) + 1]} offen{self.a.ld}",
                   after="h" if ks < 14 else "c", expect={("s", sT[2 * (ks & 1) + 1]): f"v_readlane_b32 s{sT[2 * (ks & 1) + 1]}, v{vTA}, {ks}"})
                for k in range(4)]

    def p3_reads(self, ks):
        ops = []
        for c in range(4):
            for hh in range(2):
                ops.append(Op(f"ds_read_b64_tr_b16 {vr(WF2 + 16 * (ks & 1) + 4 * c + 2 * hh, 2)}, v{vR[c]} offset:{(ks & 7) * 4096 + hh * 2048}",
                              lds_rd=lambda cx: (("P", ks & 7), ("P", ks, cx.get("fb")), False)))
        return ops

    def one_extra(self, S, T, info, last):
        if self.a.upto == "attn":
            return
        ld, chk, br = self.poll("h", f"buffer_load_dword v{vP}, v{vA}, {srd(rWS)}, s{sPollH} offen sc1", f"v_cmp_eq_u32 vcc, 0, v{vP}",
                                expect={("v", vA): f"v_bfe_u32 v{vA}, v{vL16}, 2, 7", ("s", sPollH): f"s_add_u32 s{sPollH}, s{sPollH}, {HFLAG_OFF}"})
        T.append(Task(ld, 8, 20))
        if self.a.ct3:
            val, ops = self.code_touch(MX + 3, MX + 4, 1024)
            l0 = self.chain_tasks(T, val, 0, 24)
            l1 = Task(ops[0], 0, 26)
            T += [l1, Task(ops[1], 0, 28, [(l0, 1), (l1, 0)])]
        if self.a.t3:
            last = self.chain_tasks(T, [f"s_lshr_b32 s{sKo}, s{sB}, 3", f"s_mul_i32 s{sVo}, s{sKo}, {14 * 1024}",
                                        f"s_mul_i32 s{sTmp}, s{sWv}, {14 * 32768}", f"s_add_u32 s{sVo}, s{sVo}, s{sTmp}",
                                        f"s_sub_u32 s{sTmp}, 384, s{pW2}", f"s_and_b32 s{sTmp}, s{sTmp}, 0x380", f"s_add_u32 s{sVo}, s{sVo}, s{sTmp}",
                                        f"s_lshl_b32 s{sKo}, s{sKo}, 13", f"s_lshl_b32 s{sTmp}, s{sWv}, 20", f"s_add_u32 s{sKo}, s{sKo}, s{sTmp}",
                                        f"s_sub_u32 s{sTmp}, 384, s{pWO}", f"s_and_b32 s{sTmp}, s{sTmp}, 0x380", f"s_add_u32 s{sKo}, s{sKo}, s{sTmp}"], 0, 30)
            l2 = self.chain_tasks(T, [f"v_min_u32 v{MX}, {13 * 16}, v{vL16}", f"v_lshlrev_b32 v{MX}, 6, v{MX}",
                                      f"v_and_b32 v{MX+1}, {7 * 16}, v{vL16}", f"v_lshlrev_b32 v{MX+1}, 6, v{MX+1}"], 0, 30)
            T.append(Task(f"buffer_load_dword v{MX+2}, v{MX}, {srd(rW)}, s{sVo} offen", 0, 40, [(last, 1), (l2, 1)]))
        self.hpoll = chk + [Op("s_nop 0")] + br

    def tail(self, B):
        if self.a.upto == "attn":
            p = Plain("epiB")
            for o in self.stamp_ops():
                p.e(o)
            self.epilogue(p.e, [2, 3])
            return [B["check2"]], [p]
        PD = self.a.pd
        m = Plain("p3pre0")
        for o in self.p3_off(0) + self.p3_off(1) + self.hpoll + self.pad_m0(self.p3_w(0)):
            m.e(o)
        p = Plain("p3pre")
        e = p.e
        for o in self.stamp_ops():
            e(o)
        lds = self.p3_a(0)
        for ks in range(1, PD):
            lds += self.p3_off(ks + 1) + self.pad_m0(self.p3_w(ks)) + self.p3_a(ks)
        ep = Plain("tmp")
        self.epilogue(ep.e, [2, 3])
        li = [0]

        def take(n):
            while li[0] < len(lds) and n > 0:
                o = lds[li[0]]
                e(o)
                li[0] += 1
                if o.kind in VM:
                    n -= 1
        take(4)
        k = 0
        for o in ep.ops:
            e(o)
            k += 1
            if k % self.a.epistep == 0:
                take(1)
        take(1000)
        sel = ET + 4
        e(f"v_min_u32 v{Zt}, 1, v{vL16}")
        e(f"v_lshlrev_b32 v{Zt}, 28, v{Zt}")
        e(f"v_bfe_u32 v{Zu}, v{vL16}, 4, 4")
        e(f"v_lshlrev_b32 v{Zu}, 10, v{Zu}")
        e(f"v_lshrrev_b32 v{vA}, 8, v{vL16}")
        e(f"v_lshl_add_u32 v{Zu}, v{vA}, 3, v{Zu}")
        e(f"s_lshl_b32 s{sRG}, s{sRG}, 16")
        e(f"s_lshl_b32 s{sTmp}, s{sWv}, 14")
        e(f"s_add_u32 s{sRG}, s{sRG}, s{sTmp}")
        e(f"s_add_u32 s{sRG}, s{sRG}, s{sCG}")
        for o in self.stamp_ops():
            e(o)
        e(W(vm=True))
        for o in self.p3_reads(0):
            e(o)
        for o in self.p3_off(PD + 1) + self.pad_m0(self.p3_w(PD)) + self.p3_a(PD):
            e(o)
        e(W(lg=True))
        S = Seg("p3")
        NK = 46
        for ks in range(NK):
            for c in range(4):
                for k in range(4):
                    d = ar(16 * k + 4 * c)
                    S.mfma(f"{MF} {d}, {vr(WF2 + 16 * (ks & 1) + 4 * c)}, {vr(AR + 16 * (ks & 7) + 4 * k)}, {d if ks else 0}")
        XR = B2 + 32
        for ks in range(NK):
            g0 = 16 * ks
            if ks + 1 < NK:
                S.put(g0, W(vm=True))
                for i, o in enumerate(self.p3_reads(ks + 1)):
                    S.put(g0 + [0, 1, 3, 4, 6, 7, 9, 10][i], o)
            ops = []
            kn = ks + PD + 1
            if ks == PD - 1:
                ops += [Op(f"buffer_atomic_add v{vD}, v{Zt}, {srd(rWS)}, s{sFlagC} offen sc1", needs=[("cst", False)],
                           expect={("v", vD): f"v_mov_b32 v{vD}, 1", ("v", Zt): f"v_lshlrev_b32 v{Zt}, 28, v{Zt}",
                                   ("s", sFlagC): f"s_add_u32 s{sFlagC}, s{sFlagC}, {CFLAG_OFF}"})]
            if kn < NK:
                ops += self.p3_w(kn)
                if kn == 14:
                    keep = lambda l: [setattr(o, "kind", "salu" if o.kind == "valu" else o.kind) or o for o in l]
                    ops += keep(self.stamp_ops()) if self.a.p3stamps else []
                    ops += [Op(f"s_cmp_lt_u32 s{sSpin}, 32", expect={("s", sSpin): f"s_load_dword s{sSpin}, s[{sPollC}:{sPollC+1}], 0x0 glc",
                                                                     ("s", sPollC): f"s_add_u32 s{sPollC}, s{pWS}, s{sTmp}"}),
                            Op("s_cbranch_scc1 L_spin_c"), Op("L_back_c:")]
                    ops += keep(self.stamp_ops()) if self.a.p3stamps else []
                if kn in (6, 22, 30, 38) and self.a.p3stamps:
                    keep = lambda l: [setattr(o, "kind", "salu" if o.kind == "valu" else o.kind) or o for o in l]
                    ops += keep(self.stamp_ops())
                ops += self.p3_a(kn)
            if self.a.t3 and kn + self.a.t3 in (14, 22, 30, 38):
                ops += [Op(f"buffer_load_dword v{MX+2}, v{MX+1}, {srd(rX)}, s{sKo} offen"), Op(f"s_add_u32 s{sKo}, s{sKo}, {256 * 1024}")]
            if ks == NK - PD - 1:
                ops += [Op(f"s_mov_b32 s{rX}, s{pX}"), Op(f"s_mov_b32 s{rX+1}, s{pX+1}"), Op(f"s_mov_b32 s{rX+2}, {2 * MB}")]
                ops += [Op(f"buffer_load_dwordx2 {vr(XR + 2 * c, 2)}, v{Zu}, {srd(rX)}, s{sRG} offen offset:{32 * c}") for c in range(4)]
            S.flow(ops, g0 + 1, g0 + 15)
            if kn + 1 < NK:
                S.flow(self.p3_off(kn + 1), g0 + 3, g0 + 10)
            if kn == 13:
                S.put(g0 + 11, f"s_load_dword s{sSpin}, s[{sPollC}:{sPollC+1}], 0x0 glc", front=True)
                S.put(g0 + 15, "s_waitcnt lgkmcnt(0)")
            elif ks + 1 < NK:
                S.put(g0 + 15, W(lg=True))
        q = Plain("spin_c")
        q.e("L_spin_c:")
        q.e(f"s_mov_b32 s{sCnt}, 0")
        q.e("L_spin2_c:")
        q.e(f"s_load_dword s{sSpin}, s[{sPollC}:{sPollC+1}], 0x0 glc")
        q.e(f"s_add_u32 s{sCnt}, s{sCnt}, 1")
        q.e(f"s_cmp_gt_u32 s{sCnt}, 400000")
        q.e("s_waitcnt lgkmcnt(0)")
        q.e("s_cbranch_scc1 L_back_c")
        q.e(f"s_cmp_lt_u32 s{sSpin}, 32")
        q.e("s_cbranch_scc0 L_back_c")
        q.e("s_sleep 2")
        q.e("s_branch L_spin2_c")
        self.ool.append(q)
        f = Plain("final")
        e = f.e
        for o in self.stamp_ops():
            e(o)
        a0 = AR
        e(f"v_add_u32 v{a0}, s{sM0p}, v{vL16}")
        for k in range(1, 4):
            e(f"v_subrev_u32 v{a0+k}, {32768 * k}, v{a0}")
            e(f"v_and_b32 v{a0+k}, 0x1ffff, v{a0+k}")
        e("s_nop 3")
        for k in range(1, 4):
            for c in range(4):
                e(f"ds_write_b128 v{a0}, {ar(16 * k + 4 * c)} offset:{k * 4096 + c * 1024}", lds_wr=(("P", k), "red", False))
        O = AR + 16
        for i in range(16):
            e(f"v_accvgpr_read_b32 v{O+i}, a{i}")
        e(W(vm=True))
        U = AR + 32
        for i in range(8):
            e(f"v_lshlrev_b32 v{U+2*i}, 16, v{XR+i}")
            e(f"v_and_b32 v{U+2*i+1}, 0xffff0000, v{XR+i}")
        for i in range(8):
            e(f"v_pk_add_f32 {vr(O+2*i, 2)}, {vr(O+2*i, 2)}, {vr(U+2*i, 2)}")
        e(W(lg=True))
        e("s_barrier")
        R = AR + 48
        for c in range(4):
            for k in range(1, 4):
                e(f"ds_read_b128 {vr(R + 16 * (k - 1) + 4 * c)}, v{a0+k} offset:{k * 4096 + c * 1024}", lds_rd=(("P", k), "red", True))
        for c in range(4):
            e(W(lg=True))
            for k in range(3):
                for h in range(2):
                    e(f"v_pk_add_f32 {vr(O+4*c+2*h, 2)}, {vr(O+4*c+2*h, 2)}, {vr(R+16*k+4*c+2*h, 2)}")
            for h in range(2):
                e(f"v_cvt_pk_bf16_f32 v{U+2*c+h}, v{O+4*c+2*h}, v{O+4*c+2*h+1}")
            e(f"buffer_store_dwordx2 {vr(U+2*c, 2)}, v{Zu}, {srd(rH)}, s{sRG} offen offset:{32 * c}")
        return [m, B["check2"]], [p, S, f]

    def finish(self, blocks, traces):
        for it in range(2):
            for name, tr in traces:
                Tracer(name, tr).run(resolve=True)
        soft = 0
        for name, tr in traces:
            T = Tracer(name, tr)
            T.run(resolve=False)
            soft += T.hazards()
            T.intent()
        for b in blocks:
            n = b.n() if isinstance(b, Seg) else 0
            print(f"  block {b.name:12s} mfma={n:5d} est.cycles={b.cycles():6d}" + (f" (ideal {16*n})" if n else ""))
        print("  mfma distances satisfied by pipe timing only:", soft, " stamps:", self.nstamp)
        hdr = open(self.a.ref).read().split("; Override launch")[0]
        out = [hdr.rstrip("\n"),
               "; generated by gen/gen.py (hand-written generator)",
               f"; @launch grid=(256,1,1) block=(256,1,1) lds={LDS_BYTES}",
               '.amdgcn_target "amdgcn-amd-amdhsa--gfx950"', ".text", f".globl {NAME}_kernel", ".p2align 8",
               f".type {NAME}_kernel,@function", f"{NAME}_kernel:"]
        for b in blocks + self.ool:
            out.append(f"; ---- {b.name} ----")
            for o in b.linear():
                t = o.render()
                out.append(t if o.kind == "label" else " " + t)
        out += ["L_code_end:", " s_endpgm"]
        out += ['.section .rodata,"a"', ".p2align 6", f".amdhsa_kernel {NAME}_kernel",
                "  .amdhsa_next_free_vgpr 512", "  .amdhsa_next_free_sgpr 102", "  .amdhsa_accum_offset 256",
                "  .amdhsa_group_segment_fixed_size 0", "  .amdhsa_kernarg_size 104", "  .amdhsa_user_sgpr_count 2",
                "  .amdhsa_user_sgpr_kernarg_segment_ptr 1", "  .amdhsa_system_sgpr_workgroup_id_x 1", ".end_amdhsa_kernel", ""]
        open(self.a.out, "w").write("\n".join(out))


def args():
    ap = argparse.ArgumentParser()
    ap.add_argument("--out", default="k.s")
    ap.add_argument("--ref", default=f"cdna_kernels/{NAME}.s.ref")
    ap.add_argument("--upto", default="full")
    ap.add_argument("--stamps", action="store_true")
    ap.add_argument("--finestamps", action="store_true")
    ap.add_argument("--wld", default="")
    ap.add_argument("--tld", default="")
    ap.add_argument("--prostamps", action="store_true")
    ap.add_argument("--rmask", type=int, default=3)
    ap.add_argument("--jmask", type=int, default=7)
    ap.add_argument("--ctouch", type=int, default=1)
    ap.add_argument("--wtouch", type=int, default=1)
    ap.add_argument("--otouch", type=int, default=1)
    ap.add_argument("--quick", type=int, default=4)
    ap.add_argument("--pd", type=int, default=3)
    ap.add_argument("--win1", type=int, default=0)
    ap.add_argument("--xld", default=" nt")
    ap.add_argument("--lead", default=" nt")
    ap.add_argument("--t23", default="")
    fl = lambda x: [float(v) for v in x.split(",")]
    ap.add_argument("--tg", type=fl, default=fl("21.5,25.5,26,21"))
    ap.add_argument("--w1early", type=int, default=5)
    ap.add_argument("--lite", action="store_true")
    ap.add_argument("--ct2", type=fl, default=fl("44,92"))
    ap.add_argument("--ct3", type=int, default=1)
    ap.add_argument("--t3", type=int, default=6)
    ap.add_argument("--tnt", type=fl, default=fl("0,0,0"))
    ap.add_argument("--clead", type=float, default=4.5)
    ap.add_argument("--wlead", type=float, default=3)
    ap.add_argument("--wstart", type=fl, default=fl("19,23,31,39,47,55,63,71,79,87"))
    ap.add_argument("--wstep", type=fl, default=fl("0.3,0.3,1,1,1,1,1,1,1,1"))
    ap.add_argument("--kst", type=fl, default=fl("35,1.35"))
    ap.add_argument("--vst", type=fl, default=fl("70.5,1.2"))
    ap.add_argument("--hst", type=fl, default=fl("84,3.6"))
    ap.add_argument("--xn", type=fl, default=fl("40,0.5"))
    ap.add_argument("--kv", type=fl, default=fl("96,3,109"))
    ap.add_argument("--kflag", type=int, default=8)
    ap.add_argument("--vflag", type=int, default=11)
    ap.add_argument("--vmin", type=int, default=3)
    ap.add_argument("--vrate", type=float, default=4.4)
    ap.add_argument("--vburst", type=float, default=6)
    ap.add_argument("--rt", action="store_true")
    ap.add_argument("--p3stamps", action="store_true")
    ap.add_argument("--cgx", type=int, default=0)
    ap.add_argument("--pmask", type=int, default=3)
    ap.add_argument("--pshift", type=int, default=0)
    ap.add_argument("--epistep", type=int, default=12)
    ap.add_argument("--verbose", action="store_true")
    ap.add_argument("--ld", default=" sc1")
    ap.add_argument("--st", default=" sc1")
    return ap.parse_args()


if __name__ == "__main__":
    Gen(args()).build()
```

```python
import sys, struct, argparse
from fw import *

NAME = "parallel_sum__compressed_kv_cla__dense_activation_mish__prompt"
MB = 1 << 20
KB = 1024
XN_RT = 17 * KB
KV_T = 17 * KB
KV_H = 32 * KV_T + 5 * KB
ACT_HD = 17 * KB
ACT_HOFF = 32 * ACT_HD
ACT_RG = ACT_HOFF + 56 * 4096 + 5 * KB
XN_OFF = 0
K_OFF = 3 * MB
V_OFF = 21 * MB + 10 * KB
ACT_OFF = 39 * MB
FLAG_OFF = 66 * MB
HFLAG_OFF = FLAG_OFF + 4096
CFLAG_OFF = FLAG_OFF + 5120
STAMP_OFF = 68 * MB
QDUMP_OFF = 72 * MB
WS_BYTES = 256 * MB

SLOT = [128 * 1024, 0, 32 * 1024]
CST = 64 * 1024
VRING = 0
KRING = 64 * 1024
SPARE = 128 * 1024
LDS_BYTES = 160 * 1024


def f32(x):
    return "0x%08x" % struct.unpack("<I", struct.pack("<f", x))[0]


LOG2E = 1.4426950408889634
SCALE = LOG2E * 128 ** -0.5

pX, pC, pWQ, pWK, pWV, pWO, pBX, pW1, pB1, pW2, pOUT, pDBG, pWS = [4 + 2 * i for i in range(13)]
rW, rC, rWS, rH, rDBG, rX, rV = 32, 36, 40, 44, 48, 52, 56
rK = rC
sB = 2
sWv, sH, sJ = 60, 61, 62
sWp8, sWp1 = 63, 64
sT = [65, 66, 67, 68]
sCb = 69
sM0c, sM0w = 70, 71
sKVst = 72
sRT = [73, 74, 75, 76]
sAct = [77, 78, 79, 80]
sFlagKV, sFlagH, sFlagC = 81, 82, 83
sSC = 84
sTmp, sTmp2 = 85, 86
sSpin = 87
sBad = 88
sKo, sVo = 90, 91
sMc, sMn = 92, 93
sCnt = 94
sFb = 95
sStamp = 96
sMask = 98
sPollKV = 3
sL2E = 30
sWp1b = 31
sPC = 16
sKa, sKb, sVa, sVb = 98, 99, 100, 101
sM0j = 88
sR = 89


def srd(r):
    return f"s[{r}:{r+3}]"


def vr(b, n=4):
    return f"v[{b}:{b+n-1}]" if n > 1 else f"v{b}"


def ar(b, n=4):
    return f"a[{b}:{b+n-1}]" if n > 1 else f"a{b}"


vSel0 = 0
vL16 = 1
vW8, vW1 = 2, 3
vCD = [4, 5]
vCR = [6, 7]
vWRa = [8, 9, 10, 11]
vWRb = [12, 13, 14, 15]
B0, B1, B2 = 16, 80, 144
WF = 208
T0 = 240

MF = "v_mfma_f32_16x16x32_bf16"
MF32 = "v_mfma_f32_32x32x16_bf16"
vKc, vKn, vVc, vVn = 4, 5, 6, 7
SB = B2
BANK = B2 + 16
NEG = {1: B2 + 32, 2: B2 + 36, 3: B2 + 40}
NEG3L = B2 + 44
NEG0 = B2 + 48
MX = B2 + 52
ZERO, ONES = WF, WF + 4
ET = WF + 8
Z0, Z1, NINF, vP, vA, vD, Zt, Zu = [T0 + 8 + i for i in range(8)]
aO, aL, aK, aV = 0, 128, 144, 176
sMA, sMB = 98, 100
LAT = 7
vR = [8, 9, 10, 11]
vDm = [12, 13, 14, 15]
vAo = [B2 + 60 + i for i in range(4)]
AR = B0
WF2 = B2
sRG, sCG = sRT[0], sRT[1]
sActH, sActC = sRT[2], sRT[3]
sW2b, sWob = sWp8, sWp1
sM0p = sCb
sPollH = sKVst
sPollC = 70
vTA, vTW = 2, 3


def Qf(t, u):
    return B1 + 32 * (u & 1) + 16 * (u >> 1) + 4 * t


def Pf(par, t, kg):
    return B0 + 32 * par + 8 * t + 4 * kg


def negsrc(t):
    return NEG0 if t == 0 else NEG[t]


class Gen:
    def __init__(self, a):
        self.a = a
        self.blocks = []
        self.ool = []
        self.nstamp = 0
        self.rot = 0
        self.m0 = None
        self.nct = 0

    def st(self):
        self.rot = (self.rot + 1) % 4
        return sT[self.rot]

    def stamp_ops(self):
        if not self.a.stamps or self.a.lite:
            return []
        i = self.nstamp
        self.nstamp += 1
        if self.a.rt:
            return [Op(f"s_memrealtime s[{sStamp}:{sStamp+1}]"), Op("s_waitcnt lgkmcnt(0)"), Op(f"s_mul_i32 s{sStamp}, s{sStamp}, 4"),
                    Op(f"s_bitset1_b32 s{sStamp}, 31"), Op(f"s_bitset0_b32 s{sStamp}, 30"),
                    Op(f"v_writelane_b32 v{vSel0}, s{sStamp}, {i + 1}")]
        return [Op(f"s_memtime s[{sStamp}:{sStamp+1}]"), Op("s_waitcnt lgkmcnt(0)"),
                Op(f"s_bitset1_b32 s{sStamp}, 31"), Op(f"s_bitset0_b32 s{sStamp}, 30"), Op(f"s_bitset0_b32 s{sStamp}, 0"), Op(f"s_bitset0_b32 s{sStamp}, 1"),
                Op(f"v_writelane_b32 v{vSel0}, s{sStamp}, {i + 1}")]

    def rt_ops(self, lane):
        if not self.a.stamps:
            return []
        return [Op(f"s_memrealtime s[{sStamp}:{sStamp+1}]"), Op("s_waitcnt lgkmcnt(0)"), Op(f"s_lshl_b32 s{sStamp}, s{sStamp}, 2"),
                Op(f"s_bitset1_b32 s{sStamp}, 31"), Op(f"s_bitset0_b32 s{sStamp}, 30"),
                Op(f"v_writelane_b32 v{vSel0}, s{sStamp}, {lane}")]

    def set_m0(self, text):
        if text == self.m0:
            return []
        self.m0 = text
        return [Op(text)]

    def mk_srd(self, e, r, p, nbytes):
        e(f"s_mov_b32 s{r}, s{p}")
        e(f"s_mov_b32 s{r+1}, s{p+1}")
        e(f"s_mov_b32 s{r+2}, {nbytes}")
        e(f"s_mov_b32 s{r+3}, 0x20000")

    def w_dma(self, n, i):
        slot = (n + 2) % 3
        ops = []
        if i == 0 and n in (4, 8, 10):
            p = {4: pWV, 8: pW1, 10: pWQ}[n]
            ops += [Op(f"s_mov_b32 s{rW}, s{p}"), Op(f"s_mov_b32 s{rW+1}, s{p+1}")]
            if n == 8:
                ops.append(Op(f"s_min_u32 s{rW+2}, s{rH+2}, {512*3584}"))
            if n == 10:
                s = self.st()
                ops += [Op(f"s_mov_b32 s{rW+2}, {4*MB}"), Op(f"s_lshr_b32 s{s}, s{sR}, 1"), Op(f"s_lshl_b32 s{s}, s{s}, 18"),
                        Op(f"s_xor_b32 s{sWp8}, s{sWp8}, s{s}"), Op(f"s_lshr_b32 s{s}, s{sWv}, 1"),
                        Op(f"s_mul_i32 s{s}, s{s}, {(1 << 20) + (1 << 7)}"), Op(f"s_xor_b32 s{sWp8}, s{sWp8}, s{s}")]
        s = self.st()
        wr = [(("W", slot), ("W", n), True)]
        if n == 2:
            wr += [(("X", 0), ("W", n), False), (("X", 1), ("W", n), False)]
        if n in (8, 9):
            ops += self.set_m0(f"s_add_u32 m0, s{sM0w}, {SLOT[slot] + (i >> 2) * 4096}")
            off = (n - 8) * 256 * 3584 + (16 * ((i >> 1) & 1) + 4 * (i & 1)) * 3584 - (i & 3) * 1024
            ops.append(Op(f"s_add_u32 s{s}, s{sWp1b if i >> 2 else sWp1}, {off}"))
            ops.append(Op(f"buffer_load_dwordx4 v{vW1}, {srd(rW)}, s{s} offen offset:{(i & 3) * 1024}{self.a.wld} lds", lds_wr=wr))
        else:
            base = (n % 4) << 20 if n < 8 else ((n & 1) << 21) + (((n - 10) >> 1) << 7)
            ops += self.set_m0(f"s_xor_b32 m0, s{sM0j}, {SLOT[slot] + i * 1024}")
            ops.append(Op(f"s_xor_b32 s{s}, s{sWp8}, {base + (16 * (i >> 1) + 4 * (i & 1)) * 8192}"))
            fl = self.a.lead if (i == 0 and n < 2) else self.a.wld
            ops.append(Op(f"buffer_load_dwordx4 v{vW8}, {srd(rW)}, s{s} offen{fl} lds", lds_wr=wr))
        return ops

    def c_region(self, u):
        if u < 4:
            return ("C", u)
        if u == 4:
            return ("X", 1)
        return ("C", (u - 5) % 4)

    def c_dma(self, u):
        kq, p0, p1 = u >> 2, u & 1, (u >> 1) & 1
        reg = self.c_region(u)
        s, s2 = self.st(), self.st()
        if reg[0] == "C":
            m = f"s_add_u32 m0, s{sM0c}, {CST + reg[1] * 4096}"
        else:
            m = f"s_add_u32 m0, s{sM0w}, {SLOT[1] + reg[1] * 4096}"
        ops = self.set_m0(m)
        ops += [Op(f"s_xor_b32 s{s}, s{sCb}, {(p1 << 15) + (kq << 8) + (p0 << 7)}"), Op(f"s_add_u32 s{s2}, s{s}, 14336")]
        for q in range(4):
            ops.append(Op(f"buffer_load_dwordx4 v{vCD[q & 1]}, {srd(rC)}, s{s2 if q >> 1 else s} offen offset:{q * 1024} lds",
                          lds_wr=(reg, ("c", u), False)))
        return ops

    def c_reads(self, u):
        kq, p0, p1 = u >> 2, u & 1, (u >> 1) & 1
        reg = self.c_region(u)
        ops = []
        for t in range(2):
            for sb in range(2):
                a = vCR[sb] if reg[0] == "C" else T0 + 14 + sb
                ops.append(Op(f"ds_read_b128 {ar(64*kq + 16*(2*p1 + t) + 4*(2*p0 + sb))}, v{a} offset:{reg[1] * 4096 + t * 2048}",
                              lds_rd=(reg, ("c", u), False)))
        return ops

    def w_reads(self, G):
        n, gi = G >> 3, G & 7
        slot = (n + 2) % 3
        hf, c4 = gi >> 2, gi & 3
        a = (vWRb if slot == 0 else vWRa)[c4]
        base = (0 if slot == 0 else SLOT[slot]) + hf * 16384
        ops = []
        for s in range(4):
            for hh in range(2):
                d = WF + 16 * (G & 1) + 4 * s + 2 * hh
                ops.append(Op(f"ds_read_b64_tr_b16 {vr(d, 2)}, v{a} offset:{base + s * 4096 + hh * 1024}",
                              lds_rd=(("W", slot), ("W", n), True)))
        return ops

    def code_touch(self, vt, vd, skip):
        self.nct += 1
        lab = f"L_pc{self.nct}"
        val = [f"v_lshrrev_b32 v{vt}, 9, v{vL16}", f"v_lshlrev_b32 v{vt}, 14, v{vt}", f"v_lshl_add_u32 v{vt}, s{sWv}, 7, v{vt}",
               f"v_lshrrev_b32 v{vd}, 3, s{sB}", f"v_lshl_add_u32 v{vt}, v{vd}, 9, v{vt}", f"v_add_u32 v{vt}, {skip}, v{vt}",
               f"v_min_u32 v{vt}, L_code_end-{lab}-4, v{vt}"]
        o = Op(f"s_getpc_b64 s[{sPC}:{sPC+1}]")
        o.text += f"\n{lab}:"
        return val, [o, Op(f"global_load_dword v{vd}, v{vt}, s[{sPC}:{sPC+1}]")]

    def pad_m0(self, ops):
        out = []
        for o in ops:
            if o.kind == "dma" and out and ("s", "m0") in out[-1].writes:
                out.append(Op("s_nop 0"))
            out.append(o)
        return out

    def poll(self, name, load_text, cmp_text, expect=None, after=None):
        p = Plain("spin_" + name)
        p.e(f"L_spin_{name}:")
        p.e(f"s_mov_b32 s{sSpin}, 0")
        p.e(f"L_spin2_{name}:")
        p.e("s_sleep 4")
        p.e(load_text)
        p.e(f"s_add_u32 s{sSpin}, s{sSpin}, 1")
        p.e(f"s_cmp_gt_u32 s{sSpin}, 200000")
        p.e("s_waitcnt vmcnt(0)")
        p.e(f"s_cbranch_scc1 L_back_{name}")
        p.e(cmp_text)
        p.e("s_nop 1")
        p.e(f"s_cbranch_vccnz L_spin2_{name}")
        p.e(f"s_branch L_back_{name}")
        self.ool.append(p)
        return (Op(load_text, expect=expect, after=after), [W(vm=True), Op(cmp_text, expect={("v", vP): load_text})],
                [Op(f"s_cbranch_vccnz L_spin_{name}", expect=expect), Op(f"L_back_{name}:")])

    def prologue(self):
        p = Plain("prologue")
        e = p.e
        e(f"s_cmp_ge_u32 s{sB}, 256")
        e("s_cbranch_scc1 L_end")
        e("s_load_dwordx16 s[4:19], s[0:1], 0")
        e("s_load_dwordx8 s[20:27], s[0:1], 64")
        e("s_load_dwordx2 s[28:29], s[0:1], 96")
        t = T0
        if self.a.ctouch:
            e(f"s_getpc_b64 s[{sStamp}:{sStamp+1}]")
            e("L_pc:")
            e(f"s_lshr_b32 s{sTmp}, s{sB}, 3")
            e(f"s_lshl_b32 s{sTmp}, s{sTmp}, 9")
            e(f"v_and_b32 v{t+6}, 7, v0")
            e(f"v_lshl_add_u32 v{t+11}, v{t+6}, 14, s{sTmp}")
            e(f"v_and_b32 v{t+6}, 0xc0, v0")
            e(f"v_lshl_add_u32 v{t+11}, v{t+6}, 1, v{t+11}")
            e(f"v_min_u32 v{t+11}, L_code_end-L_pc-4, v{t+11}")
            e(f"global_load_dword v{B2+63}, v{t+11}, s[{sStamp}:{sStamp+1}]")
        e(f"v_lshrrev_b32 v{t}, 6, v0")
        e(f"v_and_b32 v{t+1}, 63, v0")
        e(f"v_readfirstlane_b32 s{sWv}, v{t}")
        e(f"v_lshlrev_b32 v{vL16}, 4, v{t+1}")
        e(f"v_min_u32 v0, 1, v0")
        e(f"v_lshlrev_b32 v{vSel0}, 28, v0")
        for o in self.rt_ops(62) + self.stamp_ops():
            e(o)
        if self.a.dbgout >= 0:
            for x in (f"s_memtime s[{sStamp}:{sStamp+1}]", "s_waitcnt lgkmcnt(0)", f"s_bitset1_b32 s{sStamp}, 31", f"s_bitset0_b32 s{sStamp}, 30",
                      f"s_bitset0_b32 s{sStamp}, 0", f"s_bitset0_b32 s{sStamp}, 1", f"v_writelane_b32 v{vSel0}, s{sStamp}, 61"):
                e(x)
        e(f"s_and_b32 s{sH}, s{sB}, 7")
        e(f"s_lshl_b32 s{sH}, s{sH}, 2")
        e(f"s_bfe_u32 s{sTmp}, s{sB}, 0x20003")
        e(f"s_add_u32 s{sH}, s{sH}, s{sTmp}")
        e(f"s_lshr_b32 s{sJ}, s{sB}, 5")
        e(f"v_and_b32 v{t+2}, 31, v{t+1}")
        e(f"v_lshrrev_b32 v{t+3}, 5, v{t+1}")
        e(f"v_lshlrev_b32 v{t+4}, 10, v{t+3}")
        e(f"v_lshl_add_u32 v{t+4}, v{t+2}, 4, v{t+4}")
        e(f"s_lshl_b32 s{sTmp}, s{sB}, 13")
        e(f"s_lshl_b32 s{sTmp2}, s{sWv}, 11")
        e(f"s_add_u32 s{sTmp}, s{sTmp}, s{sTmp2}")
        e(f"v_lshrrev_b32 v{t+5}, 3, v{t+1}")
        e(f"v_and_b32 v{t+6}, 7, v{t+1}")
        e(f"v_lshrrev_b32 v{t+7}, 4, v{t+1}")
        e(f"v_xor_b32 v{t+8}, v{t+6}, v{t+7}")
        e(f"v_lshlrev_b32 v{t+8}, 4, v{t+8}")
        e(f"v_lshl_add_u32 v{vCD[0]}, v{t+5}, 10, v{t+8}")
        e(f"v_xor_b32 v{vCD[1]}, 64, v{vCD[0]}")
        e(f"v_add_u32 v{vCD[1]}, {8192 - 1024}, v{vCD[1]}")
        e(f"s_lshl_b32 s{sCb}, s{sJ}, 18")
        e(f"s_lshl_b32 s{sTmp2}, s{sWv}, 16")
        e(f"s_add_u32 s{sCb}, s{sCb}, s{sTmp2}")
        e(f"s_and_b32 s{sR}, s{sH}, {self.a.rmask}")
        e(f"s_mul_i32 s{sTmp2}, s{sR}, {(1 << 14) + (1 << 7)}")
        e(f"s_and_b32 s{sTmp2}, s{sTmp2}, {(1 << 15) + (1 << 7)}")
        e(f"s_add_u32 s{sCb}, s{sCb}, s{sTmp2}")
        e(f"s_lshl_b32 s{sM0c}, s{sWv}, 14")
        e(f"s_lshl_b32 s{sM0w}, s{sWv}, 13")
        e(f"s_and_b32 s{sSpin}, s{sJ}, {self.a.jmask}")
        e(f"s_lshl_b32 s{sM0j}, s{sSpin}, 10")
        e(f"s_add_u32 s{sM0j}, s{sM0j}, s{sM0w}")
        e(f"v_and_b32 v{t+9}, 3, v{t+5}")
        e(f"v_lshl_add_u32 v{t+9}, v{t+3}, 3, v{t+9}")
        e(f"v_lshlrev_b32 v{t+10}, 1, v{t+7}")
        e(f"v_xor_b32 v{t+10}, v{t+10}, v{t+6}")
        e(f"v_lshlrev_b32 v{t+10}, 4, v{t+10}")
        e(f"v_lshl_add_u32 v{vW8}, v{t+9}, 13, v{t+10}")
        e(f"v_mul_u32_u24 v{vW1}, 3584, v{t+9}")
        e(f"v_add_u32 v{vW1}, v{vW1}, v{t+10}")
        e(f"s_xor_b32 s{sWp8}, s{sWv}, s{sR}")
        e(f"s_and_b32 s{sWp8}, s{sWp8}, 1")
        e(f"s_lshl_b32 s{sWp8}, s{sWp8}, 19")
        e(f"s_and_b32 s{sTmp2}, s{sSpin}, 1")
        e(f"s_lshl_b32 s{sTmp2}, s{sTmp2}, 15")
        e(f"s_add_u32 s{sWp8}, s{sWp8}, s{sTmp2}")
        e(f"s_lshr_b32 s{sTmp2}, s{sSpin}, 1")
        e(f"s_lshl_b32 s{sTmp2}, s{sTmp2}, 17")
        e(f"s_add_u32 s{sWp8}, s{sWp8}, s{sTmp2}")
        e(f"s_lshr_b32 s{sTmp2}, s{sWv}, 1")
        e(f"s_lshl_b32 s{sTmp2}, s{sTmp2}, 7")
        e(f"s_add_u32 s{sWp8}, s{sWp8}, s{sTmp2}")
        e(f"s_lshl_b32 s{sTmp2}, s{sH}, 8")
        e(f"s_add_u32 s{sWp8}, s{sWp8}, s{sTmp2}")
        e("s_waitcnt lgkmcnt(0)")
        ps = lambda: [e(o) for o in (self.stamp_ops() if self.a.prostamps else [])]
        ps()
        self.mk_srd(e, rX, pX, 2 * MB)
        X = B2
        e(f"buffer_load_dwordx4 {vr(X)}, v{t+4}, {srd(rX)}, s{sTmp} offen{self.a.xld}")
        e(f"buffer_load_dwordx4 {vr(X+4)}, v{t+4}, {srd(rX)}, s{sTmp} offen offset:512{self.a.xld}")
        self.mk_srd(e, rC, pC, 2 * MB)
        self.mk_srd(e, rW, pWK, 4 * MB)
        if self.a.win1:
            e(f"s_lshl_b32 s{sTmp}, s{sJ}, 5")
            e(f"s_add_u32 s{sTmp}, s{sTmp}, s{sH}")
            e(f"s_lshl_b32 s{sTmp}, s{sTmp}, 2")
            e(f"s_add_u32 s{sTmp}, s{sTmp}, s{sWv}")
            e(f"s_lshl_b32 s{sTmp}, s{sTmp}, 11")
            e(f"v_and_b32 v{t+11}, 15, v{t+1}")
            e(f"v_lshlrev_b32 v{t+11}, 7, v{t+11}")
            e(f"buffer_load_dword v{B2+62}, v{t+11}, {srd(rC)}, s{sTmp} offen")
            for o in self.pad_m0(self.w_dma(0, 0) + self.w_dma(1, 0)):
                e(o)
            e(f"v_and_b32 v{t+11}, 1, v{t+1}")
            e(f"v_lshlrev_b32 v{t+11}, 20, v{t+11}")
            e(f"v_lshl_add_u32 v{t+11}, v{t+9}, 13, v{t+11}")
            e(f"s_add_u32 s{sTmp}, s{sWp8}, {2 << 20}")
            e(f"buffer_load_dword v{B2+61}, v{t+11}, {srd(rW)}, s{sTmp} offen{self.a.t23}")
            later = [lambda: self.c_dma(0), lambda: self.c_dma(1)]
        else:
            for o in self.pad_m0(self.w_dma(0, 0) + self.c_dma(0)):
                e(o)
            later = [lambda: self.c_dma(1)]
        later += [lambda i=i: self.w_dma(0, i) for i in range(1, 4)] + [lambda: self.c_dma(2)]
        later += [lambda i=i: self.w_dma(0, i) for i in range(4, 8)] + [lambda: self.c_dma(3)]
        for o in self.stamp_ops():
            e(o)
        mark = len(p.ops)
        self.mk_srd(e, rWS, pWS, WS_BYTES)
        self.mk_srd(e, rDBG, pDBG, 256)
        self.mk_srd(e, rH, pWS, WS_BYTES)
        e(f"s_cmp_lt_u32 s{sH}, 28")
        e(f"s_cselect_b32 s{rH+2}, s{rH+2}, 0")
        e(f"s_lshl_b32 s{sPollKV}, s{sH}, 7")
        e(f"s_add_u32 s{sPollKV}, s{sPollKV}, {FLAG_OFF}")
        e(f"s_lshl_b32 s{sTmp}, s{sJ}, 2")
        e(f"s_add_u32 s{sFlagKV}, s{sPollKV}, s{sTmp}")
        e(f"s_lshl_b32 s{sTmp}, s{sJ}, 5")
        e(f"s_add_u32 s{sTmp}, s{sTmp}, s{sH}")
        e(f"s_lshl_b32 s{sFlagH}, s{sTmp}, 2")
        e(f"s_add_u32 s{sFlagH}, s{sFlagH}, {HFLAG_OFF}")
        e(f"s_lshr_b32 s{sTmp}, s{sTmp}, 3")
        e(f"s_lshl_b32 s{sFlagC}, s{sTmp}, 7")
        e(f"s_add_u32 s{sFlagC}, s{sFlagC}, {CFLAG_OFF}")
        e(f"s_cmp_lt_u32 s{sB}, 72")
        e(f"s_cselect_b32 s{sTmp}, s{sWv}, 1")
        e(f"v_or_b32 v{t+11}, s{sTmp}, v{t+3}")
        e(f"v_lshlrev_b32 v{t+11}, 28, v{t+11}")
        e(f"v_lshl_add_u32 v{t+11}, v{t+2}, 2, v{t+11}")
        e(f"v_mov_b32 v{t+12}, 0")
        e(f"s_lshl_b32 s{sTmp}, s{sB}, 7")
        e(f"s_add_u32 s{sTmp}, s{sTmp}, {FLAG_OFF}")
        e(f"buffer_store_dword v{t+12}, v{t+11}, {srd(rWS)}, s{sTmp} offen sc1", tag="clr")
        e(f"s_and_b32 s{sTmp}, s{sR}, 1")
        e(f"s_xor_b32 s{sTmp}, s{sTmp}, s{sWv}")
        e(f"s_mul_i32 s{sWp1}, s{sTmp}, {64 * 3584}")
        e(f"s_lshl_b32 s{sTmp}, s{sH}, 7")
        e(f"s_add_u32 s{sWp1}, s{sWp1}, s{sTmp}")
        e(f"s_lshr_b32 s{sTmp}, s{sR}, 1")
        e(f"s_mul_i32 s{sTmp}, s{sTmp}, {32 * 3584}")
        e(f"s_sub_u32 s{sWp1b}, s{sWp1}, s{sTmp}")
        e(f"s_add_u32 s{sWp1b}, s{sWp1b}, {32 * 3584}")
        e(f"s_add_u32 s{sWp1}, s{sWp1}, s{sTmp}")
        e(f"s_mul_i32 s{sKVst}, s{sH}, {KV_H}")
        e(f"s_lshl_b32 s{sTmp}, s{sJ}, 2")
        e(f"s_add_u32 s{sTmp}, s{sTmp}, s{sWv}")
        e(f"s_mul_i32 s{sTmp}, s{sTmp}, {KV_T}")
        e(f"s_add_u32 s{sKVst}, s{sKVst}, s{sTmp}")
        e(f"s_lshr_b32 s{sTmp}, s{sR}, 1")
        e(f"s_lshl_b32 s{sTmp2}, s{sTmp}, 13")
        e(f"s_add_u32 s{sKa}, s{sKVst}, s{sTmp2}")
        e(f"s_sub_u32 s{sKb}, s{sKVst}, s{sTmp2}")
        e(f"s_lshl_b32 s{sTmp2}, s{sTmp}, 10")
        e(f"s_add_u32 s{sVa}, s{sKVst}, s{sTmp2}")
        e(f"s_sub_u32 s{sVb}, s{sKVst}, s{sTmp2}")
        e(f"s_lshl_b32 s{sTmp}, s{sJ}, 3")
        e(f"s_add_u32 s{sRT[0]}, s{sTmp}, s{sWv}")
        e(f"s_sub_u32 s{sRT[1]}, s{sTmp}, s{sWv}")
        e(f"s_add_u32 s{sRT[1]}, s{sRT[1]}, 7")
        e(f"s_sub_u32 s{sRT[2]}, 127, s{sRT[1]}")
        e(f"s_sub_u32 s{sRT[3]}, 127, s{sRT[0]}")
        for i in range(4):
            e(f"s_lshr_b32 s{sTmp}, s{sRT[i]}, 2")
            e(f"s_mul_i32 s{sAct[i]}, s{sTmp}, {ACT_RG}")
            e(f"s_and_b32 s{sTmp}, s{sRT[i]}, 3")
            e(f"s_lshl_b32 s{sTmp}, s{sTmp}, 10")
            e(f"s_add_u32 s{sAct[i]}, s{sAct[i]}, s{sTmp}")
            e(f"s_add_u32 s{sAct[i]}, s{sAct[i]}, {ACT_OFF}")
            e(f"s_mul_i32 s{sRT[i]}, s{sRT[i]}, {XN_RT}")
        e(f"s_mov_b32 s{sSC}, {f32(SCALE)}")
        e(f"s_mov_b32 s{sL2E}, {f32(LOG2E)}")
        e(f"s_mov_b32 s{sFb}, 0")
        e(f"v_and_b32 v{t+11}, 15, v{t+1}")
        e(f"v_lshrrev_b32 v{t+12}, 1, v{t+11}")
        e(f"v_xor_b32 v{t+12}, v{t+12}, v{t+7}")
        e(f"v_lshlrev_b32 v{t+12}, 4, v{t+12}")
        e(f"v_lshl_add_u32 v{t+12}, v{t+11}, 7, v{t+12}")
        e(f"v_xor_b32 v{t+13}, 64, v{t+12}")
        e(f"s_add_u32 s{sTmp}, s{sM0c}, {CST}")
        e(f"v_add_u32 v{vCR[0]}, s{sTmp}, v{t+12}")
        e(f"v_add_u32 v{vCR[1]}, s{sTmp}, v{t+13}")
        e(f"v_add_u32 v{t+14}, s{sM0w}, v{t+12}")
        e(f"v_add_u32 v{t+15}, s{sM0w}, v{t+13}")
        e(f"v_bfe_u32 v{t+12}, v{t+1}, 2, 3")
        e(f"v_lshlrev_b32 v{t+13}, 7, v{t+12}")
        e(f"v_lshl_add_u32 v{t+13}, v{t+3}, 11, v{t+13}")
        e(f"v_and_b32 v{t+11}, 3, v{t+1}")
        e(f"v_lshl_add_u32 v{t+13}, v{t+11}, 3, v{t+13}")
        e(f"v_lshrrev_b32 v{t+12}, 1, v{t+12}")
        e(f"v_lshl_add_u32 v{vWRa[0]}, v{t+12}, 5, v{t+13}")
        for c in range(1, 4):
            e(f"v_xor_b32 v{vWRa[c]}, {c * 32}, v{vWRa[0]}")
        for c in range(4):
            e(f"v_add_u32 v{vWRb[c]}, {SLOT[0]}, v{vWRa[c]}")
        e(f"v_lshrrev_b32 v{t+12}, 4, v{t+2}")
        e(f"v_lshlrev_b32 v{t+12}, 13, v{t+12}")
        e(f"v_and_b32 v{t+11}, 15, v{t+2}")
        e(f"v_lshl_add_u32 v{t+12}, v{t+11}, 7, v{t+12}")
        e(f"v_lshl_add_u32 v{t+12}, v{t+3}, 4, v{t+12}")
        e(f"s_lshl_b32 s{sTmp}, s{sWv}, 5")
        e(f"v_add_u32 v{t+12}, s{sTmp}, v{t+12}")
        e(f"v_lshlrev_b32 v{t+13}, 4, v{t+6}")
        e(f"v_lshl_add_u32 v{t+13}, v{t+5}, 8, v{t+13}")
        e(f"v_add_u32 v{t+11}, s{sM0w}, v{vL16}")
        e(f"s_lshr_b32 s{sTmp}, s{sB}, 1")
        e(f"s_mul_i32 s{sTmp}, s{sTmp}, {XN_RT}")
        e(f"s_and_b32 s{sTmp2}, s{sB}, 1")
        e(f"s_lshl_b32 s{sTmp2}, s{sTmp2}, 7")
        e(f"s_add_u32 s{sTmp}, s{sTmp}, s{sTmp2}")
        e(f"s_lshl_b32 s{sTmp2}, s{sWv}, 12")
        e(f"s_add_u32 s{sTmp}, s{sTmp}, s{sTmp2}")
        F = X + 8
        D = X + 24
        a, b2 = X + 40, X + 41
        ps()
        e(W(vm=True))
        ps()
        for i in range(8):
            e(f"v_lshlrev_b32 v{F+2*i}, 16, v{X+i}")
            e(f"v_and_b32 v{F+2*i+1}, 0xffff0000, v{X+i}")

        def rowsum(src):
            for i in range(8):
                e(f"v_add_f32 v{X+44+i}, v{src+2*i}, v{src+2*i+1}")
            for i in range(4):
                e(f"v_add_f32 v{X+44+i}, v{X+44+i}, v{X+48+i}")
            e(f"v_add_f32 v{X+44}, v{X+44}, v{X+46}")
            e(f"v_add_f32 v{X+45}, v{X+45}, v{X+47}")
            e(f"v_add_f32 v{a}, v{X+44}, v{X+45}")
            for m in ("quad_perm:[1,0,3,2]", "quad_perm:[2,3,0,1]", "row_half_mirror", "row_mirror"):
                e("s_nop 1")
                e(f"v_add_f32_dpp v{a}, v{a}, v{a} {m} row_mask:0xf bank_mask:0xf")
            e(f"v_mov_b32 v{b2}, v{a}")
            e("s_nop 1")
            e(f"v_permlane16_swap_b32 v{a}, v{b2}")
            e(f"v_add_f32 v{a}, v{a}, v{b2}")
            e(f"v_mul_f32 v{a}, {f32(1 / 512)}, v{a}")

        def rnd(r):
            e(f"v_cvt_pk_bf16_f32 v{r}, v{r}, v{r}")
            e(f"v_and_b32 v{r}, 0xffff0000, v{r}")
        rowsum(F)
        mean = X + 42
        e(f"v_mov_b32 v{mean}, v{a}")
        for i in range(16):
            e(f"v_sub_f32 v{D+i}, v{F+i}, v{a}")
        for i in range(16):
            e(f"v_mul_f32 v{D+i}, v{D+i}, v{D+i}")
        rowsum(D)
        rnd(a)
        rnd(mean)
        e(f"v_add_f32 v{a}, {f32(1e-5)}, v{a}")
        rnd(a)
        e(f"v_sqrt_f32 v{a}, v{a}")
        for i in range(16):
            e(f"v_sub_f32 v{F+i}, v{F+i}, v{mean}")
        rnd(a)
        e(f"v_rcp_f32 v{a}, v{a}")
        for i in range(8):
            e(f"v_cvt_pk_bf16_f32 v{X+i}, v{F+2*i}, v{F+2*i+1}")
        for i in range(8):
            e(f"v_lshlrev_b32 v{F+2*i}, 16, v{X+i}")
            e(f"v_and_b32 v{F+2*i+1}, 0xffff0000, v{X+i}")
        for i in range(16):
            e(f"v_mul_f32 v{F+i}, v{F+i}, v{a}")
        for i in range(8):
            e(f"v_cvt_pk_bf16_f32 v{X+i}, v{F+2*i}, v{F+2*i+1}")
        body = p.ops[mark:]
        del p.ops[mark:]
        groups = []
        for f in later:
            cur = []
            for o in self.pad_m0(f()):
                cur.append(o)
                if o.kind == "dma":
                    groups.append(cur)
                    cur = []
        quick = self.a.quick
        step = len(body) / (len(groups) - quick + 1)
        gi = 0
        for k, o in enumerate(body):
            while gi < len(groups) and k >= (gi - quick + 1) * step and ("s", "scc") not in o.reads:
                p.ops += groups[gi]
                gi += 1
            p.ops.append(o)
        assert gi == len(groups)
        ps()
        e(f"ds_write_b128 v{t+12}, {vr(X)} offset:{SLOT[1]}", lds_wr=(("X", 0), "ln", True))
        e(f"ds_write_b128 v{t+12}, {vr(X+4)} offset:{SLOT[1] + 16384}", lds_wr=(("X", 0), "ln", True))
        early = ([] if self.a.win1 else self.w_dma(1, 0)) + self.c_dma(4)
        for i in range(1, self.a.w1early):
            early += self.w_dma(1, i)
        for o in self.pad_m0(early):
            e(o)
        for o in self.stamp_ops():
            e(o)
        e(W(vm=True, lg=True))
        e("s_barrier")
        for o in self.stamp_ops():
            e(o)
        for o in self.w_reads(0) + self.c_reads(0):
            e(o)
        e(W(lg=True))
        for o in self.c_reads(1) + self.c_reads(2) + self.c_reads(3):
            e(o)
        e(W(lg=True))
        return p

    def acc(self, n, c, rt):
        base = B0 if n < 10 else (B1 if n < 12 else B2)
        return base + 16 * c + 4 * rt

    def proj(self):
        S = Seg("proj")
        A = self.a
        BIASR, BIAS = T0, T0 + 8
        NG = 14 * 8
        for G in range(NG):
            n, gi = G >> 3, G & 7
            if n >= 8:
                kq, c = 2 * (n & 1) + (gi >> 2), gi & 3
            else:
                kq, c = n % 4, gi
            for rt in range(4):
                d = vr(self.acc(n, c, rt))
                for s in range(4):
                    w = vr(WF + 16 * (G & 1) + 4 * s)
                    x = ar(64 * kq + 16 * rt + 4 * s)
                    cc = d
                    if kq == 0 and s == 0:
                        cc = vr(BIAS + 4 * (c & 1)) if n == 8 else "0"
                    if 4 <= n < 8:
                        S.mfma(f"{MF} {d}, {x}, {w}, {cc}")
                    else:
                        S.mfma(f"{MF} {d}, {w}, {x}, {cc}")
        RG = [0, 1, 2, 4, 5, 6, 8, 9]
        for G in range(NG - 1):
            for i, o in enumerate(self.w_reads(G + 1)):
                S.put(16 * G + RG[i], o)
            if (G + 1) % 8 == 7:
                S.put(16 * G + 15, W(vm=True, lg=True))
                S.put(16 * G + 15, "s_barrier")
                if A.finestamps:
                    for o in self.stamp_ops():
                        S.put(16 * G + 15, o)
            else:
                w = W(lg=True)
                if G % 8 == 2:
                    w.vm = 36
                S.put(16 * G + 15, w)
        bar_gap = lambda n: 16 * (8 * n + 6) + 15
        gp = lambda x: int(16 * x)
        jobs = []
        pos = {}
        J = lambda rel, f, name=None: jobs.append((rel, f, name))
        X = B2
        S.put(10, Op(f"ds_read_b128 {vr(X)}, v{T0+11} offset:{SLOT[1]}", lds_rd=(("X", 0), "ln", True)))
        S.put(12, Op(f"ds_read_b128 {vr(X+4)}, v{T0+11} offset:{SLOT[1] + 1024}", lds_rd=(("X", 0), "ln", True)))
        J(gp(2), lambda: [Op(f"buffer_store_dwordx4 {vr(X)}, v{T0+13}, {srd(rWS)}, s{sTmp} offen sc1"),
                          Op(f"buffer_store_dwordx4 {vr(X+4)}, v{T0+13}, {srd(rWS)}, s{sTmp} offen offset:2048 sc1", tag="xn")], "xnst")
        CR = {4: 1, 5: 4.5, 6: 5.7, 7: 6.8}
        CR.update({u: 2 * (u - 4) + 0.5 - (0.5 if u & 3 == 3 else 0) for u in range(8, 16)})
        cpos = [16 * G + k for G in range(1, 24) for k in (10, 12, 13)]
        cdone = {}
        ci = 0
        for u in range(4, 16):
            while cpos[ci] < gp(CR[u]):
                ci += 1
            S.put(cpos[ci], W(vm=True))
            for o in self.c_reads(u):
                S.put(cpos[ci], o)
                cdone[u] = cpos[ci]
                ci += 1
            assert cdone[u] < 128 * (u >> 2), (u, cdone[u])
        J(0, lambda: self.c_dma(5))
        J(1, lambda: self.c_dma(6))
        for i in range(A.w1early, 8):
            J(gp(2) + 1, lambda i=i: self.w_dma(1, i))
        J(gp(2) + 2, lambda: self.c_dma(7))
        for u in range(8, 16):
            rel = gp(CR[u] - A.clead)
            if u >= 9:
                rel = max(rel, (cdone[u - 4] + 6) // 16 * 16 + 16)
            J(max(rel, gp(2) + 3), lambda u=u: self.c_dma(u))
        wrel = 0
        for n in range(2, 14):
            for i in range(8):
                if n < 4:
                    G = 8 * (n - 1) + 6 - A.wlead - 7 + i
                else:
                    G = A.wstart[n - 4] + i * A.wstep[n - 4]
                wrel = max(wrel, gp(G), bar_gap(n - 3) + 1 if n > 2 else 0)
                J(wrel, lambda n=n, i=i: self.w_dma(n, i), f"w{n}")
        S.flow([f"v_lshrrev_b32 v{vA}, 8, v{vL16}", f"v_lshlrev_b32 v{vA}, 3, v{vA}"], gp(8), gp(12))

        def fb():
            s = self.st()
            return [Op(f"s_mov_b32 s{rX}, s{pB1}"), Op(f"s_mov_b32 s{rX+1}, s{pB1+1}"), Op(f"s_min_u32 s{rX+2}, s{rH+2}, 3584"),
                    Op(f"s_lshl_b32 s{s}, s{sH}, 7")] + \
                   [Op(f"buffer_load_dwordx2 {vr(BIASR + 2*c, 2)}, v{vA}, {srd(rX)}, s{s} offen offset:{32*c}") for c in range(4)]
        J(gp(A.tg[3]), fb, "bias")
        if A.wtouch:
            t0, t1, td = T0 + 8, T0 + 9, T0 + 10
            S.flow([f"v_and_b32 v{t0}, {31 * 16}, v{vL16}", f"v_lshlrev_b32 v{t0}, 3, v{t0}", f"v_min_u32 v{t1}, {13 * 128}, v{t0}"], gp(1), gp(4))

            def ft(p, w1, fl):
                s = self.st()
                return [Op(f"s_mov_b32 s{rX}, s{p}"), Op(f"s_mov_b32 s{rX+1}, s{p+1}"),
                        Op(f"s_mov_b32 s{rX+2}, {512 * 3584 if w1 else 4 * MB}"),
                        Op(f"s_lshl_b32 s{s}, s{sB}, 2"), Op(f"s_add_u32 s{s}, s{s}, s{sWv}"),
                        Op(f"s_mul_i32 s{s}, s{s}, {1792 if w1 else 4096}"),
                        Op(f"buffer_load_dword v{td}, v{t1 if w1 else t0}, {srd(rX)}, s{s} offen{fl}")]
            for k, (p, w1) in enumerate(((pWV, 0), (pW1, 1), (pWQ, 0))):
                if A.tg[k] >= 0:
                    J(gp(A.tg[k]), lambda p=p, w1=w1, k=k: ft(p, w1, " nt" if A.tnt[k] else ""))
                    if A.tnt[k] > 1:
                        J(gp(A.tg[k] + A.tnt[k]), lambda p=p, w1=w1: ft(p, w1, ""))
        for G in A.ct2:
            if G > 0:
                vt, vd = (T0 + 14, T0 + 15) if G < 60 else (3, T0 + 15)
                val, ops = self.code_touch(vt, vd, 2048)
                S.flow(val, gp(G - 3), gp(G) - 1)
                J(gp(G), lambda ops=ops: ops)
        SEL = {("v", vSel0): f"v_lshlrev_b32 v{vSel0}, 28, v0"}
        S.flow([f"s_and_b32 s{sTmp2}, s{sB}, 3", f"s_lshl_b32 s{sTmp2}, s{sTmp2}, 6", f"v_mov_b32 v{vD}, 1"], gp(5), bar_gap(0))
        J(bar_gap(0) + 1, lambda: [Op(f"buffer_atomic_add v{vD}, v{vSel0}, {srd(rDBG)}, s{sTmp2} offen sc1",
                                      needs=[("xn", True), ("clr", True)],
                                      expect={("v", vD): f"v_mov_b32 v{vD}, 1", ("s", sTmp2): f"s_lshl_b32 s{sTmp2}, s{sTmp2}, 6", **SEL})])
        KREL, VREL = {}, {}
        for u in range(4):
            for rt in range(4):
                k = 4 * u + rt
                KREL[k] = max(gp(A.kst[0] + k * A.kst[1]), gp(28.5 + 2.4 * u + 0.6 * rt))

                def f(u=u, rt=rt):
                    s = self.st()
                    return [Op(f"s_add_u32 s{s}, s{sKb if rt >> 1 else sKa}, {K_OFF + rt * 4096}"),
                            Op(f"buffer_store_dwordx4 {vr(B2 + 16*u + 4*rt)}, v{vL16}, {srd(rWS)}, s{s} offen offset:{u*1024}{A.st}", tag="kst")]
                J(KREL[k], f, f"k{k}")
        for dt in range(8):
            for kg in range(2):
                k = 2 * dt + kg
                VREL[k] = max(gp(56 + dt) + 40, gp(A.vst[0] + k * A.vst[1]))

                def f(dt=dt, kg=kg):
                    s = self.st()
                    return [Op(f"s_add_u32 s{s}, s{sVb if kg else sVa}, {V_OFF + (dt >> 1) * 4096}"),
                            Op(f"buffer_store_dwordx4 {vr(B2 + 8*dt + 4*kg)}, v{vL16}, {srd(rWS)}, s{s} offen offset:{(dt & 1)*2048 + kg*1024}{A.st}", tag="vst")]
                J(VREL[k], f, f"v{k}")
        S.flow([f"v_bfe_u32 v{vA}, v{vL16}, 4, 2", f"v_lshlrev_b32 v{vA}, 6, v{vA}"], gp(31), gp(33))
        ld, chk, br = self.poll("xn", f"buffer_load_dword v{vP}, v{vA}, {srd(rDBG)}, 0 offen sc1", f"v_cmp_gt_u32 vcc, 64, v{vP}",
                                expect={("v", vA): f"v_lshlrev_b32 v{vA}, 6, v{vA}"})
        J(gp(34), lambda: [ld])
        self.put_check(S, gp(39), chk, br)
        vX = [4, 5, 6, 7]
        S.flow([f"s_mul_i32 s{sTmp2}, s{sR}, {(1 << 11) + (1 << 9)}", f"s_and_b32 s{sTmp2}, s{sTmp2}, {3 << 10}",
                f"v_xor_b32 v{vX[0]}, s{sTmp2}, v{vL16}"] + [f"v_xor_b32 v{vX[k]}, {k << 10}, v{vX[0]}" for k in range(1, 4)], gp(35), gp(39))
        for kq in range(4):
            for k in range(4):
                for rt in range(4):
                    def f(kq=kq, rt=rt, k=k):
                        ops = [Op(f"buffer_load_dwordx4 {ar(64*kq + 16*rt + 4*k)}, v{vX[k]}, {srd(rWS)}, s{sRT[rt]} offen{A.ld}", after="xn")]
                        if k == 3 and kq < 3:
                            ops.append(Op(f"s_add_u32 s{sRT[rt]}, s{sRT[rt]}, 4096"))
                        return ops
                    J(max(128 * (5 + kq), gp(A.xn[0] + (16 * kq + 4 * k + rt) * A.xn[1])), f, f"x{kq}")
        for kq in range(4):
            w = S.nv[gp(64 + 4 * kq) - 1][0]
            assert w.kind == "wait"
            w.vm = 63
        FL = {("v", vWRb[0]): f"v_add_u32 v{vWRb[0]}, {SLOT[0]}, v{vWRa[0]}", ("s", sFlagKV): f"s_add_u32 s{sFlagKV}, s{sPollKV}, s{sTmp}", **SEL}
        J(bar_gap(A.kflag) + 1, lambda: [Op(f"buffer_store_dword v{vWRb[0]}, v{vSel0}, {srd(rWS)}, s{sFlagKV} offen sc1",
                                            needs=[("kst", True)], after="xn", expect=FL)])
        if A.upto != "proj":
            J(bar_gap(A.vflag) + 1, lambda: [Op(f"buffer_store_dword v{vWRb[0]}, v{vSel0}, {srd(rWS)}, s{sFlagKV} offen offset:32 sc1",
                                                needs=[("vst", True)], after="xn", expect=FL)])
        self.extra_jobs(S, J, gp)
        HREL = [gp(A.hst[0] + k * A.hst[1]) for k in range(8)]
        S.flow([f"s_lshl_b32 s{sWp1b}, s{sH}, 13", f"s_add_u32 s{sWp1b}, s{sWp1b}, {ACT_HOFF}"], gp(72), gp(76))
        for u in range(2):
            for rt in range(4):
                def f(u=u, rt=rt):
                    s = self.st()
                    ops = [Op(f"s_add_u32 s{s}, s{sWp1b}, s{sAct[rt]}"),
                           Op(f"buffer_store_dwordx4 {vr(B0 + 32*u + 4*rt)}, v{vL16}, {srd(rH)}, s{s} offen{A.st}", tag="hst")]
                    if (u, rt) == (0, 3):
                        ops.append(Op(f"s_add_u32 s{sWp1b}, s{sWp1b}, 4096"))
                    return ops
                J(HREL[4 * u + rt], f)
        jobs.sort(key=lambda x: x[0])
        g = 0
        last_vm, bucket = -3, 0.0
        isfree = lambda gg: S.used(gg) == 1 and (gg % 16 != 15 or gg >= gp(111))
        for rel, f, name in jobs:
            ops = f()
            k = 0
            while k < len(ops):
                k2 = k
                while k2 < len(ops) and ops[k2].kind not in VM:
                    k2 += 1
                sal = ops[k:k2]
                if k2 == len(ops):
                    g = S.flow(sal, g + 1, S.n() - 1)[-1]
                    break
                tgt = max(rel, last_vm + A.vmin, int(bucket), g + (1 if sal else 0))
                while True:
                    while not isfree(tgt):
                        tgt += 1
                    lo = max(g, tgt - 14)
                    cand = [x for x in range(lo, tgt) if not S.nv[x]]
                    if len(cand) >= len(sal):
                        place = cand[len(cand) - len(sal):]
                        break
                    cap = []
                    for x in range(lo, tgt):
                        cap += [x] * max(0, 4 - S.used(x))
                    if len(cap) >= len(sal):
                        place = cap[len(cap) - len(sal):]
                        break
                    tgt += 1
                for o, x in zip(sal, place):
                    S.put(x, o)
                S.put(tgt, ops[k2])
                g = last_vm = tgt
                bucket = max(bucket, tgt - A.vburst) + A.vrate
                k = k2 + 1
            if name:
                pos[name] = last_vm
            if last_vm > rel + 40 and A.verbose:
                print(f"  job slipped: rel {rel/16:.1f} -> {last_vm/16:.1f}: {ops[-1].text}")
        if A.verbose:
            print("  job last positions:", {k: round(v / 16, 1) for k, v in pos.items()})
        assert pos["xnst"] < gp(5) and pos["x3"] < gp(75) and pos["bias"] < gp(31) and pos["w9"] < gp(72)
        for u in range(4):
            for rt in range(4):
                a0, a1 = self.acc(3, 2 * u, rt), self.acc(3, 2 * u + 1, rt)
                rel0 = gp(24 + 2 * u) + 4 * rt + 3 + 3
                rel1 = rel0 + 16
                dl = min(gp(32 + 2 * u) + 4 * rt - 2, pos[f"k{4 * u + rt}"] - 1)
                d = B2 + 16 * u + 4 * rt
                for (a, rel, o) in ((a0, rel0, 0), (a1, rel1, 2)):
                    ops = [f"v_mul_f32 v{a+i}, s{sSC}, v{a+i}" for i in range(4)]
                    ops += [f"v_cvt_pk_bf16_f32 v{d+o}, v{a}, v{a+1}", f"v_cvt_pk_bf16_f32 v{d+o+1}, v{a+2}, v{a+3}"]
                    S.flow(ops, rel, dl)
        for dt in range(8):
            for rt in range(4):
                a = self.acc(7, dt, rt)
                rel = max(gp(56 + dt) + 4 * rt + 3 + 3, pos[f"k{2 * dt + (rt >> 1)}"] + 1)
                dl = pos[f"v{2 * dt + (rt >> 1)}"] - 1
                dl = min(dl, gp(64 + dt) + 4 * rt - 2 if dt < 4 else gp(76))
                assert rel <= dl
                d = B2 + 8 * dt + 2 * rt
                S.flow([f"v_cvt_pk_bf16_f32 v{d}, v{a}, v{a+1}", f"v_cvt_pk_bf16_f32 v{d+1}, v{a+2}, v{a+3}"], rel, dl)
        for k in range(16):
            assert pos[f"v{k}"] < gp(96 + (k >> 2)) + 4 * (k & 3), k
        for c in range(4):
            b = BIAS + 4 * (c & 1)
            ops = []
            for i in range(2):
                ops += [f"v_lshlrev_b32 v{b+2*i}, 16, v{BIASR+2*c+i}", f"v_and_b32 v{b+2*i+1}, 0xffff0000, v{BIASR+2*c+i}"]
            S.flow(ops, gp(63 + c), gp(64 + c) - 2)
        T = []
        qtail = []
        qa = {}
        for u in range(4):
            n = 11 if u < 2 else 13
            for rt in range(4):
                d = Qf(rt, u)
                prev = None
                for half in range(2):
                    c = 2 * (u & 1) + half
                    a = self.acc(n, c, rt)
                    rel = gp(8 * n + 4 + c) + 4 * rt + 3 + 3
                    for h in range(2):
                        txt = f"v_cvt_pk_bf16_f32 v{d+2*half+h}, v{a+2*h}, v{a+2*h+1}"
                        if rel >= S.n():
                            qtail.append(txt)
                        else:
                            prev = Task(txt, rel, gp(104) if u < 2 else S.n() - 1, [(prev, 0)] if prev else [])
                            T.append(prev)
        free = [None] * 8
        k = 0
        for u in range(2):
            for rt in range(4):
                a0 = self.acc(9, 2 * u, rt)
                dl = HREL[4 * u + rt] - 1
                prevc = None
                for half in range(2):
                    a = self.acc(9, 2 * u + half, rt)
                    rel = gp(76 + 2 * u + half) + 4 * rt + 3 + 3
                    E = T0 + 4 * (k & 1)
                    k += 1
                    last = []
                    for i in range(4):
                        e = E + i
                        seq = [(f"v_mul_f32 v{e}, s{sL2E}, v{a+i}", 0), (f"v_exp_f32 v{e}, v{e}", 0), (f"v_add_f32 v{e}, 1.0, v{e}", 1),
                               (f"v_fma_f32 v{e}, v{e}, v{e}, 1.0", 0), (f"v_rcp_f32 v{e}, v{e}", 0), (f"v_fma_f32 v{e}, v{e}, -2.0, 1.0", 1),
                               (f"v_mul_f32 v{e}, v{e}, v{a+i}", 0)]
                        prev = free[e - T0]
                        for txt, dist in seq:
                            prev = Task(txt, rel, dl, [(prev, dist)] if prev else [])
                            T.append(prev)
                        last.append(prev)
                    for h in range(2):
                        pre = [(last[2 * h], 0), (last[2 * h + 1], 0)] + ([(prevc, 0)] if prevc else [])
                        prevc = Task(f"v_cvt_pk_bf16_f32 v{a0+2*half+h}, v{E+2*h}, v{E+2*h+1}", rel, dl, pre)
                        T.append(prevc)
                        free[E - T0 + 2 * h] = free[E - T0 + 2 * h + 1] = prevc
        schedule(S, T, start=gp(76))
        S.auto_lg_waits(lat=6, verbose=A.verbose)
        S.post += [Op("s_nop 7")] + [Op(x) for x in qtail]
        if A.verbose:
            print("  est cycles per stage:", [sum(4 * max(4, S.used(g)) for g in range(128 * n, 128 * n + 128)) for n in range(14)])
        return S

    def put_check(self, S, g, chk, br):
        while S.used(g) > 1 or S.used(g + 1) > 1 or g % 16 != 12:
            g += 1
        S.put(g, chk[0])
        S.put(g, chk[1])
        S.put(g + 1, br[0])
        S.put(g + 1, br[1])
        return g + 1


    def kv_dma(self, which, xr, creg, nreg, first=False):
        ring = KRING if which == "K" else VRING
        base = creg if (xr >> 1) % 2 == 0 else nreg
        so, r = (sKo, rK) if which == "K" else (sVo, rV)

        def wr(c):
            X = 2 * c["i"] + xr
            al = [(("C", k), (which, X), True) for k in range(4)] if which == "K" else [(("W", 1 + ((X & 3) >> 1)), (which, X), True)]
            return [((which, X & 3), (which, X), True)] + (al if X < 4 else [])
        ops = [Op(f"s_add_u32 m0, s{base}, {ring + (xr & 1) * 16384}")]
        for k in range(4):
            ops.append(Op(f"buffer_load_dwordx4 v{vL16}, {srd(r)}, s{so} offen offset:{k * 1024}{self.a.ld} lds", lds_wr=wr, after=which.lower()))
        ops.append(Op(f"s_add_u32 s{so}, s{so}, {KV_T}"))
        self.m0 = None
        return ops

    def k_read(self, xr, kt, u, names):
        a = names["Kc"] if (xr >> 1) % 2 == 0 else names["Kn"]
        return Op(f"ds_read_b128 {ar(aK + 16 * (kt & 1) + 4 * u)}, v{a} offset:{(xr & 1) * 16384 + kt * 4096 + u * 1024}",
                  lds_rd=lambda c: (("K", (2 * c["i"] + xr) & 3), ("K", 2 * c["i"] + xr), True))

    def v_read(self, xr, dt, kg, names):
        a = names["Vc"] if (xr >> 1) % 2 == 0 else names["Vn"]
        return Op(f"ds_read_b128 {ar(aV + 8 * (dt & 3) + 4 * kg)}, v{a} offset:{(xr & 1) * 16384 + dt * 2048 + kg * 1024}",
                  lds_rd=lambda c: (("V", (2 * c["i"] + xr) & 3), ("V", 2 * c["i"] + xr), True))

    def mask_ops(self, dst, z, kt, neg):
        ng = neg if isinstance(neg, list) else [neg] * 4
        m = ["vcc", f"s[{sMA}:{sMA+1}]", f"s[{sMB}:{sMB+1}]", "vcc"]
        cmp = lambda r: f"v_cmp_le_i32 {m[r]}, {16 * kt + r}, v{z}"
        cnd = lambda r: f"v_cndmask_b32 v{dst + r}, v{NINF}, v{ng[r]}, {m[r]}"
        return [cmp(0), cmp(1), cmp(2), cnd(0), cmp(3), cnd(1), cnd(2), cnd(3)]

    def att_regs_init(self):
        return [f"v_add_u32 v{vKc}, {KRING}, v{vL16}", f"v_add_u32 v{vKn}, {KRING + 32768}, v{vL16}",
                f"v_mov_b32 v{vVc}, v{vL16}", f"v_add_u32 v{vVn}, 32768, v{vL16}"]

    def att_sregs_init(self):
        return [f"s_lshl_b32 s{sMc}, s{sWv}, 12", f"s_add_u32 s{sMn}, s{sMc}, 32768",
                f"s_mov_b32 s{sKo}, s{sMc}", f"s_mov_b32 s{sVo}, s{sMc}", f"s_mov_b64 s[{sBad}:{sBad+1}], 0"]

    def first_k_reads(self):
        nm = dict(Kc=vKc, Kn=vKn, Vc=vVc, Vn=vVn)
        return [self.k_read(0, 0, u, nm) for u in range(4)] + [self.k_read(0, 1, u, nm) for u in range(2)]

    def extra_jobs(self, S, J, gp):
        if self.a.upto == "proj":
            return
        ops = [f"s_mul_i32 s{sTmp}, s{sH}, {KV_H}",
               f"s_lshl_b32 s{rK+2}, s{sJ}, 1", f"s_sub_u32 s{rK+2}, 32, s{rK+2}", f"s_mul_i32 s{rK+2}, s{rK+2}, {KV_T}",
               f"s_mov_b32 s{rV+2}, s{rK+2}", f"s_mov_b32 s{rV+3}, 0x20000",
               f"s_add_u32 s{sTmp}, s{sTmp}, {K_OFF}"]
        g = S.flow(ops + self.att_sregs_init()[:4], 16 * 66, 16 * 74)[-1]
        for (r, off) in ((rK, 0), (rV, V_OFF - K_OFF)):
            g += 1
            while S.used(g) > 1:
                g += 1
            if off:
                S.put(g, f"s_add_u32 s{sTmp}, s{sTmp}, {off}")
            S.put(g, f"s_add_u32 s{r}, s{pWS}, s{sTmp}")
            S.put(g, f"s_addc_u32 s{r+1}, s{pWS+1}, 0")
        S.flow(self.att_regs_init(), 16 * 75, 16 * 80)
        S.flow(self.att_sregs_init()[4:], 16 * 100, 16 * 104)
        ops = [
            f"v_bfe_u32 v{Z0}, v{vL16}, 4, 4", f"v_lshrrev_b32 v{Z1}, 8, v{vL16}", f"v_lshlrev_b32 v{Z1}, 2, v{Z1}",
            f"v_sub_u32 v{Z0}, v{Z0}, v{Z1}", f"v_lshlrev_b32 v{Zt}, 4, s{sWv}", f"v_sub_u32 v{Z1}, v{Z0}, v{Zt}",
            f"v_add_u32 v{Z1}, 48, v{Z1}", f"v_add_u32 v{Z0}, v{Z0}, v{Zt}", f"v_mov_b32 v{NINF}, 0xff800000",
            f"v_bfe_u32 v{vA}, v{vL16}, 2, 5",
            f"v_lshlrev_b32 v{Zt}, 7, s{sJ}", f"v_add_u32 v{Zt}, v{Zt}, v{Z0}"]
        S.flow(ops, 16 * 69, 16 * 76)
        S.flow([f"v_mov_b32 v{ZERO+i}, 0" for i in range(4)] + [f"v_mov_b32 v{ONES+i}, 0x3f803f80" for i in range(4)], 16 * 111, 16 * 112 - 1)
        ldt = f"buffer_load_dword v{vP}, v{vA}, {srd(rWS)}, s{sPollKV} offen sc1"
        ex = {("v", vA): f"v_bfe_u32 v{vA}, v{vL16}, 2, 5", ("s", sPollKV): f"s_add_u32 s{sPollKV}, s{sPollKV}, {FLAG_OFF}"}
        ld, chk, br = self.poll("k", ldt, f"v_cmp_eq_u32 vcc, 0, v{vP}", expect=ex, after="xn")
        J(gp(self.a.kv[0] - 5), lambda ld=ld: [ld])
        g = self.put_check(S, gp(self.a.kv[0] - 1), chk, br)
        for X in range(3):
            J(gp(self.a.kv[0] + self.a.kv[1] * X), lambda X=X: self.kv_dma("K", X, sMc, sMn))
        ld, chk, br = self.poll("v", ldt.replace("offen", "offen offset:32"), f"v_cmp_eq_u32 vcc, 0, v{vP}", expect=ex, after="xn")
        J(gp(self.a.kv[2] - 4), lambda ld=ld: [ld])
        g = self.put_check(S, gp(self.a.kv[2] - 1), chk, br)
        for X in range(2):
            J(gp(self.a.kv[2] + X), lambda X=X: self.kv_dma("V", X, sMc, sMn))
        for i, o in enumerate(self.first_k_reads()):
            S.put(16 * 111 + i, o)

    def rowmax_reduce(self):
        ops = []
        for sw in ("v_permlane16_swap_b32", "v_permlane32_swap_b32"):
            ops += [f"v_mov_b32 v{MX+4+t}, v{MX+t}" for t in range(4)]
            ops += [f"{sw} v{MX+t}, v{MX+4+t}" for t in range(4)]
            ops += [f"v_max_f32 v{MX+t}, v{MX+t}, v{MX+4+t}" for t in range(4)]
        return ops

    def prestep(self):
        S = Seg("prestep")
        S.pre.append(W(lg=True))
        for t in range(4):
            for u in range(4):
                S.mfma(f"{MF} {vr(SB+4*t)}, {ar(aK+4*u)}, {vr(Qf(t, u))}, {vr(SB+4*t) if u else 0}")
        for k in range(9):
            S.mfma(f"{MF32} {ar(16*k, 16)}, {vr(ZERO)}, {vr(ZERO)}, 0")
        S.flow(self.mask_ops(SB, Zt, 0, [SB, SB + 1, SB + 2, SB + 3]), 7, 15)
        ops = [f"v_max3_f32 v{MX+t}, v{SB+4*t}, v{SB+4*t+1}, v{SB+4*t+2}" for t in range(4)]
        ops += [f"v_max_f32 v{MX+t}, v{MX+t}, v{SB+4*t+3}" for t in range(4)]
        ops += self.rowmax_reduce()
        S.flow(ops, 17, 24)
        S.flow([f"v_mov_b32 v{vD}, 1"], 0, 6)
        self.p3_setup(S)
        G = Plain("att_go")
        e = G.e
        e("L_att_go:")
        for r in range(4):
            e(f"v_sub_f32 v{NEG3L+r}, 0, v{MX+3}")
        e(f"v_sub_f32 v{NEG0}, 0, v{MX}")
        for r in range(4):
            e(f"v_sub_f32 v{NEG[2]+r}, 0, v{MX+2}")
        rest = [f"v_sub_f32 v{NEG[t]+r}, 0, v{MX+t}" for t in (1, 3) for r in range(4)]
        for u in range(4):
            e(f"{MF} {vr(SB)}, {ar(aK+4*u)}, {vr(Qf(3, u))}, {vr(SB) if u else vr(NEG3L)}")
            e(rest[2 * u])
            e(rest[2 * u + 1])
        for kt in range(4):
            for o in self.mask_ops(BANK + 4 * kt, Zt, kt, NEG0):
                e(o)
        e(f"s_mov_b32 s{sCnt}, s{sJ}")
        return S, G

    def att_seg(self, name, Trel, qk, pv, bank_tile, look=True, flip=None, dma=True, bar=True, pvfirst=False, lfirst=False, extra=None):
        S = Seg(name)
        par = Trel & 1
        names = dict(Kc=vKc, Kn=vKn, Vc=vVc, Vn=vVn)
        if flip == 2:
            names = dict(Kc=vKn, Kn=vKc, Vc=vVn, Vn=vVc)
        na = len(qk)
        chains = [(kt, t) for kt in range(4) for t in qk]
        n = len(chains)
        dts = ([8] + list(range(8))) if lfirst else list(range(9))
        pvc = [(dt, t) for dt in dts for t in pv]
        M = len(pvc)
        nmu = max(n, 1)
        cstart, cend = {0: -100}, {0: -100}
        pstart, pend = {}, {}

        def qk_chain(i):
            if i == n:
                kt, t, c = 0, 3, NEG3L
            else:
                kt, t = chains[i]
                c = BANK + 4 * kt if t == bank_tile else NEG[t]
            d = SB + 4 * (i % 4)
            cstart[i] = S.n()
            for u in range(4):
                S.mfma(f"{MF} {vr(d)}, {ar(aK + 16 * (kt & 1) + 4 * u)}, {vr(Qf(t, u))}, {vr(d) if u else vr(c)}")
            cend[i] = S.n() - 1

        def pv_share(mu):
            for k in range(mu * M // nmu, (mu + 1) * M // nmu):
                dt, t = pvc[k]
                pstart.setdefault(dt, S.n())
                for kg in range(2):
                    if dt == 8:
                        d, a = ar(aL + 4 * t), vr(ONES)
                    else:
                        d, a = ar(aO + 32 * t + 4 * dt), ar(aV + 8 * (dt & 3) + 4 * kg)
                    S.mfma(f"{MF} {d}, {a}, {vr(Pf(1 - par, t, kg))}, {d}")
                pend[dt] = S.n() - 1
        for mu in range(nmu):
            if pvfirst:
                pv_share(mu)
            if n and (mu + 1 < n or look):
                qk_chain(mu + 1)
            if not pvfirst:
                pv_share(mu)
        N = S.n()
        T = []
        info = dict(cstart=cstart, cend=cend, pstart=pstart, pend=pend, N=N)
        tail = []
        for i in range(n):
            kt, t = chains[i]
            d = SB + 4 * (i % 4)
            rel = cend[i] + 3
            dl = cstart[i + 4] - 1 if (i + 4) in cstart else N - 1
            p = Pf(par, t, kt >> 1) + 2 * (kt & 1)
            if rel + 5 > N - 1:
                tail += ["s_nop 7"] + [f"v_exp_f32 v{d+r}, v{d+r}" for r in range(4)] + [f"v_cvt_pk_bf16_f32 v{p+h}, v{d+2*h}, v{d+2*h+1}" for h in range(2)]
                continue
            ex = []
            for r in range(4):
                ex.append(Task(f"v_exp_f32 v{d+r}, v{d+r}", rel, dl, [(ex[-1], 0)] if ex else []))
            T += ex
            for h in range(2):
                T.append(Task(f"v_cvt_pk_bf16_f32 v{p+h}, v{d+2*h}, v{d+2*h+1}", rel, dl, [(ex[2 * h + 1], 1)]))
        bg = None
        if bar:
            bg = cstart[3 * na] + 2
            S.put(bg, W(vm=True, lg=True))
            S.put(bg + 1, "s_barrier")
            bg += 1
        info["bar"] = bg
        lastk = None
        if n:
            for kt in range(1, 4):
                first = cstart[kt * na]
                free = cend[(kt - 1) * na - 1] if kt >= 2 else 0
                for u in range(2 if kt == 1 else 0, 4):
                    dl = first + u - LAT
                    if kt == 3 and bar:
                        dl = min(dl, bg - 1 - 5)
                    lastk = Task(self.k_read(Trel, kt, u, names), max(0, free - 3 + u), dl)
                    T.append(lastk)
            if look:
                for u in range(4):
                    T.append(Task(self.k_read(Trel + 1, 0, u, names), bg + 1, cstart[n] + u - LAT))
                for u in range(2):
                    T.append(Task(self.k_read(Trel + 1, 1, u, names), max(bg + 1, cend[n - 1] - 3 + u), N - 2 + u))
        if pv:
            for dt in range(1, 8):
                free = pend[dt - 4] if dt >= 4 else 0
                for kg in range(2):
                    T.append(Task(self.v_read(Trel - 1, dt, kg, names), free, pstart[dt] + kg - LAT))
        v0 = []
        if n:
            free = max(bg + 1, pend[4] if pv else 0)
            for kg in range(2):
                v0.append(Task(self.v_read(Trel, 0, kg, names), free, N + 4 + kg - LAT))
            T += v0
        if dma:
            prev = None
            for which, xr, lo, hi in (("K", Trel + 3, 1, bg - 2), ("V", Trel + 2, bg + 1, N - 2)):
                ops = self.kv_dma(which, xr, sMc, sMn)
                step = (hi - lo + 1) / 4
                m = Task(ops[0], lo - 1 if which == "K" else 0, int(lo + step - 2), [(prev, 0)] if prev else [])
                T.append(m)
                prev = m
                for k in range(4):
                    d = Task(ops[1 + k], int(lo + k * step), int(lo + (k + 1) * step - 1), [(prev, 1 if k == 0 else 3)])
                    T.append(d)
                    prev = d
                T.append(Task(ops[5], 0, N - 2, [(prev, 0)]))
                if which == "V":
                    info["vm0"] = m
        if flip == 1:
            T.append(Task(f"v_xor_b32 v{vVn}, 0x8000, v{vVn}", 0, N - 1))
            T.append(Task(f"v_xor_b32 v{vKc}, 0x8000, v{vKc}", bg, N - 1))
        if flip == 2:
            T.append(Task(f"v_xor_b32 v{vKn}, 0x8000, v{vKn}", 0, N - 1))
            T.append(Task(f"v_xor_b32 v{vVc}, 0x8000, v{vVc}", 0, bg))
            T.append(Task(f"s_xor_b32 s{sMn}, s{sMn}, 0x8000", 0, N - 2))
            T.append(Task(f"s_xor_b32 s{sMc}, s{sMc}, 0x8000", 0, N - 2, [(info["vm0"], 0)]))
        if extra:
            extra(S, T, info)
        schedule(S, T)
        inc = [("a", aK + 16 + r) for r in range(8)] + [("a", aV + r) for r in range(8)]
        S.auto_lg_waits(lat=5, incoming=inc, verbose=self.a.verbose)
        S.post += [Op(x) for x in tail]
        return S

    def chain_tasks(self, T, ops, rel, dl, after=None):
        prev = after
        for o in ops:
            t = Task(o, rel, dl, [(prev, 0)] if prev else [])
            T.append(t)
            prev = t
        return prev

    def bad_check(self, e, tiles):
        for k, t in enumerate(tiles):
            e(f"v_accvgpr_read_b32 v{ET+2*k}, a{aL+4*t}")
        e(f"v_add_f32 v{ET+3}, v{ET}, v{ET+2}")
        e(f"v_rcp_f32 v{ET}, v{ET}")
        e(f"v_cmp_ngt_f32 vcc, 0x5f800000, v{ET+3}")
        e(f"v_rcp_f32 v{ET+2}, v{ET+2}")
        e(f"s_or_b64 s[{sBad}:{sBad+1}], s[{sBad}:{sBad+1}], vcc")

    def epilogue(self, e, tiles):
        e(f"s_mul_i32 s{sTmp2}, s{sH}, {ACT_HD}")
        k = 0
        for ti, t in enumerate(tiles):
            e(f"s_add_u32 s{sTmp}, s{sTmp2}, s{sAct[t]}")
            for u in range(4):
                b = ET + 4
                o = ET + 12 + 4 * (k % 3)
                k += 1
                for i in range(8):
                    e(f"v_accvgpr_read_b32 v{b+i}, a{aO + 32*t + 8*u + i}")
                for i in range(4):
                    e(f"v_pk_mul_f32 {vr(b+2*i, 2)}, {vr(b+2*i, 2)}, {vr(ET+2*ti, 2)} op_sel_hi:[1,0]")
                for i in range(4):
                    e(f"v_cvt_pk_bf16_f32 v{o+i}, v{b+2*i}, v{b+2*i+1}")
                e(f"buffer_store_dwordx4 {vr(o)}, v{vL16}, {srd(rWS)}, s{sTmp} offen{self.a.st}", tag="cst")
                if u < 3:
                    e(f"s_add_u32 s{sTmp}, s{sTmp}, 4096")

    def attention(self):
        D, TH, SS, ONE = [3, 2, 1, 0], [3, 2, 1], [3, 2], [3]
        B = {}

        def x_d0(S, T, info):
            T.append(Task(Op(f"buffer_store_dword v{vD}, v{vSel0}, {srd(rWS)}, s{sFlagH} offen sc1", needs=[("hst", True)],
                             expect={("v", vD): f"v_mov_b32 v{vD}, 1", ("s", sFlagH): f"s_add_u32 s{sFlagH}, s{sFlagH}, {HFLAG_OFF}", ("v", vSel0): f"v_lshlrev_b32 v{vSel0}, 28, v0"}), info["bar"] + 1, info["N"] - 1))
            S.put(info["N"] - 1, f"s_cmp_eq_u32 s{sCnt}, 0")
        B["D0"] = self.att_seg("D0", 0, D, [], 0, extra=x_d0)
        B["D0"].post += [Op("s_cbranch_scc1 L_three"), Op(".p2align 4"), Op("L_dloop:")]
        B["Da"] = self.att_seg("Da", 1, D, D, 0, flip=1, extra=lambda S, T, i: S.put(i["N"] - 1, f"s_cmp_eq_u32 s{sCnt}, 1"))
        B["Da"].post += [Op("s_cbranch_scc1 L_dmask"), Op("L_dmask_back:")]

        def x_loop(S, T, info):
            T.append(Task(f"s_sub_u32 s{sCnt}, s{sCnt}, 1", 0, info["N"] - 2))
            S.put(info["N"] - 1, f"s_cmp_lg_u32 s{sCnt}, 0")
        B["Db"] = self.att_seg("Db", 2, D, D, 0, flip=2, extra=x_loop)
        B["Db"].post += [Op("s_cbranch_scc1 L_dloop"), Op("L_three:")]
        p = Plain("dmask")
        p.e("L_dmask:")
        for kt in range(4):
            for o in self.mask_ops(BANK + 4 * kt, Z0, kt, NEG0):
                p.e(o)
        p.e("s_branch L_dmask_back")
        self.ool.append(p)
        B["dmask"] = p

        def x_three(S, T, info):
            cs = info["cstart"]
            last = None
            last = self.chain_tasks(T, self.mask_ops(BANK, Z1, 0, NEG[1]), 0, cs[2] - 2, last)
            last = self.chain_tasks(T, [f"v_sub_u32 v{Zu}, 7, s{sJ}".replace("v_sub_u32", "v_sub_u32_e64"), f"v_lshlrev_b32 v{Zu}, 7, v{Zu}",
                                        f"v_add_u32 v{Zt}, v{Zu}, v{Z0}", f"v_add_u32 v{Zu}, v{Zu}, v{Z1}"], 0, cs[5], last)
            for kt in range(1, 4):
                last = self.chain_tasks(T, self.mask_ops(BANK + 4 * kt, Z1, kt, NEG[1]), 0, cs[3 * kt + 2] - 2, last)
            for kt in range(4):
                last = self.chain_tasks(T, self.mask_ops(BANK + 4 * kt, Zt, kt, NEG[2]), cs[3 * kt + 2] + 2, info["N"] - 2, last)
        B["T3"] = self.att_seg("T3", 1, TH, D, 1, flip=1, extra=x_three)

        def x_s3(S, T, info):
            last = self.chain_tasks(T, self.mask_ops(NEG3L, Zu, 0, NEG[3]), 0, info["cstart"][8] - 2)
            if self.a.upto == "full":
                self.p3_table(T, last, info["N"])
            T.append(Task(f"s_sub_u32 s{sCnt}, 7, s{sJ}", 0, info["N"] - 2))
        B["S3"] = self.att_seg("S3", 2, SS, TH, 2, flip=2, extra=x_s3)
        p = Plain("epiA")
        if self.a.otouch and self.a.upto == "full":
            p.e(f"s_lshl_b32 s{sTmp}, s{sB}, 2")
            p.e(f"s_add_u32 s{sTmp}, s{sTmp}, s{sWv}")
            p.e(f"s_lshl_b32 s{sTmp}, s{sTmp}, 13")
            p.e(f"v_lshl_add_u32 v{MX}, v{vL16}, 3, s{sTmp}")
            p.e(f"v_subrev_u32 v{MX+1}, {4 * MB}, v{MX}")
            p.e(f"buffer_load_dword v{MX+2}, v{MX}, {srd(rX)}, 0 offen")
            p.e(f"buffer_load_dword v{MX+2}, v{MX+1}, {srd(rW)}, 0 offen")
            p.e("s_nop 0")
        else:
            p.e("s_nop 7")
        self.bad_check(p.e, [0, 1])
        self.epilogue(p.e, [0, 1])
        for o in self.stamp_ops():
            p.e(o)
        p.e(f"s_cmp_eq_u32 s{sCnt}, 0")
        p.e("s_cbranch_scc1 L_one")
        p.e(".p2align 4")
        p.e("L_sloop:")
        B["epiA"] = p
        B["Sa"] = self.att_seg("Sa", 1, SS, SS, 2)
        B["Sb"] = self.att_seg("Sb", 2, SS, SS, 2)
        B["Sc"] = self.att_seg("Sc", 3, SS, SS, 2, extra=lambda S, T, i: S.put(i["N"] - 1, f"s_cmp_eq_u32 s{sCnt}, 1"))
        B["Sc"].post += [Op("s_cbranch_scc1 L_smask"), Op("L_smask_back:")]
        B["Sd"] = self.att_seg("Sd", 4, SS, SS, 2, extra=x_loop)
        B["Sd"].post += [Op("s_cbranch_scc1 L_sloop"), Op("L_one:")]
        p = Plain("smask")
        p.e("L_smask:")
        for kt in range(4):
            for o in self.mask_ops(BANK + 4 * kt, Z0, kt, NEG[2]):
                p.e(o)
        for o in self.mask_ops(NEG3L, Z1, 0, NEG[3]):
            p.e(o)
        p.e("s_branch L_smask_back")
        self.ool.append(p)
        B["smask"] = p

        def x_one(S, T, info):
            last = None
            for kt in range(1, 4):
                last = self.chain_tasks(T, self.mask_ops(BANK + 4 * kt, Z1, kt, NEG[3]), 0, info["cstart"][kt] - 2, last)
            self.one_extra(S, T, info, last)
        B["One"] = self.att_seg("One", 1, ONE, SS, 3, look=False, dma=False, pvfirst=True, extra=x_one)
        B["Dr"] = self.att_seg("Dr", 2, [], ONE, None, look=False, dma=False, bar=False, lfirst=True)
        B["Dr"].pre.insert(0, Op("s_nop 1"))
        p = Plain("check")
        e = p.e
        self.bad_check(e, [2, 3])
        e(f"s_cmp_lg_u64 s[{sBad}:{sBad+1}], 0")
        e(f"s_cselect_b32 s{sTmp}, 1, 0")
        e(f"s_andn2_b32 s{sTmp}, s{sTmp}, s{sFb}")
        e(f"s_lshl_b32 s{sTmp2}, s{sWv}, 2")
        e(f"s_add_u32 s{sTmp2}, s{sTmp2}, {SPARE}")
        e(f"v_mov_b32 v{ET+4}, s{sTmp2}")
        e(f"v_mov_b32 v{ET+5}, s{sTmp}")
        e(f"v_mov_b32 v{ET+6}, {SPARE}")
        e(f"ds_write_b32 v{ET+4}, v{ET+5}", lds_wr=lambda c: [(("F", 0), ("bad", c.get("fb")), True), (("W", 0), "bad", True)])
        e("s_waitcnt lgkmcnt(0)")
        e("s_barrier")
        e(f"ds_read_b128 {vr(ET+8)}, v{ET+6}", lds_rd=lambda c: (("F", 0), ("bad", c.get("fb")), True))
        B["check"] = p
        p = Plain("check2")
        e = p.e
        e(W(lg=True))
        e(f"v_or3_b32 v{ET+8}, v{ET+8}, v{ET+9}, v{ET+10}")
        e(f"v_or_b32 v{ET+8}, v{ET+8}, v{ET+11}")
        e(f"v_cmp_ne_u32 vcc, 0, v{ET+8}")
        e("s_nop 1")
        e("s_cbranch_vccnz L_fallback")
        B["check2"] = p
        B["fb"] = self.fallback()
        return B

    def fallback(self):
        p0, p1, p2 = Plain("fb0"), Plain("fb1"), Plain("fb2")
        e = p0.e
        e("L_fallback:")
        e(f"s_mov_b32 s{sFb}, 1")
        e("s_waitcnt vmcnt(0) lgkmcnt(0)")
        e("s_barrier")
        ZG = BANK
        e(f"s_lshl_b32 s{sTmp}, s{sJ}, 7")
        e(f"s_sub_u32 s{sTmp2}, {15 * 128}, s{sTmp}")
        e(f"v_add_u32 v{ZG}, s{sTmp}, v{Z0}")
        e(f"v_add_u32 v{ZG+1}, s{sTmp}, v{Z1}")
        e(f"v_add_u32 v{ZG+2}, s{sTmp2}, v{Z0}")
        e(f"v_add_u32 v{ZG+3}, s{sTmp2}, v{Z1}")
        e(f"v_add_u32 v{ZG+1}, 64, v{ZG+1}")
        e(f"v_add_u32 v{ZG+3}, 64, v{ZG+3}")
        e(f"v_mov_b32 v{Zt}, v{ZG}")
        for t in range(4):
            e(f"v_mov_b32 v{MX+t}, v{NINF}")
        e(f"s_mov_b32 s{sCnt}, 0")
        e(f"s_lshl_b32 s{sSpin}, s{sJ}, 3")
        e(f"s_sub_u32 s{sSpin}, 128, s{sSpin}")
        e("L_fb_loop:")
        e = p1.e
        e(f"s_lshr_b32 s{sTmp}, s{sCnt}, 2")
        e(f"s_mul_i32 s{sTmp}, s{sTmp}, {KV_T}")
        e(f"s_and_b32 s{sTmp2}, s{sCnt}, 3")
        e(f"s_lshl_b32 s{sTmp2}, s{sTmp2}, 12")
        e(f"s_add_u32 s{sTmp}, s{sTmp}, s{sTmp2}")
        for u in range(4):
            e(f"buffer_load_dwordx4 {ar(aK+4*u)}, v{vL16}, {srd(rK)}, s{sTmp} offen offset:{u*1024} sc1")
        e("s_waitcnt vmcnt(0)")
        for t in range(4):
            for u in range(4):
                e(f"{MF} {vr(SB+4*t)}, {ar(aK+4*u)}, {vr(Qf(t, u))}, {vr(SB+4*t) if u else 0}")
        e("s_nop 7")
        for t in range(4):
            for o in self.mask_ops(SB + 4 * t, ZG + t, 0, [SB + 4 * t + r for r in range(4)]):
                e(o)
            e(f"v_max3_f32 v{MX+t}, v{MX+t}, v{SB+4*t}, v{SB+4*t+1}")
            e(f"v_max3_f32 v{MX+t}, v{MX+t}, v{SB+4*t+2}, v{SB+4*t+3}")
            e(f"v_subrev_u32 v{ZG+t}, 16, v{ZG+t}")
        e(f"s_add_u32 s{sCnt}, s{sCnt}, 1")
        e(f"s_cmp_lt_u32 s{sCnt}, s{sSpin}")
        e("s_cbranch_scc1 L_fb_loop")
        e = p2.e
        for o in self.rowmax_reduce() + self.att_regs_init() + self.att_sregs_init():
            e(o)
        for which, X in (("K", 0), ("K", 1), ("K", 2), ("V", 0), ("V", 1)):
            for o in self.pad_m0(self.kv_dma(which, X, sMc, sMn)):
                e(o)
        for k in range(9):
            e(f"{MF32} {ar(16*k, 16)}, {vr(ZERO)}, {vr(ZERO)}, 0")
        e("s_waitcnt vmcnt(0)")
        e("s_barrier")
        for o in self.first_k_reads():
            e(o)
        e("s_waitcnt lgkmcnt(0)")
        e("s_branch L_att_go")
        self.ool += [p0, p1, p2]
        return p0, p1, p2

    def att_trace(self, B, G, j, fb=0):
        tr = []
        add = lambda b, i: tr.extend((o, {"i": i, "fb": fb}) for o in b.linear())
        add(G, 0)
        add(B["D0"], 0)
        for i in range(j):
            add(B["Da"], i)
            if i == j - 1:
                add(B["dmask"], i)
            add(B["Db"], i)
        add(B["T3"], j)
        add(B["S3"], j)
        add(B["epiA"], j)
        i = j + 1
        for k in range(7 - j):
            for nm in ("Sa", "Sb", "Sc"):
                add(B[nm], i)
            if k == 6 - j:
                add(B["smask"], i)
            add(B["Sd"], i)
            i += 2
        add(B["One"], i)
        add(B["Dr"], i)
        add(B["check"], i)
        return tr

    def dump_q(self):
        p = Plain("dumpq")
        e = p.e
        e(f"s_lshl_b32 s{sTmp}, s{sB}, 2")
        e(f"s_add_u32 s{sTmp}, s{sTmp}, s{sWv}")
        e(f"s_lshl_b32 s{sTmp}, s{sTmp}, 14")
        e(f"s_add_u32 s{sTmp}, s{sTmp}, {QDUMP_OFF}")
        for u in range(4):
            for rt in range(4):
                e(f"buffer_store_dwordx4 {vr(Qf(rt, u))}, v{vL16}, {srd(rWS)}, s{sTmp} offen offset:{rt*1024}")
            e(f"s_add_u32 s{sTmp}, s{sTmp}, 4096")
        return p

    def dump_stamps(self):
        p = Plain("stamps")
        if self.a.stamps:
            p.e("s_waitcnt vmcnt(0)")
            for o in self.stamp_ops() + self.rt_ops(63):
                p.e(o)
            p.e(f"s_lshl_b32 s{sTmp}, s{sB}, 2")
            p.e(f"s_add_u32 s{sTmp}, s{sTmp}, s{sWv}")
            p.e(f"s_lshl_b32 s{sTmp}, s{sTmp}, 8")
            p.e(f"s_add_u32 s{sTmp}, s{sTmp}, {STAMP_OFF}")
            p.e(f"v_lshrrev_b32 v{vL16}, 2, v{vL16}")
            p.e(f"buffer_store_dword v{vSel0}, v{vL16}, {srd(rWS)}, s{sTmp} offen")
            if self.a.dbgout >= 0:
                p.e(f"v_readlane_b32 s{sTmp}, v{vSel0}, 1")
                p.e(f"s_memtime s[{sStamp}:{sStamp+1}]")
                p.e("s_waitcnt lgkmcnt(0)")
                p.e(f"v_readlane_b32 s{sTmp2}, v{vSel0}, 61")
                p.e("s_nop 1")
                p.e(f"s_sub_u32 s{sStamp}, s{sStamp}, s{sTmp2}")
                p.e(f"s_and_b32 s{sStamp}, s{sStamp}, 0x3fffffff")
                p.e(f"v_subrev_u32 v8, s{sTmp}, v{vSel0}")
                p.e(f"v_lshrrev_b32 v8, 2, v8")
                p.e(f"v_writelane_b32 v8, s{sStamp}, 1")
                p.e(f"s_lshl_b32 s{sTmp}, s{sB}, 2")
                p.e(f"s_add_u32 s{sTmp}, s{sTmp}, s{sWv}")
                p.e(f"s_cmp_eq_u32 s{sTmp}, {self.a.dbgout}")
                p.e(f"s_cselect_b32 s{rDBG+2}, 64, 0")
                p.e(f"s_mov_b32 s{sTmp}, 0x10000000")
                p.e(f"v_writelane_b32 v{vL16}, s{sTmp}, 0")
                p.e(f"buffer_store_dword v8, v{vL16}, {srd(rDBG)}, 0 offen")
        return p

    def build(self):
        pro = self.prologue()
        pj = self.proj()
        pj.post += self.stamp_ops()
        blocks = [pro, pj]
        end = Plain("end")
        lin = lambda bl, c={"i": 0}: [(o, c) for b in bl for o in b.linear()]
        if self.a.upto == "proj":
            blocks += [self.dump_q(), self.dump_stamps(), end]
            traces = [("main", lin(blocks))]
        else:
            S, G = self.prestep()
            for o in self.stamp_ops():
                G.e(o)
            B = self.attention()
            mid, tailb = self.tail(B)
            tailb += [self.dump_stamps(), end]
            blocks += [S, G] + [B[k] for k in ("D0", "Da", "Db", "T3", "S3", "epiA", "Sa", "Sb", "Sc", "Sd", "One", "Dr", "check")] + mid + tailb
            traces = []
            for j in range(8):
                traces.append((f"j{j}", lin([pro, pj, S]) + self.att_trace(B, G, j) + lin(mid) + lin(tailb)))
            f0, f1, f2 = B["fb"]
            for j in (0, 3, 7):
                traces.append((f"fb{j}", lin([pro, pj, S]) + self.att_trace(B, G, j) + lin(mid) + lin([f0, f1, f1, f2])
                               + self.att_trace(B, G, j, 1) + lin(mid, {"i": 0, "fb": 1}) + lin(tailb, {"i": 0, "fb": 1})))
        end.e("L_end:")
        end.e("s_endpgm")
        self.finish(blocks, traces)

    def p3_setup(self, S):
        t = ET
        sal = [f"s_and_b32 s{sRG}, s{sB}, 7", f"s_lshl_b32 s{sRG}, s{sRG}, 2", f"s_bfe_u32 s{sTmp}, s{sB}, 0x20003",
               f"s_add_u32 s{sRG}, s{sRG}, s{sTmp}", f"s_xor_b32 s{sCG}, s{sJ}, {self.a.cgx}", f"s_lshl_b32 s{sCG}, s{sCG}, 7",
               f"s_mul_i32 s{sActH}, s{sRG}, {ACT_RG}", f"s_mul_i32 s{sTmp}, s{sWv}, {8 * ACT_HD}",
               f"s_add_u32 s{sActC}, s{sActH}, s{sTmp}", f"s_mul_i32 s{sTmp}, s{sWv}, {14 * 4096}",
               f"s_add_u32 s{sActH}, s{sActH}, s{sTmp}", f"s_add_u32 s{sActH}, s{sActH}, {ACT_OFF + ACT_HOFF}",
               f"s_add_u32 s{sActC}, s{sActC}, {ACT_OFF}",
               f"s_mul_i32 s{sW2b}, s{sWv}, {14 * 32768}", f"s_add_u32 s{sW2b}, s{sW2b}, s{sCG}",
               f"s_lshl_b32 s{sWob}, s{sWv}, 20", f"s_add_u32 s{sWob}, s{sWob}, s{sCG}",
               f"s_lshl_b32 s{sM0p}, s{sWv}, 15",
               f"s_lshr_b32 s{sTmp}, s{sRG}, 1", f"s_sub_u32 s{sTmp2}, 15, s{sTmp}", f"s_min_u32 s{sTmp}, s{sTmp}, s{sTmp2}",
               f"s_lshl_b32 s{sPollH}, s{sTmp}, 7", f"s_add_u32 s{sPollH}, s{sPollH}, {HFLAG_OFF}",
               f"s_lshl_b32 s{sTmp}, s{sTmp}, 2", f"s_add_u32 s{sTmp}, s{sTmp}, s{sWv}", f"s_lshl_b32 s{sTmp}, s{sTmp}, 7",
               f"s_add_u32 s{sTmp}, s{sTmp}, {CFLAG_OFF}",
               f"s_mov_b32 s{rW}, s{pW2}", f"s_mov_b32 s{rW+1}, s{pW2+1}", f"s_mov_b32 s{rW+2}, {1792 * 1024}",
               f"s_mov_b32 s{rX}, s{pWO}", f"s_mov_b32 s{rX+1}, s{pWO+1}", f"s_mov_b32 s{rX+2}, {4 * MB}",
               f"s_mov_b32 s{rH}, s{pOUT}", f"s_mov_b32 s{rH+1}, s{pOUT+1}", f"s_mov_b32 s{rH+2}, {2 * MB}"]
        g = S.flow(sal, 0, 23)[-1]
        S.put(24, f"s_add_u32 s{sPollC}, s{pWS}, s{sTmp}")
        S.put(24, f"s_addc_u32 s{sPollC+1}, s{pWS+1}, 0")
        val = [f"v_lshrrev_b32 v{t}, 9, v{vL16}", f"v_lshlrev_b32 v{t}, 10, v{t}", f"v_lshlrev_b32 v{t+1}, 15, s{sWv}",
               f"v_sub_u32 v{t}, v{t+1}, v{t}"]
        val += [f"v_add_u32 v{vR[c]}, v{vWRa[c]}, v{t}" for c in range(4)]
        val += [f"v_lshrrev_b32 v{t}, 7, v{vL16}", f"v_and_b32 v{t+1}, 0x7f, v{vW8}", f"v_lshl_add_u32 v{vDm[0]}, v{t}, 10, v{t+1}"]
        val += [f"v_add_u32 v{vDm[i]}, {7168 * i}, v{vDm[0]}" for i in range(1, 4)]
        val += [f"v_lshl_add_u32 v{vAo[0]}, s{sWv}, 10, v{vL16}"]
        for k in range(1, 4):
            val += [f"v_add_u32 v{vAo[k]}, {1024 * k}, v{vAo[0]}", f"v_and_b32 v{vAo[k]}, 0xfff, v{vAo[k]}"]
        val += [f"v_bfe_u32 v{vA}, v{vL16}, 2, 7"]
        S.flow(val, 0, 24)

    def p3_table(self, T, last, N):
        t = ET
        s1 = self.chain_tasks(T, [f"s_xor_b32 s{sTmp}, s{sRG}, s{sJ}", f"s_and_b32 s{sTmp}, s{sTmp}, {self.a.pmask}",
                                  f"s_and_b32 s{sTmp2}, s{sTmp}, 1", f"s_mul_i32 s{sSpin}, s{sWv}, {self.a.pshift}"], 0, 20)
        m = f"s[{sMA}:{sMA+1}]"
        ops = [f"v_lshrrev_b32 v{t}, 4, v{vL16}",
               f"v_add_u32 v{t+1}, s{sSpin}, v{t}",
               f"v_cmp_le_i32 vcc, 14, v{t+1}",
               f"v_subrev_u32 v{t+2}, 14, v{t+1}",
               f"v_cmp_le_i32 {m}, 14, v{t}",
               f"v_cndmask_b32 v{t+1}, v{t+1}, v{t+2}, vcc",
               f"v_cmp_le_i32 vcc, 12, v{t+1}",
               f"v_xor_b32 v{t+3}, s{sTmp}, v{t+1}",
               f"v_xor_b32 v{t+1}, s{sTmp2}, v{t+1}",
               f"v_cndmask_b32 v{t+1}, v{t+3}, v{t+1}, vcc",
               f"v_xor_b32 v{t+2}, s{sTmp}, v{t+2}",
               f"v_and_b32 v{t+2}, 31, v{t+2}",
               f"v_lshl_add_u32 v{t+3}, v{t+1}, 15, s{sW2b}",
               f"v_lshl_add_u32 v{t+4}, v{t+2}, 15, s{sWob}",
               f"v_cndmask_b32 v{vTW}, v{t+3}, v{t+4}, {m}",
               f"v_lshl_add_u32 v{t+3}, v{t+1}, 12, s{sActH}",
               f"v_lshl_add_u32 v{t+4}, v{t+2}, 12, s{sActC}",
               f"v_lshrrev_b32 v{t+2}, 2, v{t+2}",
               f"v_mul_u32_u24 v{t+2}, {ACT_HD - 16384}, v{t+2}",
               f"v_add_u32 v{t+4}, v{t+4}, v{t+2}",
               f"v_cndmask_b32 v{vTA}, v{t+3}, v{t+4}, {m}"]
        self.chain_tasks(T, ops, 21, N - 1, last)

    def p3_off(self, ks):
        return [Op(f"v_readlane_b32 s{sT[2 * (ks & 1)]}, v{vTW}, {ks}"), Op(f"v_readlane_b32 s{sT[2 * (ks & 1) + 1]}, v{vTA}, {ks}")]

    def p3_w(self, ks):
        ops = []
        if ks == 14:
            ops += [Op(f"s_mov_b32 s{rW}, s{pWO}"), Op(f"s_mov_b32 s{rW+1}, s{pWO+1}"), Op(f"s_mov_b32 s{rW+2}, {4 * MB}")]
        ops.append(Op(f"s_add_u32 m0, s{sM0p}, {(ks & 7) * 4096}"))

        def wr(c):
            al = [((w, k), ("P", ks), True) for w in "KV" for k in range(4)] if ks < 8 else []
            return [(("P", ks & 7), ("P", ks, c.get("fb")), False)] + al
        for i in range(4):
            ops.append(Op(f"buffer_load_dwordx4 v{vDm[i]}, {srd(rW)}, s{sT[2 * (ks & 1)]} offen offset:{i * 1024} lds", lds_wr=wr))
        return ops

    def p3_a(self, ks):
        return [Op(f"buffer_load_dwordx4 {vr(AR + 16 * (ks & 7) + 4 * k)}, v{vAo[k]}, {srd(rWS)}, s{sT[2 * (ks & 1) + 1]} offen{self.a.ld}",
                   after="h" if ks < 14 else "c", expect={("s", sT[2 * (ks & 1) + 1]): f"v_readlane_b32 s{sT[2 * (ks & 1) + 1]}, v{vTA}, {ks}"})
                for k in range(4)]

    def p3_reads(self, ks):
        ops = []
        for c in range(4):
            for hh in range(2):
                ops.append(Op(f"ds_read_b64_tr_b16 {vr(WF2 + 16 * (ks & 1) + 4 * c + 2 * hh, 2)}, v{vR[c]} offset:{(ks & 7) * 4096 + hh * 2048}",
                              lds_rd=lambda cx: (("P", ks & 7), ("P", ks, cx.get("fb")), False)))
        return ops

    def one_extra(self, S, T, info, last):
        if self.a.upto == "attn":
            return
        ld, chk, br = self.poll("h", f"buffer_load_dword v{vP}, v{vA}, {srd(rWS)}, s{sPollH} offen sc1", f"v_cmp_eq_u32 vcc, 0, v{vP}",
                                expect={("v", vA): f"v_bfe_u32 v{vA}, v{vL16}, 2, 7", ("s", sPollH): f"s_add_u32 s{sPollH}, s{sPollH}, {HFLAG_OFF}"})
        T.append(Task(ld, 8, 20))
        if self.a.ct3:
            val, ops = self.code_touch(MX + 3, MX + 4, 1024)
            l0 = self.chain_tasks(T, val, 0, 24)
            l1 = Task(ops[0], 0, 26)
            T += [l1, Task(ops[1], 0, 28, [(l0, 1), (l1, 0)])]
        if self.a.t3:
            last = self.chain_tasks(T, [f"s_lshr_b32 s{sKo}, s{sB}, 3", f"s_mul_i32 s{sVo}, s{sKo}, {14 * 1024}",
                                        f"s_mul_i32 s{sTmp}, s{sWv}, {14 * 32768}", f"s_add_u32 s{sVo}, s{sVo}, s{sTmp}",
                                        f"s_sub_u32 s{sTmp}, 384, s{pW2}", f"s_and_b32 s{sTmp}, s{sTmp}, 0x380", f"s_add_u32 s{sVo}, s{sVo}, s{sTmp}",
                                        f"s_lshl_b32 s{sKo}, s{sKo}, 13", f"s_lshl_b32 s{sTmp}, s{sWv}, 20", f"s_add_u32 s{sKo}, s{sKo}, s{sTmp}",
                                        f"s_sub_u32 s{sTmp}, 384, s{pWO}", f"s_and_b32 s{sTmp}, s{sTmp}, 0x380", f"s_add_u32 s{sKo}, s{sKo}, s{sTmp}"], 0, 30)
            l2 = self.chain_tasks(T, [f"v_min_u32 v{MX}, {13 * 16}, v{vL16}", f"v_lshlrev_b32 v{MX}, 6, v{MX}",
                                      f"v_and_b32 v{MX+1}, {7 * 16}, v{vL16}", f"v_lshlrev_b32 v{MX+1}, 6, v{MX+1}"], 0, 30)
            T.append(Task(f"buffer_load_dword v{MX+2}, v{MX}, {srd(rW)}, s{sVo} offen", 0, 40, [(last, 1), (l2, 1)]))
        self.hpoll = chk + [Op("s_nop 0")] + br

    def tail(self, B):
        if self.a.upto == "attn":
            p = Plain("epiB")
            for o in self.stamp_ops():
                p.e(o)
            self.epilogue(p.e, [2, 3])
            return [B["check2"]], [p]
        PD = self.a.pd
        m = Plain("p3pre0")
        for o in self.p3_off(0) + self.p3_off(1) + self.hpoll + self.pad_m0(self.p3_w(0)):
            m.e(o)
        p = Plain("p3pre")
        e = p.e
        for o in self.stamp_ops():
            e(o)
        lds = self.p3_a(0)
        for ks in range(1, PD):
            lds += self.p3_off(ks + 1) + self.pad_m0(self.p3_w(ks)) + self.p3_a(ks)
        ep = Plain("tmp")
        self.epilogue(ep.e, [2, 3])
        li = [0]

        def take(n):
            while li[0] < len(lds) and n > 0:
                o = lds[li[0]]
                e(o)
                li[0] += 1
                if o.kind in VM:
                    n -= 1
        take(4)
        k = 0
        for o in ep.ops:
            e(o)
            k += 1
            if k % self.a.epistep == 0:
                take(1)
        take(1000)
        sel = ET + 4
        e(f"v_min_u32 v{Zt}, 1, v{vL16}")
        e(f"v_lshlrev_b32 v{Zt}, 28, v{Zt}")
        e(f"v_bfe_u32 v{Zu}, v{vL16}, 4, 4")
        e(f"v_lshlrev_b32 v{Zu}, 10, v{Zu}")
        e(f"v_lshrrev_b32 v{vA}, 8, v{vL16}")
        e(f"v_lshl_add_u32 v{Zu}, v{vA}, 3, v{Zu}")
        e(f"s_lshl_b32 s{sRG}, s{sRG}, 16")
        e(f"s_lshl_b32 s{sTmp}, s{sWv}, 14")
        e(f"s_add_u32 s{sRG}, s{sRG}, s{sTmp}")
        e(f"s_add_u32 s{sRG}, s{sRG}, s{sCG}")
        for o in self.stamp_ops():
            e(o)
        e(W(vm=True))
        for o in self.p3_reads(0):
            e(o)
        for o in self.p3_off(PD + 1) + self.pad_m0(self.p3_w(PD)) + self.p3_a(PD):
            e(o)
        e(W(lg=True))
        S = Seg("p3")
        NK = 46
        for ks in range(NK):
            for c in range(4):
                for k in range(4):
                    d = ar(16 * k + 4 * c)
                    S.mfma(f"{MF} {d}, {vr(WF2 + 16 * (ks & 1) + 4 * c)}, {vr(AR + 16 * (ks & 7) + 4 * k)}, {d if ks else 0}")
        XR = B2 + 32
        for ks in range(NK):
            g0 = 16 * ks
            if ks + 1 < NK:
                S.put(g0, W(vm=True))
                for i, o in enumerate(self.p3_reads(ks + 1)):
                    S.put(g0 + [0, 1, 3, 4, 6, 7, 9, 10][i], o)
            ops = []
            kn = ks + PD + 1
            if ks == PD - 1:
                ops += [Op(f"buffer_atomic_add v{vD}, v{Zt}, {srd(rWS)}, s{sFlagC} offen sc1", needs=[("cst", False)],
                           expect={("v", vD): f"v_mov_b32 v{vD}, 1", ("v", Zt): f"v_lshlrev_b32 v{Zt}, 28, v{Zt}",
                                   ("s", sFlagC): f"s_add_u32 s{sFlagC}, s{sFlagC}, {CFLAG_OFF}"})]
            if kn < NK:
                ops += self.p3_w(kn)
                if kn == 14:
                    keep = lambda l: [setattr(o, "kind", "salu" if o.kind == "valu" else o.kind) or o for o in l]
                    ops += keep(self.stamp_ops()) if self.a.p3stamps else []
                    ops += [Op(f"s_cmp_lt_u32 s{sSpin}, 32", expect={("s", sSpin): f"s_load_dword s{sSpin}, s[{sPollC}:{sPollC+1}], 0x0 glc",
                                                                     ("s", sPollC): f"s_add_u32 s{sPollC}, s{pWS}, s{sTmp}"}),
                            Op("s_cbranch_scc1 L_spin_c"), Op("L_back_c:")]
                    ops += keep(self.stamp_ops()) if self.a.p3stamps else []
                if kn in (6, 22, 30, 38) and self.a.p3stamps:
                    keep = lambda l: [setattr(o, "kind", "salu" if o.kind == "valu" else o.kind) or o for o in l]
                    ops += keep(self.stamp_ops())
                ops += self.p3_a(kn)
            if self.a.t3 and kn + self.a.t3 in (14, 22, 30, 38):
                ops += [Op(f"buffer_load_dword v{MX+2}, v{MX+1}, {srd(rX)}, s{sKo} offen"), Op(f"s_add_u32 s{sKo}, s{sKo}, {256 * 1024}")]
            if ks == NK - PD - 1:
                ops += [Op(f"s_mov_b32 s{rX}, s{pX}"), Op(f"s_mov_b32 s{rX+1}, s{pX+1}"), Op(f"s_mov_b32 s{rX+2}, {2 * MB}")]
                ops += [Op(f"buffer_load_dwordx2 {vr(XR + 2 * c, 2)}, v{Zu}, {srd(rX)}, s{sRG} offen offset:{32 * c}") for c in range(4)]
            S.flow(ops, g0 + 1, g0 + 15)
            if kn + 1 < NK:
                S.flow(self.p3_off(kn + 1), g0 + 3, g0 + 10)
            if kn == 13:
                S.put(g0 + 11, f"s_load_dword s{sSpin}, s[{sPollC}:{sPollC+1}], 0x0 glc", front=True)
                S.put(g0 + 15, "s_waitcnt lgkmcnt(0)")
            elif ks + 1 < NK:
                S.put(g0 + 15, W(lg=True))
        q = Plain("spin_c")
        q.e("L_spin_c:")
        q.e(f"s_mov_b32 s{sCnt}, 0")
        q.e("L_spin2_c:")
        q.e(f"s_load_dword s{sSpin}, s[{sPollC}:{sPollC+1}], 0x0 glc")
        q.e(f"s_add_u32 s{sCnt}, s{sCnt}, 1")
        q.e(f"s_cmp_gt_u32 s{sCnt}, 400000")
        q.e("s_waitcnt lgkmcnt(0)")
        q.e("s_cbranch_scc1 L_back_c")
        q.e(f"s_cmp_lt_u32 s{sSpin}, 32")
        q.e("s_cbranch_scc0 L_back_c")
        q.e("s_sleep 2")
        q.e("s_branch L_spin2_c")
        self.ool.append(q)
        f = Plain("final")
        e = f.e
        for o in self.stamp_ops():
            e(o)
        a0 = AR
        e(f"v_add_u32 v{a0}, s{sM0p}, v{vL16}")
        for k in range(1, 4):
            e(f"v_subrev_u32 v{a0+k}, {32768 * k}, v{a0}")
            e(f"v_and_b32 v{a0+k}, 0x1ffff, v{a0+k}")
        e("s_nop 3")
        for k in range(1, 4):
            for c in range(4):
                e(f"ds_write_b128 v{a0}, {ar(16 * k + 4 * c)} offset:{k * 4096 + c * 1024}", lds_wr=(("P", k), "red", False))
        O = AR + 16
        for i in range(16):
            e(f"v_accvgpr_read_b32 v{O+i}, a{i}")
        e(W(vm=True))
        U = AR + 32
        for i in range(8):
            e(f"v_lshlrev_b32 v{U+2*i}, 16, v{XR+i}")
            e(f"v_and_b32 v{U+2*i+1}, 0xffff0000, v{XR+i}")
        for i in range(8):
            e(f"v_pk_add_f32 {vr(O+2*i, 2)}, {vr(O+2*i, 2)}, {vr(U+2*i, 2)}")
        e(W(lg=True))
        e("s_barrier")
        R = AR + 48
        for c in range(4):
            for k in range(1, 4):
                e(f"ds_read_b128 {vr(R + 16 * (k - 1) + 4 * c)}, v{a0+k} offset:{k * 4096 + c * 1024}", lds_rd=(("P", k), "red", True))
        for c in range(4):
            e(W(lg=True))
            for k in range(3):
                for h in range(2):
                    e(f"v_pk_add_f32 {vr(O+4*c+2*h, 2)}, {vr(O+4*c+2*h, 2)}, {vr(R+16*k+4*c+2*h, 2)}")
            for h in range(2):
                e(f"v_cvt_pk_bf16_f32 v{U+2*c+h}, v{O+4*c+2*h}, v{O+4*c+2*h+1}")
            e(f"buffer_store_dwordx2 {vr(U+2*c, 2)}, v{Zu}, {srd(rH)}, s{sRG} offen offset:{32 * c}")
        return [m, B["check2"]], [p, S, f]

    def finish(self, blocks, traces):
        for it in range(2):
            for name, tr in traces:
                Tracer(name, tr).run(resolve=True)
        soft = 0
        for name, tr in traces:
            T = Tracer(name, tr)
            T.run(resolve=False)
            soft += T.hazards()
            T.intent()
        for b in blocks:
            n = b.n() if isinstance(b, Seg) else 0
            print(f"  block {b.name:12s} mfma={n:5d} est.cycles={b.cycles():6d}" + (f" (ideal {16*n})" if n else ""))
        print("  mfma distances satisfied by pipe timing only:", soft, " stamps:", self.nstamp)
        hdr = open(self.a.ref).read().split("; Override launch")[0]
        out = [hdr.rstrip("\n"),
               "; generated by gen/gen.py (hand-written generator)",
               f"; @launch grid=(256,1,1) block=(256,1,1) lds={LDS_BYTES}",
               '.amdgcn_target "amdgcn-amd-amdhsa--gfx950"', ".text", f".globl {NAME}_kernel", ".p2align 8",
               f".type {NAME}_kernel,@function", f"{NAME}_kernel:"]
        for b in blocks + self.ool:
            out.append(f"; ---- {b.name} ----")
            for o in b.linear():
                t = o.render()
                out.append(t if o.kind == "label" else " " + t)
        out += ["L_code_end:", " s_endpgm"]
        out += ['.section .rodata,"a"', ".p2align 6", f".amdhsa_kernel {NAME}_kernel",
                "  .amdhsa_next_free_vgpr 512", "  .amdhsa_next_free_sgpr 102", "  .amdhsa_accum_offset 256",
                "  .amdhsa_group_segment_fixed_size 0", "  .amdhsa_kernarg_size 104", "  .amdhsa_user_sgpr_count 2",
                "  .amdhsa_user_sgpr_kernarg_segment_ptr 1", "  .amdhsa_system_sgpr_workgroup_id_x 1", ".end_amdhsa_kernel", ""]
        open(self.a.out, "w").write("\n".join(out))


def args():
    ap = argparse.ArgumentParser()
    ap.add_argument("--out", default="k.s")
    ap.add_argument("--ref", default=f"cdna_kernels/{NAME}.s.ref")
    ap.add_argument("--upto", default="full")
    ap.add_argument("--stamps", action="store_true")
    ap.add_argument("--finestamps", action="store_true")
    ap.add_argument("--wld", default="")
    ap.add_argument("--tld", default="")
    ap.add_argument("--prostamps", action="store_true")
    ap.add_argument("--rmask", type=int, default=3)
    ap.add_argument("--jmask", type=int, default=7)
    ap.add_argument("--ctouch", type=int, default=1)
    ap.add_argument("--wtouch", type=int, default=1)
    ap.add_argument("--otouch", type=int, default=1)
    ap.add_argument("--quick", type=int, default=4)
    ap.add_argument("--pd", type=int, default=3)
    ap.add_argument("--win1", type=int, default=0)
    ap.add_argument("--xld", default=" nt")
    ap.add_argument("--lead", default=" nt")
    ap.add_argument("--t23", default="")
    fl = lambda x: [float(v) for v in x.split(",")]
    ap.add_argument("--tg", type=fl, default=fl("21.5,25.5,26,21"))
    ap.add_argument("--w1early", type=int, default=5)
    ap.add_argument("--lite", action="store_true")
    ap.add_argument("--dbgout", type=int, default=-1)
    ap.add_argument("--ct2", type=fl, default=fl("44,92"))
    ap.add_argument("--ct3", type=int, default=1)
    ap.add_argument("--t3", type=int, default=6)
    ap.add_argument("--tnt", type=fl, default=fl("0,0,0"))
    ap.add_argument("--clead", type=float, default=4.5)
    ap.add_argument("--wlead", type=float, default=3)
    ap.add_argument("--wstart", type=fl, default=fl("19,23,31,39,47,55,63,71,79,87"))
    ap.add_argument("--wstep", type=fl, default=fl("0.3,0.3,1,1,1,1,1,1,1,1"))
    ap.add_argument("--kst", type=fl, default=fl("35,1.35"))
    ap.add_argument("--vst", type=fl, default=fl("70.5,1.2"))
    ap.add_argument("--hst", type=fl, default=fl("84,3.6"))
    ap.add_argument("--xn", type=fl, default=fl("40,0.5"))
    ap.add_argument("--kv", type=fl, default=fl("96,3,109"))
    ap.add_argument("--kflag", type=int, default=8)
    ap.add_argument("--vflag", type=int, default=11)
    ap.add_argument("--vmin", type=int, default=3)
    ap.add_argument("--vrate", type=float, default=4.4)
    ap.add_argument("--vburst", type=float, default=6)
    ap.add_argument("--rt", action="store_true")
    ap.add_argument("--p3stamps", action="store_true")
    ap.add_argument("--cgx", type=int, default=0)
    ap.add_argument("--pmask", type=int, default=3)
    ap.add_argument("--pshift", type=int, default=0)
    ap.add_argument("--epistep", type=int, default=12)
    ap.add_argument("--verbose", action="store_true")
    ap.add_argument("--ld", default=" sc1")
    ap.add_argument("--st", default=" sc1")
    return ap.parse_args()


if __name__ == "__main__":
    Gen(args()).build()
```

```python
import sys, struct, argparse
from fw import *

NAME = "parallel_sum__compressed_kv_cla__dense_activation_mish__prompt"
MB = 1 << 20
KB = 1024
XN_RT = 17 * KB
KV_T = 17 * KB
KV_H = 32 * KV_T + 5 * KB
ACT_HD = 17 * KB
ACT_HOFF = 32 * ACT_HD
ACT_RG = ACT_HOFF + 56 * 4096 + 5 * KB
XN_OFF = 0
K_OFF = 3 * MB
V_OFF = 21 * MB + 10 * KB
ACT_OFF = 39 * MB
FLAG_OFF = 66 * MB
HFLAG_OFF = FLAG_OFF + 4096
CFLAG_OFF = FLAG_OFF + 5120
STAMP_OFF = 68 * MB
QDUMP_OFF = 72 * MB
WS_BYTES = 256 * MB

SLOT = [128 * 1024, 0, 32 * 1024]
CST = 64 * 1024
VRING = 0
KRING = 64 * 1024
SPARE = 128 * 1024
LDS_BYTES = 160 * 1024


def f32(x):
    return "0x%08x" % struct.unpack("<I", struct.pack("<f", x))[0]


LOG2E = 1.4426950408889634
SCALE = LOG2E * 128 ** -0.5

pX, pC, pWQ, pWK, pWV, pWO, pBX, pW1, pB1, pW2, pOUT, pDBG, pWS = [4 + 2 * i for i in range(13)]
rW, rC, rWS, rH, rDBG, rX, rV = 32, 36, 40, 44, 48, 52, 56
rK = rC
sB = 2
sWv, sH, sJ = 60, 61, 62
sWp8, sWp1 = 63, 64
sT = [65, 66, 67, 68]
sCb = 69
sM0c, sM0w = 70, 71
sKVst = 72
sRT = [73, 74, 75, 76]
sAct = [77, 78, 79, 80]
sFlagKV, sFlagH, sFlagC = 81, 82, 83
sSC = 84
sTmp, sTmp2 = 85, 86
sSpin = 87
sBad = 88
sKo, sVo = 90, 91
sMc, sMn = 92, 93
sCnt = 94
sFb = 95
sStamp = 96
sMask = 98
sPollKV = 3
sL2E = 30
sWp1b = 31
sPC = 16
sKa, sKb, sVa, sVb = 98, 99, 100, 101
sM0j = 88
sR = 89


def srd(r):
    return f"s[{r}:{r+3}]"


def vr(b, n=4):
    return f"v[{b}:{b+n-1}]" if n > 1 else f"v{b}"


def ar(b, n=4):
    return f"a[{b}:{b+n-1}]" if n > 1 else f"a{b}"


vSel0 = 0
vL16 = 1
vW8, vW1 = 2, 3
vCD = [4, 5]
vCR = [6, 7]
vWRa = [8, 9, 10, 11]
vWRb = [12, 13, 14, 15]
B0, B1, B2 = 16, 80, 144
WF = 208
T0 = 240

MF = "v_mfma_f32_16x16x32_bf16"
MF32 = "v_mfma_f32_32x32x16_bf16"
vKc, vKn, vVc, vVn = 4, 5, 6, 7
SB = B2
BANK = B2 + 16
NEG = {1: B2 + 32, 2: B2 + 36, 3: B2 + 40}
NEG3L = B2 + 44
NEG0 = B2 + 48
MX = B2 + 52
ZERO, ONES = WF, WF + 4
ET = WF + 8
Z0, Z1, NINF, vP, vA, vD, Zt, Zu = [T0 + 8 + i for i in range(8)]
aO, aL, aK, aV = 0, 128, 144, 176
sMA, sMB = 98, 100
LAT = 7
vR = [8, 9, 10, 11]
vDm = [12, 13, 14, 15]
vAo = [B2 + 60 + i for i in range(4)]
AR = B0
WF2 = B2
sRG, sCG = sRT[0], sRT[1]
sActH, sActC = sRT[2], sRT[3]
sW2b, sWob = sWp8, sWp1
sM0p = sCb
sPollH = sKVst
sPollC = 70
vTA, vTW = 2, 3


def Qf(t, u):
    return B1 + 32 * (u & 1) + 16 * (u >> 1) + 4 * t


def Pf(par, t, kg):
    return B0 + 32 * par + 8 * t + 4 * kg


def negsrc(t):
    return NEG0 if t == 0 else NEG[t]


class Gen:
    def __init__(self, a):
        self.a = a
        self.blocks = []
        self.ool = []
        self.nstamp = 0
        self.rot = 0
        self.m0 = None
        self.nct = 0

    def st(self):
        self.rot = (self.rot + 1) % 4
        return sT[self.rot]

    def stamp_ops(self):
        if not self.a.stamps or self.a.lite:
            return []
        i = self.nstamp
        self.nstamp += 1
        if self.a.rt:
            return [Op(f"s_memrealtime s[{sStamp}:{sStamp+1}]"), Op("s_waitcnt lgkmcnt(0)"), Op(f"s_mul_i32 s{sStamp}, s{sStamp}, 4"),
                    Op(f"s_bitset1_b32 s{sStamp}, 31"), Op(f"s_bitset0_b32 s{sStamp}, 30"),
                    Op(f"v_writelane_b32 v{vSel0}, s{sStamp}, {i + 1}")]
        return [Op(f"s_memtime s[{sStamp}:{sStamp+1}]"), Op("s_waitcnt lgkmcnt(0)"),
                Op(f"s_bitset1_b32 s{sStamp}, 31"), Op(f"s_bitset0_b32 s{sStamp}, 30"), Op(f"s_bitset0_b32 s{sStamp}, 0"), Op(f"s_bitset0_b32 s{sStamp}, 1"),
                Op(f"v_writelane_b32 v{vSel0}, s{sStamp}, {i + 1}")]

    def rt_ops(self, lane):
        if not self.a.stamps:
            return []
        return [Op(f"s_memrealtime s[{sStamp}:{sStamp+1}]"), Op("s_waitcnt lgkmcnt(0)"), Op(f"s_lshl_b32 s{sStamp}, s{sStamp}, 2"),
                Op(f"s_bitset1_b32 s{sStamp}, 31"), Op(f"s_bitset0_b32 s{sStamp}, 30"),
                Op(f"v_writelane_b32 v{vSel0}, s{sStamp}, {lane}")]

    def set_m0(self, text):
        if text == self.m0:
            return []
        self.m0 = text
        return [Op(text)]

    def mk_srd(self, e, r, p, nbytes):
        e(f"s_mov_b32 s{r}, s{p}")
        e(f"s_mov_b32 s{r+1}, s{p+1}")
        e(f"s_mov_b32 s{r+2}, {nbytes}")
        e(f"s_mov_b32 s{r+3}, 0x20000")

    def w_dma(self, n, i):
        slot = (n + 2) % 3
        ops = []
        if i == 0 and n in (4, 8, 10):
            p = {4: pWV, 8: pW1, 10: pWQ}[n]
            ops += [Op(f"s_mov_b32 s{rW}, s{p}"), Op(f"s_mov_b32 s{rW+1}, s{p+1}")]
            if n == 8:
                ops.append(Op(f"s_min_u32 s{rW+2}, s{rH+2}, {512*3584}"))
            if n == 10:
                s = self.st()
                ops += [Op(f"s_mov_b32 s{rW+2}, {4*MB}"), Op(f"s_lshr_b32 s{s}, s{sR}, 1"), Op(f"s_lshl_b32 s{s}, s{s}, 18"),
                        Op(f"s_xor_b32 s{sWp8}, s{sWp8}, s{s}"), Op(f"s_lshr_b32 s{s}, s{sWv}, 1"),
                        Op(f"s_mul_i32 s{s}, s{s}, {(1 << 20) + (1 << 7)}"), Op(f"s_xor_b32 s{sWp8}, s{sWp8}, s{s}")]
        s = self.st()
        wr = [(("W", slot), ("W", n), True)]
        if n == 2:
            wr += [(("X", 0), ("W", n), False), (("X", 1), ("W", n), False)]
        if n in (8, 9):
            ops += self.set_m0(f"s_add_u32 m0, s{sM0w}, {SLOT[slot] + (i >> 2) * 4096}")
            off = (n - 8) * 256 * 3584 + (16 * ((i >> 1) & 1) + 4 * (i & 1)) * 3584 - (i & 3) * 1024
            ops.append(Op(f"s_add_u32 s{s}, s{sWp1b if i >> 2 else sWp1}, {off}"))
            ops.append(Op(f"buffer_load_dwordx4 v{vW1}, {srd(rW)}, s{s} offen offset:{(i & 3) * 1024}{self.a.wld} lds", lds_wr=wr))
        else:
            base = (n % 4) << 20 if n < 8 else ((n & 1) << 21) + (((n - 10) >> 1) << 7)
            ops += self.set_m0(f"s_xor_b32 m0, s{sM0j}, {SLOT[slot] + i * 1024}")
            ops.append(Op(f"s_xor_b32 s{s}, s{sWp8}, {base + (16 * (i >> 1) + 4 * (i & 1)) * 8192}"))
            fl = self.a.lead if (i == 0 and n < 2) else self.a.wld
            ops.append(Op(f"buffer_load_dwordx4 v{vW8}, {srd(rW)}, s{s} offen{fl} lds", lds_wr=wr))
        return ops

    def c_region(self, u):
        if u < 4:
            return ("C", u)
        if u == 4:
            return ("X", 1)
        return ("C", (u - 5) % 4)

    def c_dma(self, u):
        kq, p0, p1 = u >> 2, u & 1, (u >> 1) & 1
        reg = self.c_region(u)
        s, s2 = self.st(), self.st()
        if reg[0] == "C":
            m = f"s_add_u32 m0, s{sM0c}, {CST + reg[1] * 4096}"
        else:
            m = f"s_add_u32 m0, s{sM0w}, {SLOT[1] + reg[1] * 4096}"
        ops = self.set_m0(m)
        ops += [Op(f"s_xor_b32 s{s}, s{sCb}, {(p1 << 15) + (kq << 8) + (p0 << 7)}"), Op(f"s_add_u32 s{s2}, s{s}, 14336")]
        for q in range(4):
            ops.append(Op(f"buffer_load_dwordx4 v{vCD[q & 1]}, {srd(rC)}, s{s2 if q >> 1 else s} offen offset:{q * 1024} lds",
                          lds_wr=(reg, ("c", u), False)))
        return ops

    def c_reads(self, u):
        kq, p0, p1 = u >> 2, u & 1, (u >> 1) & 1
        reg = self.c_region(u)
        ops = []
        for t in range(2):
            for sb in range(2):
                a = vCR[sb] if reg[0] == "C" else T0 + 14 + sb
                ops.append(Op(f"ds_read_b128 {ar(64*kq + 16*(2*p1 + t) + 4*(2*p0 + sb))}, v{a} offset:{reg[1] * 4096 + t * 2048}",
                              lds_rd=(reg, ("c", u), False)))
        return ops

    def w_reads(self, G):
        n, gi = G >> 3, G & 7
        slot = (n + 2) % 3
        hf, c4 = gi >> 2, gi & 3
        a = (vWRb if slot == 0 else vWRa)[c4]
        base = (0 if slot == 0 else SLOT[slot]) + hf * 16384
        ops = []
        for s in range(4):
            for hh in range(2):
                d = WF + 16 * (G & 1) + 4 * s + 2 * hh
                ops.append(Op(f"ds_read_b64_tr_b16 {vr(d, 2)}, v{a} offset:{base + s * 4096 + hh * 1024}",
                              lds_rd=(("W", slot), ("W", n), True)))
        return ops

    def code_touch(self, vt, vd, skip):
        self.nct += 1
        lab = f"L_pc{self.nct}"
        val = [f"v_lshrrev_b32 v{vt}, 9, v{vL16}", f"v_lshlrev_b32 v{vt}, 14, v{vt}", f"v_lshl_add_u32 v{vt}, s{sWv}, 7, v{vt}",
               f"v_lshrrev_b32 v{vd}, 3, s{sB}", f"v_lshl_add_u32 v{vt}, v{vd}, 9, v{vt}", f"v_add_u32 v{vt}, {skip}, v{vt}",
               f"v_min_u32 v{vt}, L_code_end-{lab}-4, v{vt}"]
        o = Op(f"s_getpc_b64 s[{sPC}:{sPC+1}]")
        o.text += f"\n{lab}:"
        return val, [o, Op(f"global_load_dword v{vd}, v{vt}, s[{sPC}:{sPC+1}]")]

    def pad_m0(self, ops):
        out = []
        for o in ops:
            if o.kind == "dma" and out and ("s", "m0") in out[-1].writes:
                out.append(Op("s_nop 0"))
            out.append(o)
        return out

    def poll(self, name, load_text, cmp_text, expect=None, after=None):
        p = Plain("spin_" + name)
        p.e(f"L_spin_{name}:")
        p.e(f"s_mov_b32 s{sSpin}, 0")
        p.e(f"L_spin2_{name}:")
        p.e("s_sleep 4")
        p.e(load_text)
        p.e(f"s_add_u32 s{sSpin}, s{sSpin}, 1")
        p.e(f"s_cmp_gt_u32 s{sSpin}, 200000")
        p.e("s_waitcnt vmcnt(0)")
        p.e(f"s_cbranch_scc1 L_back_{name}")
        p.e(cmp_text)
        p.e("s_nop 1")
        p.e(f"s_cbranch_vccnz L_spin2_{name}")
        p.e(f"s_branch L_back_{name}")
        self.ool.append(p)
        return (Op(load_text, expect=expect, after=after), [W(vm=True), Op(cmp_text, expect={("v", vP): load_text})],
                [Op(f"s_cbranch_vccnz L_spin_{name}", expect=expect), Op(f"L_back_{name}:")])

    def prologue(self):
        p = Plain("prologue")
        e = p.e
        e(f"s_cmp_ge_u32 s{sB}, 256")
        e("s_cbranch_scc1 L_end")
        e("s_load_dwordx16 s[4:19], s[0:1], 0")
        e("s_load_dwordx8 s[20:27], s[0:1], 64")
        e("s_load_dwordx2 s[28:29], s[0:1], 96")
        if self.a.tlb:
            e(f"s_bfe_u32 s90, s{sB}, 0x40003")
            e("s_min_u32 s90, s90, 11")
            e("s_lshl_b32 s91, s90, 3")
            e("s_load_dwordx2 s[92:93], s[0:1], s91")
        t = T0
        if self.a.ctouch:
            e(f"s_getpc_b64 s[{sStamp}:{sStamp+1}]")
            e("L_pc:")
            e(f"s_lshr_b32 s{sTmp}, s{sB}, 3")
            e(f"s_lshl_b32 s{sTmp}, s{sTmp}, 9")
            e(f"v_and_b32 v{t+6}, 7, v0")
            e(f"v_lshl_add_u32 v{t+11}, v{t+6}, 14, s{sTmp}")
            e(f"v_and_b32 v{t+6}, 0xc0, v0")
            e(f"v_lshl_add_u32 v{t+11}, v{t+6}, 1, v{t+11}")
            e(f"v_min_u32 v{t+11}, L_code_end-L_pc-4, v{t+11}")
            e(f"global_load_dword v{B2+63}, v{t+11}, s[{sStamp}:{sStamp+1}]")
        e(f"v_lshrrev_b32 v{t}, 6, v0")
        e(f"v_and_b32 v{t+1}, 63, v0")
        e(f"v_readfirstlane_b32 s{sWv}, v{t}")
        e(f"v_lshlrev_b32 v{vL16}, 4, v{t+1}")
        e(f"v_min_u32 v0, 1, v0")
        e(f"v_lshlrev_b32 v{vSel0}, 28, v0")
        for o in self.rt_ops(62) + self.stamp_ops():
            e(o)
        if self.a.dbgout >= 0:
            for x in (f"s_memtime s[{sStamp}:{sStamp+1}]", "s_waitcnt lgkmcnt(0)", f"s_bitset1_b32 s{sStamp}, 31", f"s_bitset0_b32 s{sStamp}, 30",
                      f"s_bitset0_b32 s{sStamp}, 0", f"s_bitset0_b32 s{sStamp}, 1", f"v_writelane_b32 v{vSel0}, s{sStamp}, 61"):
                e(x)
        e(f"s_and_b32 s{sH}, s{sB}, 7")
        e(f"s_lshl_b32 s{sH}, s{sH}, 2")
        e(f"s_bfe_u32 s{sTmp}, s{sB}, 0x20003")
        e(f"s_add_u32 s{sH}, s{sH}, s{sTmp}")
        e(f"s_lshr_b32 s{sJ}, s{sB}, 5")
        e(f"v_and_b32 v{t+2}, 31, v{t+1}")
        e(f"v_lshrrev_b32 v{t+3}, 5, v{t+1}")
        e(f"v_lshlrev_b32 v{t+4}, 10, v{t+3}")
        e(f"v_lshl_add_u32 v{t+4}, v{t+2}, 4, v{t+4}")
        e(f"s_lshl_b32 s{sTmp}, s{sB}, 13")
        e(f"s_lshl_b32 s{sTmp2}, s{sWv}, 11")
        e(f"s_add_u32 s{sTmp}, s{sTmp}, s{sTmp2}")
        e(f"v_lshrrev_b32 v{t+5}, 3, v{t+1}")
        e(f"v_and_b32 v{t+6}, 7, v{t+1}")
        e(f"v_lshrrev_b32 v{t+7}, 4, v{t+1}")
        e(f"v_xor_b32 v{t+8}, v{t+6}, v{t+7}")
        e(f"v_lshlrev_b32 v{t+8}, 4, v{t+8}")
        e(f"v_lshl_add_u32 v{vCD[0]}, v{t+5}, 10, v{t+8}")
        e(f"v_xor_b32 v{vCD[1]}, 64, v{vCD[0]}")
        e(f"v_add_u32 v{vCD[1]}, {8192 - 1024}, v{vCD[1]}")
        e(f"s_lshl_b32 s{sCb}, s{sJ}, 18")
        e(f"s_lshl_b32 s{sTmp2}, s{sWv}, 16")
        e(f"s_add_u32 s{sCb}, s{sCb}, s{sTmp2}")
        e(f"s_and_b32 s{sR}, s{sH}, {self.a.rmask}")
        e(f"s_mul_i32 s{sTmp2}, s{sR}, {(1 << 14) + (1 << 7)}")
        e(f"s_and_b32 s{sTmp2}, s{sTmp2}, {(1 << 15) + (1 << 7)}")
        e(f"s_add_u32 s{sCb}, s{sCb}, s{sTmp2}")
        e(f"s_lshl_b32 s{sM0c}, s{sWv}, 14")
        e(f"s_lshl_b32 s{sM0w}, s{sWv}, 13")
        e(f"s_and_b32 s{sSpin}, s{sJ}, {self.a.jmask}")
        e(f"s_lshl_b32 s{sM0j}, s{sSpin}, 10")
        e(f"s_add_u32 s{sM0j}, s{sM0j}, s{sM0w}")
        e(f"v_and_b32 v{t+9}, 3, v{t+5}")
        e(f"v_lshl_add_u32 v{t+9}, v{t+3}, 3, v{t+9}")
        e(f"v_lshlrev_b32 v{t+10}, 1, v{t+7}")
        e(f"v_xor_b32 v{t+10}, v{t+10}, v{t+6}")
        e(f"v_lshlrev_b32 v{t+10}, 4, v{t+10}")
        e(f"v_lshl_add_u32 v{vW8}, v{t+9}, 13, v{t+10}")
        e(f"v_mul_u32_u24 v{vW1}, 3584, v{t+9}")
        e(f"v_add_u32 v{vW1}, v{vW1}, v{t+10}")
        e(f"s_xor_b32 s{sWp8}, s{sWv}, s{sR}")
        e(f"s_and_b32 s{sWp8}, s{sWp8}, 1")
        e(f"s_lshl_b32 s{sWp8}, s{sWp8}, 19")
        e(f"s_and_b32 s{sTmp2}, s{sSpin}, 1")
        e(f"s_lshl_b32 s{sTmp2}, s{sTmp2}, 15")
        e(f"s_add_u32 s{sWp8}, s{sWp8}, s{sTmp2}")
        e(f"s_lshr_b32 s{sTmp2}, s{sSpin}, 1")
        e(f"s_lshl_b32 s{sTmp2}, s{sTmp2}, 17")
        e(f"s_add_u32 s{sWp8}, s{sWp8}, s{sTmp2}")
        e(f"s_lshr_b32 s{sTmp2}, s{sWv}, 1")
        e(f"s_lshl_b32 s{sTmp2}, s{sTmp2}, 7")
        e(f"s_add_u32 s{sWp8}, s{sWp8}, s{sTmp2}")
        e(f"s_lshl_b32 s{sTmp2}, s{sH}, 8")
        e(f"s_add_u32 s{sWp8}, s{sWp8}, s{sTmp2}")
        e("s_waitcnt lgkmcnt(0)")
        ps = lambda: [e(o) for o in (self.stamp_ops() if self.a.prostamps else [])]
        ps()
        self.mk_srd(e, rX, pX, 2 * MB)
        X = B2
        e(f"buffer_load_dwordx4 {vr(X)}, v{t+4}, {srd(rX)}, s{sTmp} offen{self.a.xld}")
        e(f"buffer_load_dwordx4 {vr(X+4)}, v{t+4}, {srd(rX)}, s{sTmp} offen offset:512{self.a.xld}")
        self.mk_srd(e, rC, pC, 2 * MB)
        self.mk_srd(e, rW, pWK, 4 * MB)
        if self.a.win1:
            e(f"s_lshl_b32 s{sTmp}, s{sJ}, 5")
            e(f"s_add_u32 s{sTmp}, s{sTmp}, s{sH}")
            e(f"s_lshl_b32 s{sTmp}, s{sTmp}, 2")
            e(f"s_add_u32 s{sTmp}, s{sTmp}, s{sWv}")
            e(f"s_lshl_b32 s{sTmp}, s{sTmp}, 11")
            e(f"v_and_b32 v{t+11}, 15, v{t+1}")
            e(f"v_lshlrev_b32 v{t+11}, 7, v{t+11}")
            e(f"buffer_load_dword v{B2+62}, v{t+11}, {srd(rC)}, s{sTmp} offen")
            for o in self.pad_m0(self.w_dma(0, 0) + self.w_dma(1, 0)):
                e(o)
            e(f"v_and_b32 v{t+11}, 1, v{t+1}")
            e(f"v_lshlrev_b32 v{t+11}, 20, v{t+11}")
            e(f"v_lshl_add_u32 v{t+11}, v{t+9}, 13, v{t+11}")
            e(f"s_add_u32 s{sTmp}, s{sWp8}, {2 << 20}")
            e(f"buffer_load_dword v{B2+61}, v{t+11}, {srd(rW)}, s{sTmp} offen{self.a.t23}")
            later = [lambda: self.c_dma(0), lambda: self.c_dma(1)]
        else:
            for o in self.pad_m0(self.w_dma(0, 0) + self.c_dma(0)):
                e(o)
            later = [lambda: self.c_dma(1)]
        later += [lambda i=i: self.w_dma(0, i) for i in range(1, 4)] + [lambda: self.c_dma(2)]
        later += [lambda i=i: self.w_dma(0, i) for i in range(4, 8)] + [lambda: self.c_dma(3)]
        if self.a.tlb:
            e("s_sub_u32 s90, s90, 2")
            e("s_cmp_lt_u32 s90, 4")
            e(f"s_cselect_b32 s90, s{sB}, 0")
            e("s_and_b32 s90, s90, 128")
            e("s_lshl_b32 s90, s90, 14")
            e("s_add_u32 s92, s92, s90")
            e("s_addc_u32 s93, s93, 0")
            e("s_load_dword s94, s[92:93], 0x0")
            e(f"s_lshr_b32 s90, s{sB}, 3")
            e(f"s_mul_i32 s91, s90, {ACT_RG}")
            e(f"s_add_u32 s91, s91, {ACT_OFF + ACT_RG - 1024}")
            e(f"s_mul_i32 s98, s{sH}, {KV_H}")
            e(f"s_mul_i32 s99, s{sJ}, {4 * KV_T}")
            e("s_add_u32 s98, s98, s99")
            e(f"s_add_u32 s99, s98, {V_OFF + 16384}")
            e(f"s_add_u32 s98, s98, {K_OFF + 16384}")
            e(f"s_mul_i32 s90, s90, {4 * XN_RT}")
            e(f"s_add_u32 s90, s90, {XN_OFF + 3 * XN_RT + 16384}")
            e(f"s_cmp_eq_u32 s{sWv}, 1")
            e("s_cselect_b32 s91, s98, s91")
            e(f"s_cmp_eq_u32 s{sWv}, 2")
            e("s_cselect_b32 s91, s99, s91")
            e(f"s_cmp_eq_u32 s{sWv}, 3")
            e("s_cselect_b32 s91, s90, s91")
            e(f"s_add_u32 s90, s{pWS}, s91")
            e(f"s_addc_u32 s91, s{pWS+1}, 0")
            e("s_load_dword s87, s[90:91], 0x0")
        for o in self.stamp_ops():
            e(o)
        mark = len(p.ops)
        self.mk_srd(e, rWS, pWS, WS_BYTES)
        self.mk_srd(e, rDBG, pDBG, 256)
        self.mk_srd(e, rH, pWS, WS_BYTES)
        e(f"s_cmp_lt_u32 s{sH}, 28")
        e(f"s_cselect_b32 s{rH+2}, s{rH+2}, 0")
        e(f"s_lshl_b32 s{sPollKV}, s{sH}, 7")
        e(f"s_add_u32 s{sPollKV}, s{sPollKV}, {FLAG_OFF}")
        e(f"s_lshl_b32 s{sTmp}, s{sJ}, 2")
        e(f"s_add_u32 s{sFlagKV}, s{sPollKV}, s{sTmp}")
        e(f"s_lshl_b32 s{sTmp}, s{sJ}, 5")
        e(f"s_add_u32 s{sTmp}, s{sTmp}, s{sH}")
        e(f"s_lshl_b32 s{sFlagH}, s{sTmp}, 2")
        e(f"s_add_u32 s{sFlagH}, s{sFlagH}, {HFLAG_OFF}")
        e(f"s_lshr_b32 s{sTmp}, s{sTmp}, 3")
        e(f"s_lshl_b32 s{sFlagC}, s{sTmp}, 7")
        e(f"s_add_u32 s{sFlagC}, s{sFlagC}, {CFLAG_OFF}")
        e(f"s_cmp_lt_u32 s{sB}, 72")
        e(f"s_cselect_b32 s{sTmp}, s{sWv}, 1")
        e(f"v_or_b32 v{t+11}, s{sTmp}, v{t+3}")
        e(f"v_lshlrev_b32 v{t+11}, 28, v{t+11}")
        e(f"v_lshl_add_u32 v{t+11}, v{t+2}, 2, v{t+11}")
        e(f"v_mov_b32 v{t+12}, 0")
        e(f"s_lshl_b32 s{sTmp}, s{sB}, 7")
        e(f"s_add_u32 s{sTmp}, s{sTmp}, {FLAG_OFF}")
        e(f"buffer_store_dword v{t+12}, v{t+11}, {srd(rWS)}, s{sTmp} offen sc1", tag="clr")
        e(f"s_and_b32 s{sTmp}, s{sR}, 1")
        e(f"s_xor_b32 s{sTmp}, s{sTmp}, s{sWv}")
        e(f"s_mul_i32 s{sWp1}, s{sTmp}, {64 * 3584}")
        e(f"s_lshl_b32 s{sTmp}, s{sH}, 7")
        e(f"s_add_u32 s{sWp1}, s{sWp1}, s{sTmp}")
        e(f"s_lshr_b32 s{sTmp}, s{sR}, 1")
        e(f"s_mul_i32 s{sTmp}, s{sTmp}, {32 * 3584}")
        e(f"s_sub_u32 s{sWp1b}, s{sWp1}, s{sTmp}")
        e(f"s_add_u32 s{sWp1b}, s{sWp1b}, {32 * 3584}")
        e(f"s_add_u32 s{sWp1}, s{sWp1}, s{sTmp}")
        e(f"s_mul_i32 s{sKVst}, s{sH}, {KV_H}")
        e(f"s_lshl_b32 s{sTmp}, s{sJ}, 2")
        e(f"s_add_u32 s{sTmp}, s{sTmp}, s{sWv}")
        e(f"s_mul_i32 s{sTmp}, s{sTmp}, {KV_T}")
        e(f"s_add_u32 s{sKVst}, s{sKVst}, s{sTmp}")
        e(f"s_lshr_b32 s{sTmp}, s{sR}, 1")
        e(f"s_lshl_b32 s{sTmp2}, s{sTmp}, 13")
        e(f"s_add_u32 s{sKa}, s{sKVst}, s{sTmp2}")
        e(f"s_sub_u32 s{sKb}, s{sKVst}, s{sTmp2}")
        e(f"s_lshl_b32 s{sTmp2}, s{sTmp}, 10")
        e(f"s_add_u32 s{sVa}, s{sKVst}, s{sTmp2}")
        e(f"s_sub_u32 s{sVb}, s{sKVst}, s{sTmp2}")
        e(f"s_lshl_b32 s{sTmp}, s{sJ}, 3")
        e(f"s_add_u32 s{sRT[0]}, s{sTmp}, s{sWv}")
        e(f"s_sub_u32 s{sRT[1]}, s{sTmp}, s{sWv}")
        e(f"s_add_u32 s{sRT[1]}, s{sRT[1]}, 7")
        e(f"s_sub_u32 s{sRT[2]}, 127, s{sRT[1]}")
        e(f"s_sub_u32 s{sRT[3]}, 127, s{sRT[0]}")
        for i in range(4):
            e(f"s_lshr_b32 s{sTmp}, s{sRT[i]}, 2")
            e(f"s_mul_i32 s{sAct[i]}, s{sTmp}, {ACT_RG}")
            e(f"s_and_b32 s{sTmp}, s{sRT[i]}, 3")
            e(f"s_lshl_b32 s{sTmp}, s{sTmp}, 10")
            e(f"s_add_u32 s{sAct[i]}, s{sAct[i]}, s{sTmp}")
            e(f"s_add_u32 s{sAct[i]}, s{sAct[i]}, {ACT_OFF}")
            e(f"s_mul_i32 s{sRT[i]}, s{sRT[i]}, {XN_RT}")
        e(f"s_mov_b32 s{sSC}, {f32(SCALE)}")
        e(f"s_mov_b32 s{sL2E}, {f32(LOG2E)}")
        e(f"s_mov_b32 s{sFb}, 0")
        e(f"v_and_b32 v{t+11}, 15, v{t+1}")
        e(f"v_lshrrev_b32 v{t+12}, 1, v{t+11}")
        e(f"v_xor_b32 v{t+12}, v{t+12}, v{t+7}")
        e(f"v_lshlrev_b32 v{t+12}, 4, v{t+12}")
        e(f"v_lshl_add_u32 v{t+12}, v{t+11}, 7, v{t+12}")
        e(f"v_xor_b32 v{t+13}, 64, v{t+12}")
        e(f"s_add_u32 s{sTmp}, s{sM0c}, {CST}")
        e(f"v_add_u32 v{vCR[0]}, s{sTmp}, v{t+12}")
        e(f"v_add_u32 v{vCR[1]}, s{sTmp}, v{t+13}")
        e(f"v_add_u32 v{t+14}, s{sM0w}, v{t+12}")
        e(f"v_add_u32 v{t+15}, s{sM0w}, v{t+13}")
        e(f"v_bfe_u32 v{t+12}, v{t+1}, 2, 3")
        e(f"v_lshlrev_b32 v{t+13}, 7, v{t+12}")
        e(f"v_lshl_add_u32 v{t+13}, v{t+3}, 11, v{t+13}")
        e(f"v_and_b32 v{t+11}, 3, v{t+1}")
        e(f"v_lshl_add_u32 v{t+13}, v{t+11}, 3, v{t+13}")
        e(f"v_lshrrev_b32 v{t+12}, 1, v{t+12}")
        e(f"v_lshl_add_u32 v{vWRa[0]}, v{t+12}, 5, v{t+13}")
        for c in range(1, 4):
            e(f"v_xor_b32 v{vWRa[c]}, {c * 32}, v{vWRa[0]}")
        for c in range(4):
            e(f"v_add_u32 v{vWRb[c]}, {SLOT[0]}, v{vWRa[c]}")
        e(f"v_lshrrev_b32 v{t+12}, 4, v{t+2}")
        e(f"v_lshlrev_b32 v{t+12}, 13, v{t+12}")
        e(f"v_and_b32 v{t+11}, 15, v{t+2}")
        e(f"v_lshl_add_u32 v{t+12}, v{t+11}, 7, v{t+12}")
        e(f"v_lshl_add_u32 v{t+12}, v{t+3}, 4, v{t+12}")
        e(f"s_lshl_b32 s{sTmp}, s{sWv}, 5")
        e(f"v_add_u32 v{t+12}, s{sTmp}, v{t+12}")
        e(f"v_lshlrev_b32 v{t+13}, 4, v{t+6}")
        e(f"v_lshl_add_u32 v{t+13}, v{t+5}, 8, v{t+13}")
        e(f"v_add_u32 v{t+11}, s{sM0w}, v{vL16}")
        e(f"s_lshr_b32 s{sTmp}, s{sB}, 1")
        e(f"s_mul_i32 s{sTmp}, s{sTmp}, {XN_RT}")
        e(f"s_and_b32 s{sTmp2}, s{sB}, 1")
        e(f"s_lshl_b32 s{sTmp2}, s{sTmp2}, 7")
        e(f"s_add_u32 s{sTmp}, s{sTmp}, s{sTmp2}")
        e(f"s_lshl_b32 s{sTmp2}, s{sWv}, 12")
        e(f"s_add_u32 s{sTmp}, s{sTmp}, s{sTmp2}")
        F = X + 8
        D = X + 24
        a, b2 = X + 40, X + 41
        ps()
        e(W(vm=True))
        ps()
        for i in range(8):
            e(f"v_lshlrev_b32 v{F+2*i}, 16, v{X+i}")
            e(f"v_and_b32 v{F+2*i+1}, 0xffff0000, v{X+i}")

        def rowsum(src):
            for i in range(8):
                e(f"v_add_f32 v{X+44+i}, v{src+2*i}, v{src+2*i+1}")
            for i in range(4):
                e(f"v_add_f32 v{X+44+i}, v{X+44+i}, v{X+48+i}")
            e(f"v_add_f32 v{X+44}, v{X+44}, v{X+46}")
            e(f"v_add_f32 v{X+45}, v{X+45}, v{X+47}")
            e(f"v_add_f32 v{a}, v{X+44}, v{X+45}")
            for m in ("quad_perm:[1,0,3,2]", "quad_perm:[2,3,0,1]", "row_half_mirror", "row_mirror"):
                e("s_nop 1")
                e(f"v_add_f32_dpp v{a}, v{a}, v{a} {m} row_mask:0xf bank_mask:0xf")
            e(f"v_mov_b32 v{b2}, v{a}")
            e("s_nop 1")
            e(f"v_permlane16_swap_b32 v{a}, v{b2}")
            e(f"v_add_f32 v{a}, v{a}, v{b2}")
            e(f"v_mul_f32 v{a}, {f32(1 / 512)}, v{a}")

        def rnd(r):
            e(f"v_cvt_pk_bf16_f32 v{r}, v{r}, v{r}")
            e(f"v_and_b32 v{r}, 0xffff0000, v{r}")
        rowsum(F)
        mean = X + 42
        e(f"v_mov_b32 v{mean}, v{a}")
        for i in range(16):
            e(f"v_sub_f32 v{D+i}, v{F+i}, v{a}")
        for i in range(16):
            e(f"v_mul_f32 v{D+i}, v{D+i}, v{D+i}")
        rowsum(D)
        rnd(a)
        rnd(mean)
        e(f"v_add_f32 v{a}, {f32(1e-5)}, v{a}")
        rnd(a)
        e(f"v_sqrt_f32 v{a}, v{a}")
        for i in range(16):
            e(f"v_sub_f32 v{F+i}, v{F+i}, v{mean}")
        rnd(a)
        e(f"v_rcp_f32 v{a}, v{a}")
        for i in range(8):
            e(f"v_cvt_pk_bf16_f32 v{X+i}, v{F+2*i}, v{F+2*i+1}")
        for i in range(8):
            e(f"v_lshlrev_b32 v{F+2*i}, 16, v{X+i}")
            e(f"v_and_b32 v{F+2*i+1}, 0xffff0000, v{X+i}")
        for i in range(16):
            e(f"v_mul_f32 v{F+i}, v{F+i}, v{a}")
        for i in range(8):
            e(f"v_cvt_pk_bf16_f32 v{X+i}, v{F+2*i}, v{F+2*i+1}")
        body = p.ops[mark:]
        del p.ops[mark:]
        groups = []
        for f in later:
            cur = []
            for o in self.pad_m0(f()):
                cur.append(o)
                if o.kind == "dma":
                    groups.append(cur)
                    cur = []
        quick = self.a.quick
        step = len(body) / (len(groups) - quick + 1)
        gi = 0
        for k, o in enumerate(body):
            while gi < len(groups) and k >= (gi - quick + 1) * step and ("s", "scc") not in o.reads:
                p.ops += groups[gi]
                gi += 1
            p.ops.append(o)
        assert gi == len(groups)
        ps()
        e(f"ds_write_b128 v{t+12}, {vr(X)} offset:{SLOT[1]}", lds_wr=(("X", 0), "ln", True))
        e(f"ds_write_b128 v{t+12}, {vr(X+4)} offset:{SLOT[1] + 16384}", lds_wr=(("X", 0), "ln", True))
        early = ([] if self.a.win1 else self.w_dma(1, 0)) + self.c_dma(4)
        for i in range(1, self.a.w1early):
            early += self.w_dma(1, i)
        for o in self.pad_m0(early):
            e(o)
        for o in self.stamp_ops():
            e(o)
        e("s_waitcnt lgkmcnt(0)")
        e(W(vm=True))
        e("s_barrier")
        for o in self.stamp_ops():
            e(o)
        for o in self.w_reads(0) + self.c_reads(0):
            e(o)
        e(W(lg=True))
        for o in self.c_reads(1) + self.c_reads(2) + self.c_reads(3):
            e(o)
        e(W(lg=True))
        return p

    def acc(self, n, c, rt):
        base = B0 if n < 10 else (B1 if n < 12 else B2)
        return base + 16 * c + 4 * rt

    def proj(self):
        S = Seg("proj")
        A = self.a
        BIASR, BIAS = T0, T0 + 8
        NG = 14 * 8
        for G in range(NG):
            n, gi = G >> 3, G & 7
            if n >= 8:
                kq, c = 2 * (n & 1) + (gi >> 2), gi & 3
            else:
                kq, c = n % 4, gi
            for rt in range(4):
                d = vr(self.acc(n, c, rt))
                for s in range(4):
                    w = vr(WF + 16 * (G & 1) + 4 * s)
                    x = ar(64 * kq + 16 * rt + 4 * s)
                    cc = d
                    if kq == 0 and s == 0:
                        cc = vr(BIAS + 4 * (c & 1)) if n == 8 else "0"
                    if 4 <= n < 8:
                        S.mfma(f"{MF} {d}, {x}, {w}, {cc}")
                    else:
                        S.mfma(f"{MF} {d}, {w}, {x}, {cc}")
        RG = [0, 1, 2, 4, 5, 6, 8, 9]
        for G in range(NG - 1):
            for i, o in enumerate(self.w_reads(G + 1)):
                S.put(16 * G + RG[i], o)
            if (G + 1) % 8 == 7:
                S.put(16 * G + 15, W(vm=True, lg=True))
                S.put(16 * G + 15, "s_barrier")
                if A.finestamps:
                    for o in self.stamp_ops():
                        S.put(16 * G + 15, o)
            else:
                w = W(lg=True)
                if G % 8 == 2:
                    w.vm = 36
                S.put(16 * G + 15, w)
        bar_gap = lambda n: 16 * (8 * n + 6) + 15
        gp = lambda x: int(16 * x)
        jobs = []
        pos = {}
        J = lambda rel, f, name=None: jobs.append((rel, f, name))
        X = B2
        S.put(10, Op(f"ds_read_b128 {vr(X)}, v{T0+11} offset:{SLOT[1]}", lds_rd=(("X", 0), "ln", True)))
        S.put(12, Op(f"ds_read_b128 {vr(X+4)}, v{T0+11} offset:{SLOT[1] + 1024}", lds_rd=(("X", 0), "ln", True)))
        J(gp(2), lambda: [Op(f"buffer_store_dwordx4 {vr(X)}, v{T0+13}, {srd(rWS)}, s{sTmp} offen sc1"),
                          Op(f"buffer_store_dwordx4 {vr(X+4)}, v{T0+13}, {srd(rWS)}, s{sTmp} offen offset:2048 sc1", tag="xn")], "xnst")
        CR = {4: 1, 5: 4.5, 6: 5.7, 7: 6.8}
        CR.update({u: 2 * (u - 4) + 0.5 - (0.5 if u & 3 == 3 else 0) for u in range(8, 16)})
        cpos = [16 * G + k for G in range(1, 24) for k in (10, 12, 13)]
        cdone = {}
        ci = 0
        for u in range(4, 16):
            while cpos[ci] < gp(CR[u]):
                ci += 1
            S.put(cpos[ci], W(vm=True))
            for o in self.c_reads(u):
                S.put(cpos[ci], o)
                cdone[u] = cpos[ci]
                ci += 1
            assert cdone[u] < 128 * (u >> 2), (u, cdone[u])
        J(0, lambda: self.c_dma(5))
        J(1, lambda: self.c_dma(6))
        for i in range(A.w1early, 8):
            J(gp(2) + 1, lambda i=i: self.w_dma(1, i))
        J(gp(2) + 2, lambda: self.c_dma(7))
        for u in range(8, 16):
            rel = gp(CR[u] - A.clead)
            if u >= 9:
                rel = max(rel, (cdone[u - 4] + 6) // 16 * 16 + 16)
            J(max(rel, gp(2) + 3), lambda u=u: self.c_dma(u))
        wrel = 0
        for n in range(2, 14):
            for i in range(8):
                if n < 4:
                    G = 8 * (n - 1) + 6 - A.wlead - 7 + i
                else:
                    G = A.wstart[n - 4] + i * A.wstep[n - 4]
                wrel = max(wrel, gp(G), bar_gap(n - 3) + 1 if n > 2 else 0)
                J(wrel, lambda n=n, i=i: self.w_dma(n, i), f"w{n}")
        S.flow([f"v_lshrrev_b32 v{vA}, 8, v{vL16}", f"v_lshlrev_b32 v{vA}, 3, v{vA}"], gp(8), gp(12))

        def fb():
            s = self.st()
            return [Op(f"s_mov_b32 s{rX}, s{pB1}"), Op(f"s_mov_b32 s{rX+1}, s{pB1+1}"), Op(f"s_min_u32 s{rX+2}, s{rH+2}, 3584"),
                    Op(f"s_lshl_b32 s{s}, s{sH}, 7")] + \
                   [Op(f"buffer_load_dwordx2 {vr(BIASR + 2*c, 2)}, v{vA}, {srd(rX)}, s{s} offen offset:{32*c}") for c in range(4)]
        J(gp(A.tg[3]), fb, "bias")
        if A.wtouch:
            t0, t1, td = T0 + 8, T0 + 9, T0 + 10
            S.flow([f"v_and_b32 v{t0}, {31 * 16}, v{vL16}", f"v_lshlrev_b32 v{t0}, 3, v{t0}", f"v_min_u32 v{t1}, {13 * 128}, v{t0}"], gp(1), gp(4))

            def ft(p, w1, fl):
                s = self.st()
                return [Op(f"s_mov_b32 s{rX}, s{p}"), Op(f"s_mov_b32 s{rX+1}, s{p+1}"),
                        Op(f"s_mov_b32 s{rX+2}, {512 * 3584 if w1 else 4 * MB}"),
                        Op(f"s_lshl_b32 s{s}, s{sB}, 2"), Op(f"s_add_u32 s{s}, s{s}, s{sWv}"),
                        Op(f"s_mul_i32 s{s}, s{s}, {1792 if w1 else 4096}"),
                        Op(f"buffer_load_dword v{td}, v{t1 if w1 else t0}, {srd(rX)}, s{s} offen{fl}")]
            for k, (p, w1) in enumerate(((pWV, 0), (pW1, 1), (pWQ, 0))):
                if A.tg[k] >= 0:
                    J(gp(A.tg[k]), lambda p=p, w1=w1, k=k: ft(p, w1, " nt" if A.tnt[k] else ""))
                    if A.tnt[k] > 1:
                        J(gp(A.tg[k] + A.tnt[k]), lambda p=p, w1=w1: ft(p, w1, ""))
        for G in A.ct2:
            if G > 0:
                vt, vd = (T0 + 14, T0 + 15) if G < 60 else (3, T0 + 15)
                val, ops = self.code_touch(vt, vd, 2048)
                S.flow(val, gp(G - 3), gp(G) - 1)
                J(gp(G), lambda ops=ops: ops)
        SEL = {("v", vSel0): f"v_lshlrev_b32 v{vSel0}, 28, v0"}
        S.flow([f"s_and_b32 s{sTmp2}, s{sB}, 3", f"s_lshl_b32 s{sTmp2}, s{sTmp2}, 6", f"v_mov_b32 v{vD}, 1"], gp(5), bar_gap(0))
        J(bar_gap(0) + 1, lambda: [Op(f"buffer_atomic_add v{vD}, v{vSel0}, {srd(rDBG)}, s{sTmp2} offen sc1",
                                      needs=[("xn", True), ("clr", True)],
                                      expect={("v", vD): f"v_mov_b32 v{vD}, 1", ("s", sTmp2): f"s_lshl_b32 s{sTmp2}, s{sTmp2}, 6", **SEL})])
        KREL, VREL = {}, {}
        for u in range(4):
            for rt in range(4):
                k = 4 * u + rt
                KREL[k] = max(gp(A.kst[0] + k * A.kst[1]), gp(28.5 + 2.4 * u + 0.6 * rt))

                def f(u=u, rt=rt):
                    s = self.st()
                    return [Op(f"s_add_u32 s{s}, s{sKb if rt >> 1 else sKa}, {K_OFF + rt * 4096}"),
                            Op(f"buffer_store_dwordx4 {vr(B2 + 16*u + 4*rt)}, v{vL16}, {srd(rWS)}, s{s} offen offset:{u*1024}{A.st}", tag="kst")]
                J(KREL[k], f, f"k{k}")
        for dt in range(8):
            for kg in range(2):
                k = 2 * dt + kg
                VREL[k] = max(gp(56 + dt) + 40, gp(A.vst[0] + k * A.vst[1]))

                def f(dt=dt, kg=kg):
                    s = self.st()
                    return [Op(f"s_add_u32 s{s}, s{sVb if kg else sVa}, {V_OFF + (dt >> 1) * 4096}"),
                            Op(f"buffer_store_dwordx4 {vr(B2 + 8*dt + 4*kg)}, v{vL16}, {srd(rWS)}, s{s} offen offset:{(dt & 1)*2048 + kg*1024}{A.st}", tag="vst")]
                J(VREL[k], f, f"v{k}")
        S.flow([f"v_bfe_u32 v{vA}, v{vL16}, 4, 2", f"v_lshlrev_b32 v{vA}, 6, v{vA}"], gp(31), gp(33))
        ld, chk, br = self.poll("xn", f"buffer_load_dword v{vP}, v{vA}, {srd(rDBG)}, 0 offen sc1", f"v_cmp_gt_u32 vcc, 64, v{vP}",
                                expect={("v", vA): f"v_lshlrev_b32 v{vA}, 6, v{vA}"})
        J(gp(34), lambda: [ld])
        self.put_check(S, gp(39), chk, br)
        vX = [4, 5, 6, 7]
        S.flow([f"s_mul_i32 s{sTmp2}, s{sR}, {(1 << 11) + (1 << 9)}", f"s_and_b32 s{sTmp2}, s{sTmp2}, {3 << 10}",
                f"v_xor_b32 v{vX[0]}, s{sTmp2}, v{vL16}"] + [f"v_xor_b32 v{vX[k]}, {k << 10}, v{vX[0]}" for k in range(1, 4)], gp(35), gp(39))
        for kq in range(4):
            for k in range(4):
                for rt in range(4):
                    def f(kq=kq, rt=rt, k=k):
                        ops = [Op(f"buffer_load_dwordx4 {ar(64*kq + 16*rt + 4*k)}, v{vX[k]}, {srd(rWS)}, s{sRT[rt]} offen{A.ld}", after="xn")]
                        if k == 3 and kq < 3:
                            ops.append(Op(f"s_add_u32 s{sRT[rt]}, s{sRT[rt]}, 4096"))
                        return ops
                    J(max(128 * (5 + kq), gp(A.xn[0] + (16 * kq + 4 * k + rt) * A.xn[1])), f, f"x{kq}")
        for kq in range(4):
            w = S.nv[gp(64 + 4 * kq) - 1][0]
            assert w.kind == "wait"
            w.vm = 63
        FL = {("v", vWRb[0]): f"v_add_u32 v{vWRb[0]}, {SLOT[0]}, v{vWRa[0]}", ("s", sFlagKV): f"s_add_u32 s{sFlagKV}, s{sPollKV}, s{sTmp}", **SEL}
        J(bar_gap(A.kflag) + 1, lambda: [Op(f"buffer_store_dword v{vWRb[0]}, v{vSel0}, {srd(rWS)}, s{sFlagKV} offen sc1",
                                            needs=[("kst", True)], after="xn", expect=FL)])
        if A.upto != "proj":
            J(bar_gap(A.vflag) + 1, lambda: [Op(f"buffer_store_dword v{vWRb[0]}, v{vSel0}, {srd(rWS)}, s{sFlagKV} offen offset:32 sc1",
                                                needs=[("vst", True)], after="xn", expect=FL)])
        self.extra_jobs(S, J, gp)
        HREL = [gp(A.hst[0] + k * A.hst[1]) for k in range(8)]
        S.flow([f"s_lshl_b32 s{sWp1b}, s{sH}, 13", f"s_add_u32 s{sWp1b}, s{sWp1b}, {ACT_HOFF}"], gp(72), gp(76))
        for u in range(2):
            for rt in range(4):
                def f(u=u, rt=rt):
                    s = self.st()
                    ops = [Op(f"s_add_u32 s{s}, s{sWp1b}, s{sAct[rt]}"),
                           Op(f"buffer_store_dwordx4 {vr(B0 + 32*u + 4*rt)}, v{vL16}, {srd(rH)}, s{s} offen{A.st}", tag="hst")]
                    if (u, rt) == (0, 3):
                        ops.append(Op(f"s_add_u32 s{sWp1b}, s{sWp1b}, 4096"))
                    return ops
                J(HREL[4 * u + rt], f)
        jobs.sort(key=lambda x: x[0])
        g = 0
        last_vm, bucket = -3, 0.0
        isfree = lambda gg: S.used(gg) == 1 and (gg % 16 != 15 or gg >= gp(111))
        for rel, f, name in jobs:
            ops = f()
            k = 0
            while k < len(ops):
                k2 = k
                while k2 < len(ops) and ops[k2].kind not in VM:
                    k2 += 1
                sal = ops[k:k2]
                if k2 == len(ops):
                    g = S.flow(sal, g + 1, S.n() - 1)[-1]
                    break
                tgt = max(rel, last_vm + A.vmin, int(bucket), g + (1 if sal else 0))
                while True:
                    while not isfree(tgt):
                        tgt += 1
                    lo = max(g, tgt - 14)
                    cand = [x for x in range(lo, tgt) if not S.nv[x]]
                    if len(cand) >= len(sal):
                        place = cand[len(cand) - len(sal):]
                        break
                    cap = []
                    for x in range(lo, tgt):
                        cap += [x] * max(0, 4 - S.used(x))
                    if len(cap) >= len(sal):
                        place = cap[len(cap) - len(sal):]
                        break
                    tgt += 1
                for o, x in zip(sal, place):
                    S.put(x, o)
                S.put(tgt, ops[k2])
                g = last_vm = tgt
                bucket = max(bucket, tgt - A.vburst) + A.vrate
                k = k2 + 1
            if name:
                pos[name] = last_vm
            if last_vm > rel + 40 and A.verbose:
                print(f"  job slipped: rel {rel/16:.1f} -> {last_vm/16:.1f}: {ops[-1].text}")
        if A.verbose:
            print("  job last positions:", {k: round(v / 16, 1) for k, v in pos.items()})
        assert pos["xnst"] < gp(5) and pos["x3"] < gp(75) and pos["bias"] < gp(31) and pos["w9"] < gp(72)
        for u in range(4):
            for rt in range(4):
                a0, a1 = self.acc(3, 2 * u, rt), self.acc(3, 2 * u + 1, rt)
                rel0 = gp(24 + 2 * u) + 4 * rt + 3 + 3
                rel1 = rel0 + 16
                dl = min(gp(32 + 2 * u) + 4 * rt - 2, pos[f"k{4 * u + rt}"] - 1)
                d = B2 + 16 * u + 4 * rt
                for (a, rel, o) in ((a0, rel0, 0), (a1, rel1, 2)):
                    ops = [f"v_mul_f32 v{a+i}, s{sSC}, v{a+i}" for i in range(4)]
                    ops += [f"v_cvt_pk_bf16_f32 v{d+o}, v{a}, v{a+1}", f"v_cvt_pk_bf16_f32 v{d+o+1}, v{a+2}, v{a+3}"]
                    S.flow(ops, rel, dl)
        for dt in range(8):
            for rt in range(4):
                a = self.acc(7, dt, rt)
                rel = max(gp(56 + dt) + 4 * rt + 3 + 3, pos[f"k{2 * dt + (rt >> 1)}"] + 1)
                dl = pos[f"v{2 * dt + (rt >> 1)}"] - 1
                dl = min(dl, gp(64 + dt) + 4 * rt - 2 if dt < 4 else gp(76))
                assert rel <= dl
                d = B2 + 8 * dt + 2 * rt
                S.flow([f"v_cvt_pk_bf16_f32 v{d}, v{a}, v{a+1}", f"v_cvt_pk_bf16_f32 v{d+1}, v{a+2}, v{a+3}"], rel, dl)
        for k in range(16):
            assert pos[f"v{k}"] < gp(96 + (k >> 2)) + 4 * (k & 3), k
        for c in range(4):
            b = BIAS + 4 * (c & 1)
            ops = []
            for i in range(2):
                ops += [f"v_lshlrev_b32 v{b+2*i}, 16, v{BIASR+2*c+i}", f"v_and_b32 v{b+2*i+1}, 0xffff0000, v{BIASR+2*c+i}"]
            S.flow(ops, gp(63 + c), gp(64 + c) - 2)
        T = []
        qtail = []
        qa = {}
        for u in range(4):
            n = 11 if u < 2 else 13
            for rt in range(4):
                d = Qf(rt, u)
                prev = None
                for half in range(2):
                    c = 2 * (u & 1) + half
                    a = self.acc(n, c, rt)
                    rel = gp(8 * n + 4 + c) + 4 * rt + 3 + 3
                    for h in range(2):
                        txt = f"v_cvt_pk_bf16_f32 v{d+2*half+h}, v{a+2*h}, v{a+2*h+1}"
                        if rel >= S.n():
                            qtail.append(txt)
                        else:
                            prev = Task(txt, rel, gp(104) if u < 2 else S.n() - 1, [(prev, 0)] if prev else [])
                            T.append(prev)
        free = [None] * 8
        k = 0
        for u in range(2):
            for rt in range(4):
                a0 = self.acc(9, 2 * u, rt)
                dl = HREL[4 * u + rt] - 1
                prevc = None
                for half in range(2):
                    a = self.acc(9, 2 * u + half, rt)
                    rel = gp(76 + 2 * u + half) + 4 * rt + 3 + 3
                    E = T0 + 4 * (k & 1)
                    k += 1
                    last = []
                    for i in range(4):
                        e = E + i
                        seq = [(f"v_mul_f32 v{e}, s{sL2E}, v{a+i}", 0), (f"v_exp_f32 v{e}, v{e}", 0), (f"v_add_f32 v{e}, 1.0, v{e}", 1),
                               (f"v_fma_f32 v{e}, v{e}, v{e}, 1.0", 0), (f"v_rcp_f32 v{e}, v{e}", 0), (f"v_fma_f32 v{e}, v{e}, -2.0, 1.0", 1),
                               (f"v_mul_f32 v{e}, v{e}, v{a+i}", 0)]
                        prev = free[e - T0]
                        for txt, dist in seq:
                            prev = Task(txt, rel, dl, [(prev, dist)] if prev else [])
                            T.append(prev)
                        last.append(prev)
                    for h in range(2):
                        pre = [(last[2 * h], 0), (last[2 * h + 1], 0)] + ([(prevc, 0)] if prevc else [])
                        prevc = Task(f"v_cvt_pk_bf16_f32 v{a0+2*half+h}, v{E+2*h}, v{E+2*h+1}", rel, dl, pre)
                        T.append(prevc)
                        free[E - T0 + 2 * h] = free[E - T0 + 2 * h + 1] = prevc
        schedule(S, T, start=gp(76))
        S.auto_lg_waits(lat=6, verbose=A.verbose)
        S.post += [Op("s_nop 7")] + [Op(x) for x in qtail]
        if A.verbose:
            print("  est cycles per stage:", [sum(4 * max(4, S.used(g)) for g in range(128 * n, 128 * n + 128)) for n in range(14)])
        return S

    def put_check(self, S, g, chk, br):
        while S.used(g) > 1 or S.used(g + 1) > 1 or g % 16 != 12:
            g += 1
        S.put(g, chk[0])
        S.put(g, chk[1])
        S.put(g + 1, br[0])
        S.put(g + 1, br[1])
        return g + 1


    def kv_dma(self, which, xr, creg, nreg, first=False):
        ring = KRING if which == "K" else VRING
        base = creg if (xr >> 1) % 2 == 0 else nreg
        so, r = (sKo, rK) if which == "K" else (sVo, rV)

        def wr(c):
            X = 2 * c["i"] + xr
            al = [(("C", k), (which, X), True) for k in range(4)] if which == "K" else [(("W", 1 + ((X & 3) >> 1)), (which, X), True)]
            return [((which, X & 3), (which, X), True)] + (al if X < 4 else [])
        ops = [Op(f"s_add_u32 m0, s{base}, {ring + (xr & 1) * 16384}")]
        for k in range(4):
            ops.append(Op(f"buffer_load_dwordx4 v{vL16}, {srd(r)}, s{so} offen offset:{k * 1024}{self.a.ld} lds", lds_wr=wr, after=which.lower()))
        ops.append(Op(f"s_add_u32 s{so}, s{so}, {KV_T}"))
        self.m0 = None
        return ops

    def k_read(self, xr, kt, u, names):
        a = names["Kc"] if (xr >> 1) % 2 == 0 else names["Kn"]
        return Op(f"ds_read_b128 {ar(aK + 16 * (kt & 1) + 4 * u)}, v{a} offset:{(xr & 1) * 16384 + kt * 4096 + u * 1024}",
                  lds_rd=lambda c: (("K", (2 * c["i"] + xr) & 3), ("K", 2 * c["i"] + xr), True))

    def v_read(self, xr, dt, kg, names):
        a = names["Vc"] if (xr >> 1) % 2 == 0 else names["Vn"]
        return Op(f"ds_read_b128 {ar(aV + 8 * (dt & 3) + 4 * kg)}, v{a} offset:{(xr & 1) * 16384 + dt * 2048 + kg * 1024}",
                  lds_rd=lambda c: (("V", (2 * c["i"] + xr) & 3), ("V", 2 * c["i"] + xr), True))

    def mask_ops(self, dst, z, kt, neg):
        ng = neg if isinstance(neg, list) else [neg] * 4
        m = ["vcc", f"s[{sMA}:{sMA+1}]", f"s[{sMB}:{sMB+1}]", "vcc"]
        cmp = lambda r: f"v_cmp_le_i32 {m[r]}, {16 * kt + r}, v{z}"
        cnd = lambda r: f"v_cndmask_b32 v{dst + r}, v{NINF}, v{ng[r]}, {m[r]}"
        return [cmp(0), cmp(1), cmp(2), cnd(0), cmp(3), cnd(1), cnd(2), cnd(3)]

    def att_regs_init(self):
        return [f"v_add_u32 v{vKc}, {KRING}, v{vL16}", f"v_add_u32 v{vKn}, {KRING + 32768}, v{vL16}",
                f"v_mov_b32 v{vVc}, v{vL16}", f"v_add_u32 v{vVn}, 32768, v{vL16}"]

    def att_sregs_init(self):
        return [f"s_lshl_b32 s{sMc}, s{sWv}, 12", f"s_add_u32 s{sMn}, s{sMc}, 32768",
                f"s_mov_b32 s{sKo}, s{sMc}", f"s_mov_b32 s{sVo}, s{sMc}", f"s_mov_b64 s[{sBad}:{sBad+1}], 0"]

    def first_k_reads(self):
        nm = dict(Kc=vKc, Kn=vKn, Vc=vVc, Vn=vVn)
        return [self.k_read(0, 0, u, nm) for u in range(4)] + [self.k_read(0, 1, u, nm) for u in range(2)]

    def extra_jobs(self, S, J, gp):
        if self.a.upto == "proj":
            return
        ops = [f"s_mul_i32 s{sTmp}, s{sH}, {KV_H}",
               f"s_lshl_b32 s{rK+2}, s{sJ}, 1", f"s_sub_u32 s{rK+2}, 32, s{rK+2}", f"s_mul_i32 s{rK+2}, s{rK+2}, {KV_T}",
               f"s_mov_b32 s{rV+2}, s{rK+2}", f"s_mov_b32 s{rV+3}, 0x20000",
               f"s_add_u32 s{sTmp}, s{sTmp}, {K_OFF}"]
        g = S.flow(ops + self.att_sregs_init()[:4], 16 * 66, 16 * 74)[-1]
        for (r, off) in ((rK, 0), (rV, V_OFF - K_OFF)):
            g += 1
            while S.used(g) > 1:
                g += 1
            if off:
                S.put(g, f"s_add_u32 s{sTmp}, s{sTmp}, {off}")
            S.put(g, f"s_add_u32 s{r}, s{pWS}, s{sTmp}")
            S.put(g, f"s_addc_u32 s{r+1}, s{pWS+1}, 0")
        S.flow(self.att_regs_init(), 16 * 75, 16 * 80)
        S.flow(self.att_sregs_init()[4:], 16 * 100, 16 * 104)
        ops = [
            f"v_bfe_u32 v{Z0}, v{vL16}, 4, 4", f"v_lshrrev_b32 v{Z1}, 8, v{vL16}", f"v_lshlrev_b32 v{Z1}, 2, v{Z1}",
            f"v_sub_u32 v{Z0}, v{Z0}, v{Z1}", f"v_lshlrev_b32 v{Zt}, 4, s{sWv}", f"v_sub_u32 v{Z1}, v{Z0}, v{Zt}",
            f"v_add_u32 v{Z1}, 48, v{Z1}", f"v_add_u32 v{Z0}, v{Z0}, v{Zt}", f"v_mov_b32 v{NINF}, 0xff800000",
            f"v_bfe_u32 v{vA}, v{vL16}, 2, 5",
            f"v_lshlrev_b32 v{Zt}, 7, s{sJ}", f"v_add_u32 v{Zt}, v{Zt}, v{Z0}"]
        S.flow(ops, 16 * 69, 16 * 76)
        S.flow([f"v_mov_b32 v{ZERO+i}, 0" for i in range(4)] + [f"v_mov_b32 v{ONES+i}, 0x3f803f80" for i in range(4)], 16 * 111, 16 * 112 - 1)
        ldt = f"buffer_load_dword v{vP}, v{vA}, {srd(rWS)}, s{sPollKV} offen sc1"
        ex = {("v", vA): f"v_bfe_u32 v{vA}, v{vL16}, 2, 5", ("s", sPollKV): f"s_add_u32 s{sPollKV}, s{sPollKV}, {FLAG_OFF}"}
        ld, chk, br = self.poll("k", ldt, f"v_cmp_eq_u32 vcc, 0, v{vP}", expect=ex, after="xn")
        J(gp(self.a.kv[0] - 5), lambda ld=ld: [ld])
        g = self.put_check(S, gp(self.a.kv[0] - 1), chk, br)
        for X in range(3):
            J(gp(self.a.kv[0] + self.a.kv[1] * X), lambda X=X: self.kv_dma("K", X, sMc, sMn))
        ld, chk, br = self.poll("v", ldt.replace("offen", "offen offset:32"), f"v_cmp_eq_u32 vcc, 0, v{vP}", expect=ex, after="xn")
        J(gp(self.a.kv[2] - 4), lambda ld=ld: [ld])
        g = self.put_check(S, gp(self.a.kv[2] - 1), chk, br)
        for X in range(2):
            J(gp(self.a.kv[2] + X), lambda X=X: self.kv_dma("V", X, sMc, sMn))
        for i, o in enumerate(self.first_k_reads()):
            S.put(16 * 111 + i, o)

    def rowmax_reduce(self):
        ops = []
        for sw in ("v_permlane16_swap_b32", "v_permlane32_swap_b32"):
            ops += [f"v_mov_b32 v{MX+4+t}, v{MX+t}" for t in range(4)]
            ops += [f"{sw} v{MX+t}, v{MX+4+t}" for t in range(4)]
            ops += [f"v_max_f32 v{MX+t}, v{MX+t}, v{MX+4+t}" for t in range(4)]
        return ops

    def prestep(self):
        S = Seg("prestep")
        S.pre.append(W(lg=True))
        for t in range(4):
            for u in range(4):
                S.mfma(f"{MF} {vr(SB+4*t)}, {ar(aK+4*u)}, {vr(Qf(t, u))}, {vr(SB+4*t) if u else 0}")
        for k in range(9):
            S.mfma(f"{MF32} {ar(16*k, 16)}, {vr(ZERO)}, {vr(ZERO)}, 0")
        S.flow(self.mask_ops(SB, Zt, 0, [SB, SB + 1, SB + 2, SB + 3]), 7, 15)
        ops = [f"v_max3_f32 v{MX+t}, v{SB+4*t}, v{SB+4*t+1}, v{SB+4*t+2}" for t in range(4)]
        ops += [f"v_max_f32 v{MX+t}, v{MX+t}, v{SB+4*t+3}" for t in range(4)]
        ops += self.rowmax_reduce()
        S.flow(ops, 17, 24)
        S.flow([f"v_mov_b32 v{vD}, 1"], 0, 6)
        self.p3_setup(S)
        G = Plain("att_go")
        e = G.e
        e("L_att_go:")
        for r in range(4):
            e(f"v_sub_f32 v{NEG3L+r}, 0, v{MX+3}")
        e(f"v_sub_f32 v{NEG0}, 0, v{MX}")
        for r in range(4):
            e(f"v_sub_f32 v{NEG[2]+r}, 0, v{MX+2}")
        rest = [f"v_sub_f32 v{NEG[t]+r}, 0, v{MX+t}" for t in (1, 3) for r in range(4)]
        for u in range(4):
            e(f"{MF} {vr(SB)}, {ar(aK+4*u)}, {vr(Qf(3, u))}, {vr(SB) if u else vr(NEG3L)}")
            e(rest[2 * u])
            e(rest[2 * u + 1])
        for kt in range(4):
            for o in self.mask_ops(BANK + 4 * kt, Zt, kt, NEG0):
                e(o)
        e(f"s_mov_b32 s{sCnt}, s{sJ}")
        return S, G

    def att_seg(self, name, Trel, qk, pv, bank_tile, look=True, flip=None, dma=True, bar=True, pvfirst=False, lfirst=False, extra=None):
        S = Seg(name)
        par = Trel & 1
        names = dict(Kc=vKc, Kn=vKn, Vc=vVc, Vn=vVn)
        if flip == 2:
            names = dict(Kc=vKn, Kn=vKc, Vc=vVn, Vn=vVc)
        na = len(qk)
        chains = [(kt, t) for kt in range(4) for t in qk]
        n = len(chains)
        dts = ([8] + list(range(8))) if lfirst else list(range(9))
        pvc = [(dt, t) for dt in dts for t in pv]
        M = len(pvc)
        nmu = max(n, 1)
        cstart, cend = {0: -100}, {0: -100}
        pstart, pend = {}, {}

        def qk_chain(i):
            if i == n:
                kt, t, c = 0, 3, NEG3L
            else:
                kt, t = chains[i]
                c = BANK + 4 * kt if t == bank_tile else NEG[t]
            d = SB + 4 * (i % 4)
            cstart[i] = S.n()
            for u in range(4):
                S.mfma(f"{MF} {vr(d)}, {ar(aK + 16 * (kt & 1) + 4 * u)}, {vr(Qf(t, u))}, {vr(d) if u else vr(c)}")
            cend[i] = S.n() - 1

        def pv_share(mu):
            for k in range(mu * M // nmu, (mu + 1) * M // nmu):
                dt, t = pvc[k]
                pstart.setdefault(dt, S.n())
                for kg in range(2):
                    if dt == 8:
                        d, a = ar(aL + 4 * t), vr(ONES)
                    else:
                        d, a = ar(aO + 32 * t + 4 * dt), ar(aV + 8 * (dt & 3) + 4 * kg)
                    S.mfma(f"{MF} {d}, {a}, {vr(Pf(1 - par, t, kg))}, {d}")
                pend[dt] = S.n() - 1
        for mu in range(nmu):
            if pvfirst:
                pv_share(mu)
            if n and (mu + 1 < n or look):
                qk_chain(mu + 1)
            if not pvfirst:
                pv_share(mu)
        N = S.n()
        T = []
        info = dict(cstart=cstart, cend=cend, pstart=pstart, pend=pend, N=N)
        tail = []
        for i in range(n):
            kt, t = chains[i]
            d = SB + 4 * (i % 4)
            rel = cend[i] + 3
            dl = cstart[i + 4] - 1 if (i + 4) in cstart else N - 1
            p = Pf(par, t, kt >> 1) + 2 * (kt & 1)
            if rel + 5 > N - 1:
                tail += ["s_nop 7"] + [f"v_exp_f32 v{d+r}, v{d+r}" for r in range(4)] + [f"v_cvt_pk_bf16_f32 v{p+h}, v{d+2*h}, v{d+2*h+1}" for h in range(2)]
                continue
            ex = []
            for r in range(4):
                ex.append(Task(f"v_exp_f32 v{d+r}, v{d+r}", rel, dl, [(ex[-1], 0)] if ex else []))
            T += ex
            for h in range(2):
                T.append(Task(f"v_cvt_pk_bf16_f32 v{p+h}, v{d+2*h}, v{d+2*h+1}", rel, dl, [(ex[2 * h + 1], 1)]))
        bg = None
        if bar:
            bg = cstart[3 * na] + 2
            S.put(bg, W(vm=True, lg=True))
            S.put(bg + 1, "s_barrier")
            bg += 1
        info["bar"] = bg
        lastk = None
        if n:
            for kt in range(1, 4):
                first = cstart[kt * na]
                free = cend[(kt - 1) * na - 1] if kt >= 2 else 0
                for u in range(2 if kt == 1 else 0, 4):
                    dl = first + u - LAT
                    if kt == 3 and bar:
                        dl = min(dl, bg - 1 - 5)
                    lastk = Task(self.k_read(Trel, kt, u, names), max(0, free - 3 + u), dl)
                    T.append(lastk)
            if look:
                for u in range(4):
                    T.append(Task(self.k_read(Trel + 1, 0, u, names), bg + 1, cstart[n] + u - LAT))
                for u in range(2):
                    T.append(Task(self.k_read(Trel + 1, 1, u, names), max(bg + 1, cend[n - 1] - 3 + u), N - 2 + u))
        if pv:
            for dt in range(1, 8):
                free = pend[dt - 4] if dt >= 4 else 0
                for kg in range(2):
                    T.append(Task(self.v_read(Trel - 1, dt, kg, names), free, pstart[dt] + kg - LAT))
        v0 = []
        if n:
            free = max(bg + 1, pend[4] if pv else 0)
            for kg in range(2):
                v0.append(Task(self.v_read(Trel, 0, kg, names), free, N + 4 + kg - LAT))
            T += v0
        if dma:
            prev = None
            for which, xr, lo, hi in (("K", Trel + 3, 1, bg - 2), ("V", Trel + 2, bg + 1, N - 2)):
                ops = self.kv_dma(which, xr, sMc, sMn)
                step = (hi - lo + 1) / 4
                m = Task(ops[0], lo - 1 if which == "K" else 0, int(lo + step - 2), [(prev, 0)] if prev else [])
                T.append(m)
                prev = m
                for k in range(4):
                    d = Task(ops[1 + k], int(lo + k * step), int(lo + (k + 1) * step - 1), [(prev, 1 if k == 0 else 3)])
                    T.append(d)
                    prev = d
                T.append(Task(ops[5], 0, N - 2, [(prev, 0)]))
                if which == "V":
                    info["vm0"] = m
        if flip == 1:
            T.append(Task(f"v_xor_b32 v{vVn}, 0x8000, v{vVn}", 0, N - 1))
            T.append(Task(f"v_xor_b32 v{vKc}, 0x8000, v{vKc}", bg, N - 1))
        if flip == 2:
            T.append(Task(f"v_xor_b32 v{vKn}, 0x8000, v{vKn}", 0, N - 1))
            T.append(Task(f"v_xor_b32 v{vVc}, 0x8000, v{vVc}", 0, bg))
            T.append(Task(f"s_xor_b32 s{sMn}, s{sMn}, 0x8000", 0, N - 2))
            T.append(Task(f"s_xor_b32 s{sMc}, s{sMc}, 0x8000", 0, N - 2, [(info["vm0"], 0)]))
        if extra:
            extra(S, T, info)
        schedule(S, T)
        inc = [("a", aK + 16 + r) for r in range(8)] + [("a", aV + r) for r in range(8)]
        S.auto_lg_waits(lat=5, incoming=inc, verbose=self.a.verbose)
        S.post += [Op(x) for x in tail]
        return S

    def chain_tasks(self, T, ops, rel, dl, after=None):
        prev = after
        for o in ops:
            t = Task(o, rel, dl, [(prev, 0)] if prev else [])
            T.append(t)
            prev = t
        return prev

    def bad_check(self, e, tiles):
        for k, t in enumerate(tiles):
            e(f"v_accvgpr_read_b32 v{ET+2*k}, a{aL+4*t}")
        e(f"v_add_f32 v{ET+3}, v{ET}, v{ET+2}")
        e(f"v_rcp_f32 v{ET}, v{ET}")
        e(f"v_cmp_ngt_f32 vcc, 0x5f800000, v{ET+3}")
        e(f"v_rcp_f32 v{ET+2}, v{ET+2}")
        e(f"s_or_b64 s[{sBad}:{sBad+1}], s[{sBad}:{sBad+1}], vcc")

    def epilogue(self, e, tiles):
        e(f"s_mul_i32 s{sTmp2}, s{sH}, {ACT_HD}")
        k = 0
        for ti, t in enumerate(tiles):
            e(f"s_add_u32 s{sTmp}, s{sTmp2}, s{sAct[t]}")
            for u in range(4):
                b = ET + 4
                o = ET + 12 + 4 * (k % 3)
                k += 1
                for i in range(8):
                    e(f"v_accvgpr_read_b32 v{b+i}, a{aO + 32*t + 8*u + i}")
                for i in range(4):
                    e(f"v_pk_mul_f32 {vr(b+2*i, 2)}, {vr(b+2*i, 2)}, {vr(ET+2*ti, 2)} op_sel_hi:[1,0]")
                for i in range(4):
                    e(f"v_cvt_pk_bf16_f32 v{o+i}, v{b+2*i}, v{b+2*i+1}")
                e(f"buffer_store_dwordx4 {vr(o)}, v{vL16}, {srd(rWS)}, s{sTmp} offen{self.a.st}", tag="cst")
                if u < 3:
                    e(f"s_add_u32 s{sTmp}, s{sTmp}, 4096")

    def attention(self):
        D, TH, SS, ONE = [3, 2, 1, 0], [3, 2, 1], [3, 2], [3]
        B = {}

        def x_d0(S, T, info):
            T.append(Task(Op(f"buffer_store_dword v{vD}, v{vSel0}, {srd(rWS)}, s{sFlagH} offen sc1", needs=[("hst", True)],
                             expect={("v", vD): f"v_mov_b32 v{vD}, 1", ("s", sFlagH): f"s_add_u32 s{sFlagH}, s{sFlagH}, {HFLAG_OFF}", ("v", vSel0): f"v_lshlrev_b32 v{vSel0}, 28, v0"}), info["bar"] + 1, info["N"] - 1))
            S.put(info["N"] - 1, f"s_cmp_eq_u32 s{sCnt}, 0")
        B["D0"] = self.att_seg("D0", 0, D, [], 0, extra=x_d0)
        B["D0"].post += [Op("s_cbranch_scc1 L_three"), Op(".p2align 4"), Op("L_dloop:")]
        B["Da"] = self.att_seg("Da", 1, D, D, 0, flip=1, extra=lambda S, T, i: S.put(i["N"] - 1, f"s_cmp_eq_u32 s{sCnt}, 1"))
        B["Da"].post += [Op("s_cbranch_scc1 L_dmask"), Op("L_dmask_back:")]

        def x_loop(S, T, info):
            T.append(Task(f"s_sub_u32 s{sCnt}, s{sCnt}, 1", 0, info["N"] - 2))
            S.put(info["N"] - 1, f"s_cmp_lg_u32 s{sCnt}, 0")
        B["Db"] = self.att_seg("Db", 2, D, D, 0, flip=2, extra=x_loop)
        B["Db"].post += [Op("s_cbranch_scc1 L_dloop"), Op("L_three:")]
        p = Plain("dmask")
        p.e("L_dmask:")
        for kt in range(4):
            for o in self.mask_ops(BANK + 4 * kt, Z0, kt, NEG0):
                p.e(o)
        p.e("s_branch L_dmask_back")
        self.ool.append(p)
        B["dmask"] = p

        def x_three(S, T, info):
            cs = info["cstart"]
            last = None
            last = self.chain_tasks(T, self.mask_ops(BANK, Z1, 0, NEG[1]), 0, cs[2] - 2, last)
            last = self.chain_tasks(T, [f"v_sub_u32 v{Zu}, 7, s{sJ}".replace("v_sub_u32", "v_sub_u32_e64"), f"v_lshlrev_b32 v{Zu}, 7, v{Zu}",
                                        f"v_add_u32 v{Zt}, v{Zu}, v{Z0}", f"v_add_u32 v{Zu}, v{Zu}, v{Z1}"], 0, cs[5], last)
            for kt in range(1, 4):
                last = self.chain_tasks(T, self.mask_ops(BANK + 4 * kt, Z1, kt, NEG[1]), 0, cs[3 * kt + 2] - 2, last)
            for kt in range(4):
                last = self.chain_tasks(T, self.mask_ops(BANK + 4 * kt, Zt, kt, NEG[2]), cs[3 * kt + 2] + 2, info["N"] - 2, last)
        B["T3"] = self.att_seg("T3", 1, TH, D, 1, flip=1, extra=x_three)

        def x_s3(S, T, info):
            last = self.chain_tasks(T, self.mask_ops(NEG3L, Zu, 0, NEG[3]), 0, info["cstart"][8] - 2)
            if self.a.upto == "full":
                self.p3_table(T, last, info["N"])
            T.append(Task(f"s_sub_u32 s{sCnt}, 7, s{sJ}", 0, info["N"] - 2))
        B["S3"] = self.att_seg("S3", 2, SS, TH, 2, flip=2, extra=x_s3)
        p = Plain("epiA")
        if self.a.otouch and self.a.upto == "full":
            p.e(f"s_lshl_b32 s{sTmp}, s{sB}, 2")
            p.e(f"s_add_u32 s{sTmp}, s{sTmp}, s{sWv}")
            p.e(f"s_lshl_b32 s{sTmp}, s{sTmp}, 13")
            p.e(f"v_lshl_add_u32 v{MX}, v{vL16}, 3, s{sTmp}")
            p.e(f"v_subrev_u32 v{MX+1}, {4 * MB}, v{MX}")
            p.e(f"buffer_load_dword v{MX+2}, v{MX}, {srd(rX)}, 0 offen")
            p.e(f"buffer_load_dword v{MX+2}, v{MX+1}, {srd(rW)}, 0 offen")
            p.e("s_nop 0")
        else:
            p.e("s_nop 7")
        self.bad_check(p.e, [0, 1])
        self.epilogue(p.e, [0, 1])
        for o in self.stamp_ops():
            p.e(o)
        p.e(f"s_cmp_eq_u32 s{sCnt}, 0")
        p.e("s_cbranch_scc1 L_one")
        p.e(".p2align 4")
        p.e("L_sloop:")
        B["epiA"] = p
        B["Sa"] = self.att_seg("Sa", 1, SS, SS, 2)
        B["Sb"] = self.att_seg("Sb", 2, SS, SS, 2)
        B["Sc"] = self.att_seg("Sc", 3, SS, SS, 2, extra=lambda S, T, i: S.put(i["N"] - 1, f"s_cmp_eq_u32 s{sCnt}, 1"))
        B["Sc"].post += [Op("s_cbranch_scc1 L_smask"), Op("L_smask_back:")]
        B["Sd"] = self.att_seg("Sd", 4, SS, SS, 2, extra=x_loop)
        B["Sd"].post += [Op("s_cbranch_scc1 L_sloop"), Op("L_one:")]
        p = Plain("smask")
        p.e("L_smask:")
        for kt in range(4):
            for o in self.mask_ops(BANK + 4 * kt, Z0, kt, NEG[2]):
                p.e(o)
        for o in self.mask_ops(NEG3L, Z1, 0, NEG[3]):
            p.e(o)
        p.e("s_branch L_smask_back")
        self.ool.append(p)
        B["smask"] = p

        def x_one(S, T, info):
            last = None
            for kt in range(1, 4):
                last = self.chain_tasks(T, self.mask_ops(BANK + 4 * kt, Z1, kt, NEG[3]), 0, info["cstart"][kt] - 2, last)
            self.one_extra(S, T, info, last)
        B["One"] = self.att_seg("One", 1, ONE, SS, 3, look=False, dma=False, pvfirst=True, extra=x_one)
        B["Dr"] = self.att_seg("Dr", 2, [], ONE, None, look=False, dma=False, bar=False, lfirst=True)
        B["Dr"].pre.insert(0, Op("s_nop 1"))
        p = Plain("check")
        e = p.e
        self.bad_check(e, [2, 3])
        e(f"s_cmp_lg_u64 s[{sBad}:{sBad+1}], 0")
        e(f"s_cselect_b32 s{sTmp}, 1, {1 if self.a.redo else 0}")
        e(f"s_andn2_b32 s{sTmp}, s{sTmp}, s{sFb}")
        e(f"s_lshl_b32 s{sTmp2}, s{sWv}, 2")
        e(f"s_add_u32 s{sTmp2}, s{sTmp2}, {SPARE}")
        e(f"v_mov_b32 v{ET+4}, s{sTmp2}")
        e(f"v_mov_b32 v{ET+5}, s{sTmp}")
        e(f"v_mov_b32 v{ET+6}, {SPARE}")
        e(f"ds_write_b32 v{ET+4}, v{ET+5}", lds_wr=lambda c: [(("F", 0), ("bad", c.get("fb")), True), (("W", 0), "bad", True)])
        e("s_waitcnt lgkmcnt(0)")
        e("s_barrier")
        e(f"ds_read_b128 {vr(ET+8)}, v{ET+6}", lds_rd=lambda c: (("F", 0), ("bad", c.get("fb")), True))
        B["check"] = p
        p = Plain("check2")
        e = p.e
        e(W(lg=True))
        e(f"v_or3_b32 v{ET+8}, v{ET+8}, v{ET+9}, v{ET+10}")
        e(f"v_or_b32 v{ET+8}, v{ET+8}, v{ET+11}")
        e(f"v_cmp_ne_u32 vcc, 0, v{ET+8}")
        e("s_nop 1")
        e("s_cbranch_vccnz L_fallback")
        B["check2"] = p
        B["fb"] = self.fallback()
        return B

    def fallback(self):
        p0, p1, p2 = Plain("fb0"), Plain("fb1"), Plain("fb2")
        e = p0.e
        e("L_fallback:")
        e(f"s_mov_b32 s{sFb}, 1")
        e("s_waitcnt vmcnt(0) lgkmcnt(0)")
        e("s_barrier")
        ZG = BANK
        e(f"s_lshl_b32 s{sTmp}, s{sJ}, 7")
        e(f"s_sub_u32 s{sTmp2}, {15 * 128}, s{sTmp}")
        e(f"v_add_u32 v{ZG}, s{sTmp}, v{Z0}")
        e(f"v_add_u32 v{ZG+1}, s{sTmp}, v{Z1}")
        e(f"v_add_u32 v{ZG+2}, s{sTmp2}, v{Z0}")
        e(f"v_add_u32 v{ZG+3}, s{sTmp2}, v{Z1}")
        e(f"v_add_u32 v{ZG+1}, 64, v{ZG+1}")
        e(f"v_add_u32 v{ZG+3}, 64, v{ZG+3}")
        e(f"v_mov_b32 v{Zt}, v{ZG}")
        for t in range(4):
            e(f"v_mov_b32 v{MX+t}, v{NINF}")
        e(f"s_mov_b32 s{sCnt}, 0")
        e(f"s_lshl_b32 s{sSpin}, s{sJ}, 3")
        e(f"s_sub_u32 s{sSpin}, 128, s{sSpin}")
        if self.a.redo:
            e(f"s_mov_b32 s{sSpin}, 1")
        e("L_fb_loop:")
        e = p1.e
        e(f"s_lshr_b32 s{sTmp}, s{sCnt}, 2")
        e(f"s_mul_i32 s{sTmp}, s{sTmp}, {KV_T}")
        e(f"s_and_b32 s{sTmp2}, s{sCnt}, 3")
        e(f"s_lshl_b32 s{sTmp2}, s{sTmp2}, 12")
        e(f"s_add_u32 s{sTmp}, s{sTmp}, s{sTmp2}")
        for u in range(4):
            e(f"buffer_load_dwordx4 {ar(aK+4*u)}, v{vL16}, {srd(rK)}, s{sTmp} offen offset:{u*1024} sc1")
        e("s_waitcnt vmcnt(0)")
        for t in range(4):
            for u in range(4):
                e(f"{MF} {vr(SB+4*t)}, {ar(aK+4*u)}, {vr(Qf(t, u))}, {vr(SB+4*t) if u else 0}")
        e("s_nop 7")
        for t in range(4):
            for o in self.mask_ops(SB + 4 * t, ZG + t, 0, [SB + 4 * t + r for r in range(4)]):
                e(o)
            e(f"v_max3_f32 v{MX+t}, v{MX+t}, v{SB+4*t}, v{SB+4*t+1}")
            e(f"v_max3_f32 v{MX+t}, v{MX+t}, v{SB+4*t+2}, v{SB+4*t+3}")
            e(f"v_subrev_u32 v{ZG+t}, 16, v{ZG+t}")
        e(f"s_add_u32 s{sCnt}, s{sCnt}, 1")
        e(f"s_cmp_lt_u32 s{sCnt}, s{sSpin}")
        e("s_cbranch_scc1 L_fb_loop")
        e = p2.e
        for o in self.rowmax_reduce() + self.att_regs_init() + self.att_sregs_init():
            e(o)
        for which, X in (("K", 0), ("K", 1), ("K", 2), ("V", 0), ("V", 1)):
            for o in self.pad_m0(self.kv_dma(which, X, sMc, sMn)):
                e(o)
        for k in range(9):
            e(f"{MF32} {ar(16*k, 16)}, {vr(ZERO)}, {vr(ZERO)}, 0")
        e("s_waitcnt vmcnt(0)")
        e("s_barrier")
        for o in self.first_k_reads():
            e(o)
        e("s_waitcnt lgkmcnt(0)")
        e("s_branch L_att_go")
        self.ool += [p0, p1, p2]
        return p0, p1, p2

    def att_trace(self, B, G, j, fb=0):
        tr = []
        add = lambda b, i: tr.extend((o, {"i": i, "fb": fb}) for o in b.linear())
        add(G, 0)
        add(B["D0"], 0)
        for i in range(j):
            add(B["Da"], i)
            if i == j - 1:
                add(B["dmask"], i)
            add(B["Db"], i)
        add(B["T3"], j)
        add(B["S3"], j)
        add(B["epiA"], j)
        i = j + 1
        for k in range(7 - j):
            for nm in ("Sa", "Sb", "Sc"):
                add(B[nm], i)
            if k == 6 - j:
                add(B["smask"], i)
            add(B["Sd"], i)
            i += 2
        add(B["One"], i)
        add(B["Dr"], i)
        add(B["check"], i)
        return tr

    def dump_q(self):
        p = Plain("dumpq")
        e = p.e
        e(f"s_lshl_b32 s{sTmp}, s{sB}, 2")
        e(f"s_add_u32 s{sTmp}, s{sTmp}, s{sWv}")
        e(f"s_lshl_b32 s{sTmp}, s{sTmp}, 14")
        e(f"s_add_u32 s{sTmp}, s{sTmp}, {QDUMP_OFF}")
        for u in range(4):
            for rt in range(4):
                e(f"buffer_store_dwordx4 {vr(Qf(rt, u))}, v{vL16}, {srd(rWS)}, s{sTmp} offen offset:{rt*1024}")
            e(f"s_add_u32 s{sTmp}, s{sTmp}, 4096")
        return p

    def dump_stamps(self):
        p = Plain("stamps")
        if self.a.stamps:
            p.e("s_waitcnt vmcnt(0)")
            for o in self.stamp_ops() + self.rt_ops(63):
                p.e(o)
            p.e(f"s_lshl_b32 s{sTmp}, s{sB}, 2")
            p.e(f"s_add_u32 s{sTmp}, s{sTmp}, s{sWv}")
            p.e(f"s_lshl_b32 s{sTmp}, s{sTmp}, 8")
            p.e(f"s_add_u32 s{sTmp}, s{sTmp}, {STAMP_OFF}")
            p.e(f"v_lshrrev_b32 v{vL16}, 2, v{vL16}")
            p.e(f"buffer_store_dword v{vSel0}, v{vL16}, {srd(rWS)}, s{sTmp} offen")
            if self.a.dbgout >= 0:
                p.e(f"v_readlane_b32 s{sTmp}, v{vSel0}, 1")
                p.e(f"s_memtime s[{sStamp}:{sStamp+1}]")
                p.e("s_waitcnt lgkmcnt(0)")
                p.e(f"v_readlane_b32 s{sTmp2}, v{vSel0}, 61")
                p.e("s_nop 1")
                p.e(f"s_sub_u32 s{sStamp}, s{sStamp}, s{sTmp2}")
                p.e(f"s_and_b32 s{sStamp}, s{sStamp}, 0x3fffffff")
                p.e(f"v_subrev_u32 v8, s{sTmp}, v{vSel0}")
                p.e(f"v_lshrrev_b32 v8, 2, v8")
                p.e(f"v_writelane_b32 v8, s{sStamp}, 1")
                p.e(f"s_lshl_b32 s{sTmp}, s{sB}, 2")
                p.e(f"s_add_u32 s{sTmp}, s{sTmp}, s{sWv}")
                p.e(f"s_cmp_eq_u32 s{sTmp}, {self.a.dbgout}")
                p.e(f"s_cselect_b32 s{rDBG+2}, 64, 0")
                p.e(f"s_mov_b32 s{sTmp}, 0x10000000")
                p.e(f"v_writelane_b32 v{vL16}, s{sTmp}, 0")
                p.e(f"buffer_store_dword v8, v{vL16}, {srd(rDBG)}, 0 offen")
        return p

    def build(self):
        pro = self.prologue()
        pj = self.proj()
        pj.post += self.stamp_ops()
        blocks = [pro, pj]
        end = Plain("end")
        lin = lambda bl, c={"i": 0}: [(o, c) for b in bl for o in b.linear()]
        if self.a.upto == "proj":
            blocks += [self.dump_q(), self.dump_stamps(), end]
            traces = [("main", lin(blocks))]
        else:
            S, G = self.prestep()
            for o in self.stamp_ops():
                G.e(o)
            B = self.attention()
            mid, tailb = self.tail(B)
            tailb += [self.dump_stamps(), end]
            blocks += [S, G] + [B[k] for k in ("D0", "Da", "Db", "T3", "S3", "epiA", "Sa", "Sb", "Sc", "Sd", "One", "Dr", "check")] + mid + tailb
            traces = []
            for j in range(8):
                traces.append((f"j{j}", lin([pro, pj, S]) + self.att_trace(B, G, j) + lin(mid) + lin(tailb)))
            f0, f1, f2 = B["fb"]
            for j in (0, 3, 7):
                traces.append((f"fb{j}", lin([pro, pj, S]) + self.att_trace(B, G, j) + lin(mid) + lin([f0, f1, f1, f2])
                               + self.att_trace(B, G, j, 1) + lin(mid, {"i": 0, "fb": 1}) + lin(tailb, {"i": 0, "fb": 1})))
        end.e("L_end:")
        end.e("s_endpgm")
        self.finish(blocks, traces)

    def p3_setup(self, S):
        t = ET
        sal = [f"s_and_b32 s{sRG}, s{sB}, 7", f"s_lshl_b32 s{sRG}, s{sRG}, 2", f"s_bfe_u32 s{sTmp}, s{sB}, 0x20003",
               f"s_add_u32 s{sRG}, s{sRG}, s{sTmp}", f"s_xor_b32 s{sCG}, s{sJ}, {self.a.cgx}", f"s_lshl_b32 s{sCG}, s{sCG}, 7",
               f"s_mul_i32 s{sActH}, s{sRG}, {ACT_RG}", f"s_mul_i32 s{sTmp}, s{sWv}, {8 * ACT_HD}",
               f"s_add_u32 s{sActC}, s{sActH}, s{sTmp}", f"s_mul_i32 s{sTmp}, s{sWv}, {14 * 4096}",
               f"s_add_u32 s{sActH}, s{sActH}, s{sTmp}", f"s_add_u32 s{sActH}, s{sActH}, {ACT_OFF + ACT_HOFF}",
               f"s_add_u32 s{sActC}, s{sActC}, {ACT_OFF}",
               f"s_mul_i32 s{sW2b}, s{sWv}, {14 * 32768}", f"s_add_u32 s{sW2b}, s{sW2b}, s{sCG}",
               f"s_lshl_b32 s{sWob}, s{sWv}, 20", f"s_add_u32 s{sWob}, s{sWob}, s{sCG}",
               f"s_lshl_b32 s{sM0p}, s{sWv}, 15",
               f"s_lshr_b32 s{sTmp}, s{sRG}, 1", f"s_sub_u32 s{sTmp2}, 15, s{sTmp}", f"s_min_u32 s{sTmp}, s{sTmp}, s{sTmp2}",
               f"s_lshl_b32 s{sPollH}, s{sTmp}, 7", f"s_add_u32 s{sPollH}, s{sPollH}, {HFLAG_OFF}",
               f"s_lshl_b32 s{sTmp}, s{sTmp}, 2", f"s_add_u32 s{sTmp}, s{sTmp}, s{sWv}", f"s_lshl_b32 s{sTmp}, s{sTmp}, 7",
               f"s_add_u32 s{sTmp}, s{sTmp}, {CFLAG_OFF}",
               f"s_mov_b32 s{rW}, s{pW2}", f"s_mov_b32 s{rW+1}, s{pW2+1}", f"s_mov_b32 s{rW+2}, {1792 * 1024}",
               f"s_mov_b32 s{rX}, s{pWO}", f"s_mov_b32 s{rX+1}, s{pWO+1}", f"s_mov_b32 s{rX+2}, {4 * MB}",
               f"s_mov_b32 s{rH}, s{pOUT}", f"s_mov_b32 s{rH+1}, s{pOUT+1}", f"s_mov_b32 s{rH+2}, {2 * MB}"]
        g = S.flow(sal, 0, 23)[-1]
        S.put(24, f"s_add_u32 s{sPollC}, s{pWS}, s{sTmp}")
        S.put(24, f"s_addc_u32 s{sPollC+1}, s{pWS+1}, 0")
        val = [f"v_lshrrev_b32 v{t}, 9, v{vL16}", f"v_lshlrev_b32 v{t}, 10, v{t}", f"v_lshlrev_b32 v{t+1}, 15, s{sWv}",
               f"v_sub_u32 v{t}, v{t+1}, v{t}"]
        val += [f"v_add_u32 v{vR[c]}, v{vWRa[c]}, v{t}" for c in range(4)]
        val += [f"v_lshrrev_b32 v{t}, 7, v{vL16}", f"v_and_b32 v{t+1}, 0x7f, v{vW8}", f"v_lshl_add_u32 v{vDm[0]}, v{t}, 10, v{t+1}"]
        val += [f"v_add_u32 v{vDm[i]}, {7168 * i}, v{vDm[0]}" for i in range(1, 4)]
        val += [f"v_lshl_add_u32 v{vAo[0]}, s{sWv}, 10, v{vL16}"]
        for k in range(1, 4):
            val += [f"v_add_u32 v{vAo[k]}, {1024 * k}, v{vAo[0]}", f"v_and_b32 v{vAo[k]}, 0xfff, v{vAo[k]}"]
        val += [f"v_bfe_u32 v{vA}, v{vL16}, 2, 7"]
        S.flow(val, 0, 24)

    def p3_table(self, T, last, N):
        t = ET
        s1 = self.chain_tasks(T, [f"s_xor_b32 s{sTmp}, s{sRG}, s{sJ}", f"s_and_b32 s{sTmp}, s{sTmp}, {self.a.pmask}",
                                  f"s_and_b32 s{sTmp2}, s{sTmp}, 1", f"s_mul_i32 s{sSpin}, s{sWv}, {self.a.pshift}"], 0, 20)
        m = f"s[{sMA}:{sMA+1}]"
        ops = [f"v_lshrrev_b32 v{t}, 4, v{vL16}",
               f"v_add_u32 v{t+1}, s{sSpin}, v{t}",
               f"v_cmp_le_i32 vcc, 14, v{t+1}",
               f"v_subrev_u32 v{t+2}, 14, v{t+1}",
               f"v_cmp_le_i32 {m}, 14, v{t}",
               f"v_cndmask_b32 v{t+1}, v{t+1}, v{t+2}, vcc",
               f"v_cmp_le_i32 vcc, 12, v{t+1}",
               f"v_xor_b32 v{t+3}, s{sTmp}, v{t+1}",
               f"v_xor_b32 v{t+1}, s{sTmp2}, v{t+1}",
               f"v_cndmask_b32 v{t+1}, v{t+3}, v{t+1}, vcc",
               f"v_xor_b32 v{t+2}, s{sTmp}, v{t+2}",
               f"v_and_b32 v{t+2}, 31, v{t+2}",
               f"v_lshl_add_u32 v{t+3}, v{t+1}, 15, s{sW2b}",
               f"v_lshl_add_u32 v{t+4}, v{t+2}, 15, s{sWob}",
               f"v_cndmask_b32 v{vTW}, v{t+3}, v{t+4}, {m}",
               f"v_lshl_add_u32 v{t+3}, v{t+1}, 12, s{sActH}",
               f"v_lshl_add_u32 v{t+4}, v{t+2}, 12, s{sActC}",
               f"v_lshrrev_b32 v{t+2}, 2, v{t+2}",
               f"v_mul_u32_u24 v{t+2}, {ACT_HD - 16384}, v{t+2}",
               f"v_add_u32 v{t+4}, v{t+4}, v{t+2}",
               f"v_cndmask_b32 v{vTA}, v{t+3}, v{t+4}, {m}"]
        self.chain_tasks(T, ops, 21, N - 1, last)

    def p3_off(self, ks):
        return [Op(f"v_readlane_b32 s{sT[2 * (ks & 1)]}, v{vTW}, {ks}"), Op(f"v_readlane_b32 s{sT[2 * (ks & 1) + 1]}, v{vTA}, {ks}")]

    def p3_w(self, ks):
        ops = []
        if ks == 14:
            ops += [Op(f"s_mov_b32 s{rW}, s{pWO}"), Op(f"s_mov_b32 s{rW+1}, s{pWO+1}"), Op(f"s_mov_b32 s{rW+2}, {4 * MB}")]
        ops.append(Op(f"s_add_u32 m0, s{sM0p}, {(ks & 7) * 4096}"))

        def wr(c):
            al = [((w, k), ("P", ks), True) for w in "KV" for k in range(4)] if ks < 8 else []
            return [(("P", ks & 7), ("P", ks, c.get("fb")), False)] + al
        for i in range(4):
            ops.append(Op(f"buffer_load_dwordx4 v{vDm[i]}, {srd(rW)}, s{sT[2 * (ks & 1)]} offen offset:{i * 1024} lds", lds_wr=wr))
        return ops

    def p3_a(self, ks):
        return [Op(f"buffer_load_dwordx4 {vr(AR + 16 * (ks & 7) + 4 * k)}, v{vAo[k]}, {srd(rWS)}, s{sT[2 * (ks & 1) + 1]} offen{self.a.ld}",
                   after="h" if ks < 14 else "c", expect={("s", sT[2 * (ks & 1) + 1]): f"v_readlane_b32 s{sT[2 * (ks & 1) + 1]}, v{vTA}, {ks}"})
                for k in range(4)]

    def p3_reads(self, ks):
        ops = []
        for c in range(4):
            for hh in range(2):
                ops.append(Op(f"ds_read_b64_tr_b16 {vr(WF2 + 16 * (ks & 1) + 4 * c + 2 * hh, 2)}, v{vR[c]} offset:{(ks & 7) * 4096 + hh * 2048}",
                              lds_rd=lambda cx: (("P", ks & 7), ("P", ks, cx.get("fb")), False)))
        return ops

    def one_extra(self, S, T, info, last):
        if self.a.upto == "attn":
            return
        ld, chk, br = self.poll("h", f"buffer_load_dword v{vP}, v{vA}, {srd(rWS)}, s{sPollH} offen sc1", f"v_cmp_eq_u32 vcc, 0, v{vP}",
                                expect={("v", vA): f"v_bfe_u32 v{vA}, v{vL16}, 2, 7", ("s", sPollH): f"s_add_u32 s{sPollH}, s{sPollH}, {HFLAG_OFF}"})
        T.append(Task(ld, 8, 20))
        if self.a.ct3:
            val, ops = self.code_touch(MX + 3, MX + 4, 1024)
            l0 = self.chain_tasks(T, val, 0, 24)
            l1 = Task(ops[0], 0, 26)
            T += [l1, Task(ops[1], 0, 28, [(l0, 1), (l1, 0)])]
        if self.a.t3:
            last = self.chain_tasks(T, [f"s_lshr_b32 s{sKo}, s{sB}, 3", f"s_mul_i32 s{sVo}, s{sKo}, {14 * 1024}",
                                        f"s_mul_i32 s{sTmp}, s{sWv}, {14 * 32768}", f"s_add_u32 s{sVo}, s{sVo}, s{sTmp}",
                                        f"s_sub_u32 s{sTmp}, 384, s{pW2}", f"s_and_b32 s{sTmp}, s{sTmp}, 0x380", f"s_add_u32 s{sVo}, s{sVo}, s{sTmp}",
                                        f"s_lshl_b32 s{sKo}, s{sKo}, 13", f"s_lshl_b32 s{sTmp}, s{sWv}, 20", f"s_add_u32 s{sKo}, s{sKo}, s{sTmp}",
                                        f"s_sub_u32 s{sTmp}, 384, s{pWO}", f"s_and_b32 s{sTmp}, s{sTmp}, 0x380", f"s_add_u32 s{sKo}, s{sKo}, s{sTmp}"], 0, 30)
            l2 = self.chain_tasks(T, [f"v_min_u32 v{MX}, {13 * 16}, v{vL16}", f"v_lshlrev_b32 v{MX}, 6, v{MX}",
                                      f"v_and_b32 v{MX+1}, {7 * 16}, v{vL16}", f"v_lshlrev_b32 v{MX+1}, 6, v{MX+1}"], 0, 30)
            T.append(Task(f"buffer_load_dword v{MX+2}, v{MX}, {srd(rW)}, s{sVo} offen", 0, 40, [(last, 1), (l2, 1)]))
        self.hpoll = chk + [Op("s_nop 0")] + br

    def tail(self, B):
        if self.a.upto == "attn":
            p = Plain("epiB")
            for o in self.stamp_ops():
                p.e(o)
            self.epilogue(p.e, [2, 3])
            return [B["check2"]], [p]
        PD = self.a.pd
        m = Plain("p3pre0")
        for o in self.p3_off(0) + self.p3_off(1) + self.hpoll + self.pad_m0(self.p3_w(0)):
            m.e(o)
        p = Plain("p3pre")
        e = p.e
        for o in self.stamp_ops():
            e(o)
        lds = self.p3_a(0)
        for ks in range(1, PD):
            lds += self.p3_off(ks + 1) + self.pad_m0(self.p3_w(ks)) + self.p3_a(ks)
        ep = Plain("tmp")
        self.epilogue(ep.e, [2, 3])
        li = [0]

        def take(n):
            while li[0] < len(lds) and n > 0:
                o = lds[li[0]]
                e(o)
                li[0] += 1
                if o.kind in VM:
                    n -= 1
        take(4)
        k = 0
        for o in ep.ops:
            e(o)
            k += 1
            if k % self.a.epistep == 0:
                take(1)
        take(1000)
        sel = ET + 4
        e(f"v_min_u32 v{Zt}, 1, v{vL16}")
        e(f"v_lshlrev_b32 v{Zt}, 28, v{Zt}")
        e(f"v_bfe_u32 v{Zu}, v{vL16}, 4, 4")
        e(f"v_lshlrev_b32 v{Zu}, 10, v{Zu}")
        e(f"v_lshrrev_b32 v{vA}, 8, v{vL16}")
        e(f"v_lshl_add_u32 v{Zu}, v{vA}, 3, v{Zu}")
        e(f"s_lshl_b32 s{sRG}, s{sRG}, 16")
        e(f"s_lshl_b32 s{sTmp}, s{sWv}, 14")
        e(f"s_add_u32 s{sRG}, s{sRG}, s{sTmp}")
        e(f"s_add_u32 s{sRG}, s{sRG}, s{sCG}")
        for o in self.stamp_ops():
            e(o)
        e(W(vm=True))
        for o in self.p3_reads(0):
            e(o)
        for o in self.p3_off(PD + 1) + self.pad_m0(self.p3_w(PD)) + self.p3_a(PD):
            e(o)
        e(W(lg=True))
        S = Seg("p3")
        NK = 46
        for ks in range(NK):
            for c in range(4):
                for k in range(4):
                    d = ar(16 * k + 4 * c)
                    S.mfma(f"{MF} {d}, {vr(WF2 + 16 * (ks & 1) + 4 * c)}, {vr(AR + 16 * (ks & 7) + 4 * k)}, {d if ks else 0}")
        XR = B2 + 32
        for ks in range(NK):
            g0 = 16 * ks
            if ks + 1 < NK:
                S.put(g0, W(vm=True))
                for i, o in enumerate(self.p3_reads(ks + 1)):
                    S.put(g0 + [0, 1, 3, 4, 6, 7, 9, 10][i], o)
            ops = []
            kn = ks + PD + 1
            if ks == PD - 1:
                ops += [Op(f"buffer_atomic_add v{vD}, v{Zt}, {srd(rWS)}, s{sFlagC} offen sc1", needs=[("cst", False)],
                           expect={("v", vD): f"v_mov_b32 v{vD}, 1", ("v", Zt): f"v_lshlrev_b32 v{Zt}, 28, v{Zt}",
                                   ("s", sFlagC): f"s_add_u32 s{sFlagC}, s{sFlagC}, {CFLAG_OFF}"})]
            if kn < NK:
                ops += self.p3_w(kn)
                if kn == 14:
                    keep = lambda l: [setattr(o, "kind", "salu" if o.kind == "valu" else o.kind) or o for o in l]
                    ops += keep(self.stamp_ops()) if self.a.p3stamps else []
                    ops += [Op(f"s_cmp_lt_u32 s{sSpin}, 32", expect={("s", sSpin): f"s_load_dword s{sSpin}, s[{sPollC}:{sPollC+1}], 0x0 glc",
                                                                     ("s", sPollC): f"s_add_u32 s{sPollC}, s{pWS}, s{sTmp}"}),
                            Op("s_cbranch_scc1 L_spin_c"), Op("L_back_c:")]
                    ops += keep(self.stamp_ops()) if self.a.p3stamps else []
                if kn in (6, 22, 30, 38) and self.a.p3stamps:
                    keep = lambda l: [setattr(o, "kind", "salu" if o.kind == "valu" else o.kind) or o for o in l]
                    ops += keep(self.stamp_ops())
                ops += self.p3_a(kn)
            if self.a.t3 and kn + self.a.t3 in (14, 22, 30, 38):
                ops += [Op(f"buffer_load_dword v{MX+2}, v{MX+1}, {srd(rX)}, s{sKo} offen"), Op(f"s_add_u32 s{sKo}, s{sKo}, {256 * 1024}")]
            if ks == NK - PD - 1:
                ops += [Op(f"s_mov_b32 s{rX}, s{pX}"), Op(f"s_mov_b32 s{rX+1}, s{pX+1}"), Op(f"s_mov_b32 s{rX+2}, {2 * MB}")]
                ops += [Op(f"buffer_load_dwordx2 {vr(XR + 2 * c, 2)}, v{Zu}, {srd(rX)}, s{sRG} offen offset:{32 * c}") for c in range(4)]
            S.flow(ops, g0 + 1, g0 + 15)
            if kn + 1 < NK:
                S.flow(self.p3_off(kn + 1), g0 + 3, g0 + 10)
            if kn == 13:
                S.put(g0 + 11, f"s_load_dword s{sSpin}, s[{sPollC}:{sPollC+1}], 0x0 glc", front=True)
                S.put(g0 + 15, "s_waitcnt lgkmcnt(0)")
            elif ks + 1 < NK:
                S.put(g0 + 15, W(lg=True))
        q = Plain("spin_c")
        q.e("L_spin_c:")
        q.e(f"s_mov_b32 s{sCnt}, 0")
        q.e("L_spin2_c:")
        q.e(f"s_load_dword s{sSpin}, s[{sPollC}:{sPollC+1}], 0x0 glc")
        q.e(f"s_add_u32 s{sCnt}, s{sCnt}, 1")
        q.e(f"s_cmp_gt_u32 s{sCnt}, 400000")
        q.e("s_waitcnt lgkmcnt(0)")
        q.e("s_cbranch_scc1 L_back_c")
        q.e(f"s_cmp_lt_u32 s{sSpin}, 32")
        q.e("s_cbranch_scc0 L_back_c")
        q.e("s_sleep 2")
        q.e("s_branch L_spin2_c")
        self.ool.append(q)
        f = Plain("final")
        e = f.e
        for o in self.stamp_ops():
            e(o)
        a0 = AR
        e(f"v_add_u32 v{a0}, s{sM0p}, v{vL16}")
        for k in range(1, 4):
            e(f"v_subrev_u32 v{a0+k}, {32768 * k}, v{a0}")
            e(f"v_and_b32 v{a0+k}, 0x1ffff, v{a0+k}")
        e("s_nop 3")
        for k in range(1, 4):
            for c in range(4):
                e(f"ds_write_b128 v{a0}, {ar(16 * k + 4 * c)} offset:{k * 4096 + c * 1024}", lds_wr=(("P", k), "red", False))
        O = AR + 16
        for i in range(16):
            e(f"v_accvgpr_read_b32 v{O+i}, a{i}")
        e(W(vm=True))
        U = AR + 32
        for i in range(8):
            e(f"v_lshlrev_b32 v{U+2*i}, 16, v{XR+i}")
            e(f"v_and_b32 v{U+2*i+1}, 0xffff0000, v{XR+i}")
        for i in range(8):
            e(f"v_pk_add_f32 {vr(O+2*i, 2)}, {vr(O+2*i, 2)}, {vr(U+2*i, 2)}")
        e(W(lg=True))
        e("s_barrier")
        R = AR + 48
        for c in range(4):
            for k in range(1, 4):
                e(f"ds_read_b128 {vr(R + 16 * (k - 1) + 4 * c)}, v{a0+k} offset:{k * 4096 + c * 1024}", lds_rd=(("P", k), "red", True))
        for c in range(4):
            e(W(lg=True))
            for k in range(3):
                for h in range(2):
                    e(f"v_pk_add_f32 {vr(O+4*c+2*h, 2)}, {vr(O+4*c+2*h, 2)}, {vr(R+16*k+4*c+2*h, 2)}")
            for h in range(2):
                e(f"v_cvt_pk_bf16_f32 v{U+2*c+h}, v{O+4*c+2*h}, v{O+4*c+2*h+1}")
            e(f"buffer_store_dwordx2 {vr(U+2*c, 2)}, v{Zu}, {srd(rH)}, s{sRG} offen offset:{32 * c}")
        return [m, B["check2"]], [p, S, f]

    def finish(self, blocks, traces):
        for it in range(2):
            for name, tr in traces:
                Tracer(name, tr).run(resolve=True)
        soft = 0
        for name, tr in traces:
            T = Tracer(name, tr)
            T.run(resolve=False)
            soft += T.hazards()
            T.intent()
        for b in blocks:
            n = b.n() if isinstance(b, Seg) else 0
            print(f"  block {b.name:12s} mfma={n:5d} est.cycles={b.cycles():6d}" + (f" (ideal {16*n})" if n else ""))
        print("  mfma distances satisfied by pipe timing only:", soft, " stamps:", self.nstamp)
        hdr = open(self.a.ref).read().split("; Override launch")[0]
        out = [hdr.rstrip("\n"),
               "; generated by gen/gen.py (hand-written generator)",
               f"; @launch grid=(256,1,1) block=(256,1,1) lds={LDS_BYTES}",
               '.amdgcn_target "amdgcn-amd-amdhsa--gfx950"', ".text", f".globl {NAME}_kernel", ".p2align 8",
               f".type {NAME}_kernel,@function", f"{NAME}_kernel:"]
        for b in blocks + self.ool:
            out.append(f"; ---- {b.name} ----")
            for o in b.linear():
                t = o.render()
                out.append(t if o.kind == "label" else " " + t)
        out += ["L_code_end:", " s_endpgm"]
        out += ['.section .rodata,"a"', ".p2align 6", f".amdhsa_kernel {NAME}_kernel",
                "  .amdhsa_next_free_vgpr 512", "  .amdhsa_next_free_sgpr 102", "  .amdhsa_accum_offset 256",
                "  .amdhsa_group_segment_fixed_size 0", "  .amdhsa_kernarg_size 104", "  .amdhsa_user_sgpr_count 2",
                "  .amdhsa_user_sgpr_kernarg_segment_ptr 1", "  .amdhsa_system_sgpr_workgroup_id_x 1", ".end_amdhsa_kernel", ""]
        open(self.a.out, "w").write("\n".join(out))


def args():
    ap = argparse.ArgumentParser()
    ap.add_argument("--out", default="k.s")
    ap.add_argument("--ref", default=f"cdna_kernels/{NAME}.s.ref")
    ap.add_argument("--upto", default="full")
    ap.add_argument("--stamps", action="store_true")
    ap.add_argument("--finestamps", action="store_true")
    ap.add_argument("--wld", default="")
    ap.add_argument("--tld", default="")
    ap.add_argument("--prostamps", action="store_true")
    ap.add_argument("--rmask", type=int, default=3)
    ap.add_argument("--jmask", type=int, default=7)
    ap.add_argument("--ctouch", type=int, default=1)
    ap.add_argument("--wtouch", type=int, default=1)
    ap.add_argument("--otouch", type=int, default=1)
    ap.add_argument("--quick", type=int, default=4)
    ap.add_argument("--pd", type=int, default=3)
    ap.add_argument("--win1", type=int, default=0)
    ap.add_argument("--xld", default=" nt")
    ap.add_argument("--lead", default=" nt")
    ap.add_argument("--t23", default="")
    fl = lambda x: [float(v) for v in x.split(",")]
    ap.add_argument("--tg", type=fl, default=fl("21.5,25.5,26,21"))
    ap.add_argument("--w1early", type=int, default=5)
    ap.add_argument("--lite", action="store_true")
    ap.add_argument("--tlb", type=int, default=1)
    ap.add_argument("--redo", action="store_true")
    ap.add_argument("--dbgout", type=int, default=-1)
    ap.add_argument("--ct2", type=fl, default=fl("44,92"))
    ap.add_argument("--ct3", type=int, default=1)
    ap.add_argument("--t3", type=int, default=6)
    ap.add_argument("--tnt", type=fl, default=fl("0,0,0"))
    ap.add_argument("--clead", type=float, default=4.5)
    ap.add_argument("--wlead", type=float, default=3)
    ap.add_argument("--wstart", type=fl, default=fl("19,23,31,39,47,55,63,71,79,87"))
    ap.add_argument("--wstep", type=fl, default=fl("0.3,0.3,1,1,1,1,1,1,1,1"))
    ap.add_argument("--kst", type=fl, default=fl("35,1.35"))
    ap.add_argument("--vst", type=fl, default=fl("70.5,1.2"))
    ap.add_argument("--hst", type=fl, default=fl("84,3.6"))
    ap.add_argument("--xn", type=fl, default=fl("40,0.5"))
    ap.add_argument("--kv", type=fl, default=fl("96,3,109"))
    ap.add_argument("--kflag", type=int, default=8)
    ap.add_argument("--vflag", type=int, default=11)
    ap.add_argument("--vmin", type=int, default=3)
    ap.add_argument("--vrate", type=float, default=4.4)
    ap.add_argument("--vburst", type=float, default=6)
    ap.add_argument("--rt", action="store_true")
    ap.add_argument("--p3stamps", action="store_true")
    ap.add_argument("--cgx", type=int, default=0)
    ap.add_argument("--pmask", type=int, default=3)
    ap.add_argument("--pshift", type=int, default=0)
    ap.add_argument("--epistep", type=int, default=12)
    ap.add_argument("--verbose", action="store_true")
    ap.add_argument("--ld", default=" sc1")
    ap.add_argument("--st", default=" sc1")
    return ap.parse_args()


if __name__ == "__main__":
    Gen(args()).build()
```

```python
import sys, struct, argparse
from fw import *

NAME = "parallel_sum__compressed_kv_cla__dense_activation_mish__prompt"
MB = 1 << 20
KB = 1024
XN_RT = 17 * KB
KV_T = 17 * KB
KV_H = 32 * KV_T + 5 * KB
ACT_HD = 17 * KB
ACT_HOFF = 32 * ACT_HD
ACT_RG = ACT_HOFF + 56 * 4096 + 5 * KB
XN_OFF = 0
K_OFF = 3 * MB
V_OFF = 21 * MB + 10 * KB
ACT_OFF = 39 * MB
FLAG_OFF = 66 * MB
HFLAG_OFF = FLAG_OFF + 4096
CFLAG_OFF = FLAG_OFF + 5120
STAMP_OFF = 68 * MB
QDUMP_OFF = 72 * MB
WS_BYTES = 256 * MB

SLOT = [128 * 1024, 0, 32 * 1024]
CST = 64 * 1024
VRING = 0
KRING = 64 * 1024
SPARE = 128 * 1024
LDS_BYTES = 160 * 1024


def f32(x):
    return "0x%08x" % struct.unpack("<I", struct.pack("<f", x))[0]


LOG2E = 1.4426950408889634
SCALE = LOG2E * 128 ** -0.5

pX, pC, pWQ, pWK, pWV, pWO, pBX, pW1, pB1, pW2, pOUT, pDBG, pWS = [4 + 2 * i for i in range(13)]
rW, rC, rWS, rH, rDBG, rX, rV = 32, 36, 40, 44, 48, 52, 56
rK = rC
sB = 2
sWv, sH, sJ = 60, 61, 62
sWp8, sWp1 = 63, 64
sT = [65, 66, 67, 68]
sCb = 69
sM0c, sM0w = 70, 71
sKVst = 72
sRT = [73, 74, 75, 76]
sAct = [77, 78, 79, 80]
sFlagKV, sFlagH, sFlagC = 81, 82, 83
sSC = 84
sTmp, sTmp2 = 85, 86
sSpin = 87
sBad = 88
sKo, sVo = 90, 91
sMc, sMn = 92, 93
sCnt = 94
sFb = 95
sStamp = 96
sMask = 98
sPollKV = 3
sL2E = 30
sWp1b = 31
sPC = 16
sKa, sKb, sVa, sVb = 98, 99, 100, 101
sM0j = 88
sR = 89


def srd(r):
    return f"s[{r}:{r+3}]"


def vr(b, n=4):
    return f"v[{b}:{b+n-1}]" if n > 1 else f"v{b}"


def ar(b, n=4):
    return f"a[{b}:{b+n-1}]" if n > 1 else f"a{b}"


vSel0 = 0
vL16 = 1
vW8, vW1 = 2, 3
vCD = [4, 5]
vCR = [6, 7]
vWRa = [8, 9, 10, 11]
vWRb = [12, 13, 14, 15]
B0, B1, B2 = 16, 80, 144
WF = 208
T0 = 240

MF = "v_mfma_f32_16x16x32_bf16"
MF32 = "v_mfma_f32_32x32x16_bf16"
vKc, vKn, vVc, vVn = 4, 5, 6, 7
SB = B2
BANK = B2 + 16
NEG = {1: B2 + 32, 2: B2 + 36, 3: B2 + 40}
NEG3L = B2 + 44
NEG0 = B2 + 48
MX = B2 + 52
ZERO, ONES = WF, WF + 4
ET = WF + 8
Z0, Z1, NINF, vP, vA, vD, Zt, Zu = [T0 + 8 + i for i in range(8)]
aO, aL, aK, aV = 0, 128, 144, 176
sMA, sMB = 98, 100
LAT = 7
vR = [8, 9, 10, 11]
vDm = [12, 13, 14, 15]
vAo = [B2 + 60 + i for i in range(4)]
AR = B0
WF2 = B2
sRG, sCG = sRT[0], sRT[1]
sActH, sActC = sRT[2], sRT[3]
sW2b, sWob = sWp8, sWp1
sM0p = sCb
sPollH = sKVst
sPollC = 70
vTA, vTW = 2, 3


def Qf(t, u):
    return B1 + 32 * (u & 1) + 16 * (u >> 1) + 4 * t


def Pf(par, t, kg):
    return B0 + 32 * par + 8 * t + 4 * kg


def negsrc(t):
    return NEG0 if t == 0 else NEG[t]


class Gen:
    def __init__(self, a):
        self.a = a
        self.blocks = []
        self.ool = []
        self.nstamp = 0
        self.rot = 0
        self.m0 = None
        self.nct = 0

    def st(self):
        self.rot = (self.rot + 1) % 4
        return sT[self.rot]

    def stamp_ops(self):
        if not self.a.stamps or self.a.lite:
            return []
        i = self.nstamp
        self.nstamp += 1
        if self.a.rt:
            return [Op(f"s_memrealtime s[{sStamp}:{sStamp+1}]"), Op("s_waitcnt lgkmcnt(0)"), Op(f"s_mul_i32 s{sStamp}, s{sStamp}, 4"),
                    Op(f"s_bitset1_b32 s{sStamp}, 31"), Op(f"s_bitset0_b32 s{sStamp}, 30"),
                    Op(f"v_writelane_b32 v{vSel0}, s{sStamp}, {i + 1}")]
        return [Op(f"s_memtime s[{sStamp}:{sStamp+1}]"), Op("s_waitcnt lgkmcnt(0)"),
                Op(f"s_bitset1_b32 s{sStamp}, 31"), Op(f"s_bitset0_b32 s{sStamp}, 30"), Op(f"s_bitset0_b32 s{sStamp}, 0"), Op(f"s_bitset0_b32 s{sStamp}, 1"),
                Op(f"v_writelane_b32 v{vSel0}, s{sStamp}, {i + 1}")]

    def hold_ops(self, where):
        if self.a.hold != where:
            return []
        L = [f"v_readlane_b32 s{sSpin}, v{vSel0}, 62", "L_hold:", f"s_memrealtime s[{sStamp}:{sStamp+1}]", "s_waitcnt lgkmcnt(0)",
             f"s_lshl_b32 s{sStamp}, s{sStamp}, 2", f"s_sub_u32 s{sStamp}, s{sStamp}, s{sSpin}", f"s_and_b32 s{sStamp}, s{sStamp}, 0x3fffffff",
             f"s_cmp_lt_u32 s{sStamp}, 40000", "s_cbranch_scc1 L_hold"]
        return [Op(x) for x in L]

    def rt_ops(self, lane):
        if not self.a.stamps:
            return []
        return [Op(f"s_memrealtime s[{sStamp}:{sStamp+1}]"), Op("s_waitcnt lgkmcnt(0)"), Op(f"s_lshl_b32 s{sStamp}, s{sStamp}, 2"),
                Op(f"s_bitset1_b32 s{sStamp}, 31"), Op(f"s_bitset0_b32 s{sStamp}, 30"),
                Op(f"v_writelane_b32 v{vSel0}, s{sStamp}, {lane}")]

    def set_m0(self, text):
        if text == self.m0:
            return []
        self.m0 = text
        return [Op(text)]

    def mk_srd(self, e, r, p, nbytes):
        e(f"s_mov_b32 s{r}, s{p}")
        e(f"s_mov_b32 s{r+1}, s{p+1}")
        e(f"s_mov_b32 s{r+2}, {nbytes}")
        e(f"s_mov_b32 s{r+3}, 0x20000")

    def w_dma(self, n, i):
        slot = (n + 2) % 3
        ops = []
        if i == 0 and n in (4, 8, 10):
            p = {4: pWV, 8: pW1, 10: pWQ}[n]
            ops += [Op(f"s_mov_b32 s{rW}, s{p}"), Op(f"s_mov_b32 s{rW+1}, s{p+1}")]
            if n == 8:
                ops.append(Op(f"s_min_u32 s{rW+2}, s{rH+2}, {512*3584}"))
            if n == 10:
                s = self.st()
                ops += [Op(f"s_mov_b32 s{rW+2}, {4*MB}"), Op(f"s_lshr_b32 s{s}, s{sR}, 1"), Op(f"s_lshl_b32 s{s}, s{s}, 18"),
                        Op(f"s_xor_b32 s{sWp8}, s{sWp8}, s{s}"), Op(f"s_lshr_b32 s{s}, s{sWv}, 1"),
                        Op(f"s_mul_i32 s{s}, s{s}, {(1 << 20) + (1 << 7)}"), Op(f"s_xor_b32 s{sWp8}, s{sWp8}, s{s}")]
        s = self.st()
        wr = [(("W", slot), ("W", n), True)]
        if n == 2:
            wr += [(("X", 0), ("W", n), False), (("X", 1), ("W", n), False)]
        if n in (8, 9):
            ops += self.set_m0(f"s_add_u32 m0, s{sM0w}, {SLOT[slot] + (i >> 2) * 4096}")
            off = (n - 8) * 256 * 3584 + (16 * ((i >> 1) & 1) + 4 * (i & 1)) * 3584 - (i & 3) * 1024
            ops.append(Op(f"s_add_u32 s{s}, s{sWp1b if i >> 2 else sWp1}, {off}"))
            ops.append(Op(f"buffer_load_dwordx4 v{vW1}, {srd(rW)}, s{s} offen offset:{(i & 3) * 1024}{self.a.wld} lds", lds_wr=wr))
        else:
            base = (n % 4) << 20 if n < 8 else ((n & 1) << 21) + (((n - 10) >> 1) << 7)
            ops += self.set_m0(f"s_xor_b32 m0, s{sM0j}, {SLOT[slot] + i * 1024}")
            ops.append(Op(f"s_xor_b32 s{s}, s{sWp8}, {base + (16 * (i >> 1) + 4 * (i & 1)) * 8192}"))
            fl = self.a.lead if (i == 0 and n < 2) else self.a.wld
            ops.append(Op(f"buffer_load_dwordx4 v{vW8}, {srd(rW)}, s{s} offen{fl} lds", lds_wr=wr))
        return ops

    def c_region(self, u):
        if u < 4:
            return ("C", u)
        if u == 4:
            return ("X", 1)
        return ("C", (u - 5) % 4)

    def c_dma(self, u):
        kq, p0, p1 = u >> 2, u & 1, (u >> 1) & 1
        reg = self.c_region(u)
        s, s2 = self.st(), self.st()
        if reg[0] == "C":
            m = f"s_add_u32 m0, s{sM0c}, {CST + reg[1] * 4096}"
        else:
            m = f"s_add_u32 m0, s{sM0w}, {SLOT[1] + reg[1] * 4096}"
        ops = self.set_m0(m)
        ops += [Op(f"s_xor_b32 s{s}, s{sCb}, {(p1 << 15) + (kq << 8) + (p0 << 7)}"), Op(f"s_add_u32 s{s2}, s{s}, 14336")]
        for q in range(4):
            ops.append(Op(f"buffer_load_dwordx4 v{vCD[q & 1]}, {srd(rC)}, s{s2 if q >> 1 else s} offen offset:{q * 1024} lds",
                          lds_wr=(reg, ("c", u), False)))
        return ops

    def c_reads(self, u):
        kq, p0, p1 = u >> 2, u & 1, (u >> 1) & 1
        reg = self.c_region(u)
        ops = []
        for t in range(2):
            for sb in range(2):
                a = vCR[sb] if reg[0] == "C" else T0 + 14 + sb
                ops.append(Op(f"ds_read_b128 {ar(64*kq + 16*(2*p1 + t) + 4*(2*p0 + sb))}, v{a} offset:{reg[1] * 4096 + t * 2048}",
                              lds_rd=(reg, ("c", u), False)))
        return ops

    def w_reads(self, G):
        n, gi = G >> 3, G & 7
        slot = (n + 2) % 3
        hf, c4 = gi >> 2, gi & 3
        a = (vWRb if slot == 0 else vWRa)[c4]
        base = (0 if slot == 0 else SLOT[slot]) + hf * 16384
        ops = []
        for s in range(4):
            for hh in range(2):
                d = WF + 16 * (G & 1) + 4 * s + 2 * hh
                ops.append(Op(f"ds_read_b64_tr_b16 {vr(d, 2)}, v{a} offset:{base + s * 4096 + hh * 1024}",
                              lds_rd=(("W", slot), ("W", n), True)))
        return ops

    def code_touch(self, vt, vd, skip):
        self.nct += 1
        lab = f"L_pc{self.nct}"
        val = [f"v_lshrrev_b32 v{vt}, 9, v{vL16}", f"v_lshlrev_b32 v{vt}, 14, v{vt}", f"v_lshl_add_u32 v{vt}, s{sWv}, 7, v{vt}",
               f"v_lshrrev_b32 v{vd}, 3, s{sB}", f"v_lshl_add_u32 v{vt}, v{vd}, 9, v{vt}", f"v_add_u32 v{vt}, {skip}, v{vt}",
               f"v_min_u32 v{vt}, L_code_end-{lab}-4, v{vt}"]
        o = Op(f"s_getpc_b64 s[{sPC}:{sPC+1}]")
        o.text += f"\n{lab}:"
        return val, [o, Op(f"global_load_dword v{vd}, v{vt}, s[{sPC}:{sPC+1}]")]

    def pad_m0(self, ops):
        out = []
        for o in ops:
            if o.kind == "dma" and out and ("s", "m0") in out[-1].writes:
                out.append(Op("s_nop 0"))
            out.append(o)
        return out

    def poll(self, name, load_text, cmp_text, expect=None, after=None):
        p = Plain("spin_" + name)
        p.e(f"L_spin_{name}:")
        p.e(f"s_mov_b32 s{sSpin}, 0")
        p.e(f"L_spin2_{name}:")
        p.e("s_sleep 4")
        p.e(load_text)
        p.e(f"s_add_u32 s{sSpin}, s{sSpin}, 1")
        p.e(f"s_cmp_gt_u32 s{sSpin}, 200000")
        p.e("s_waitcnt vmcnt(0)")
        p.e(f"s_cbranch_scc1 L_back_{name}")
        p.e(cmp_text)
        p.e("s_nop 1")
        p.e(f"s_cbranch_vccnz L_spin2_{name}")
        p.e(f"s_branch L_back_{name}")
        self.ool.append(p)
        return (Op(load_text, expect=expect, after=after), [W(vm=True), Op(cmp_text, expect={("v", vP): load_text})],
                [Op(f"s_cbranch_vccnz L_spin_{name}", expect=expect), Op(f"L_back_{name}:")])

    def prologue(self):
        p = Plain("prologue")
        e = p.e
        e(f"s_cmp_ge_u32 s{sB}, 256")
        e("s_cbranch_scc1 L_end")
        e("s_load_dwordx16 s[4:19], s[0:1], 0")
        e("s_load_dwordx8 s[20:27], s[0:1], 64")
        e("s_load_dwordx2 s[28:29], s[0:1], 96")
        if self.a.tlb:
            e(f"s_bfe_u32 s90, s{sB}, 0x40003")
            e("s_min_u32 s90, s90, 11")
            e("s_lshl_b32 s91, s90, 3")
            e("s_load_dwordx2 s[92:93], s[0:1], s91")
        t = T0
        if self.a.ctouch:
            e(f"s_getpc_b64 s[{sStamp}:{sStamp+1}]")
            e("L_pc:")
            e(f"s_lshr_b32 s{sTmp}, s{sB}, 3")
            e(f"s_lshl_b32 s{sTmp}, s{sTmp}, 9")
            e(f"v_and_b32 v{t+6}, 7, v0")
            e(f"v_lshl_add_u32 v{t+11}, v{t+6}, 14, s{sTmp}")
            e(f"v_and_b32 v{t+6}, 0xc0, v0")
            e(f"v_lshl_add_u32 v{t+11}, v{t+6}, 1, v{t+11}")
            e(f"v_min_u32 v{t+11}, L_code_end-L_pc-4, v{t+11}")
            e(f"global_load_dword v{B2+63}, v{t+11}, s[{sStamp}:{sStamp+1}]")
        e(f"v_lshrrev_b32 v{t}, 6, v0")
        e(f"v_and_b32 v{t+1}, 63, v0")
        e(f"v_readfirstlane_b32 s{sWv}, v{t}")
        e(f"v_lshlrev_b32 v{vL16}, 4, v{t+1}")
        e(f"v_min_u32 v0, 1, v0")
        e(f"v_lshlrev_b32 v{vSel0}, 28, v0")
        for o in self.rt_ops(62) + self.stamp_ops():
            e(o)
        if self.a.dbgout >= 0:
            for x in (f"s_memtime s[{sStamp}:{sStamp+1}]", "s_waitcnt lgkmcnt(0)", f"s_bitset1_b32 s{sStamp}, 31", f"s_bitset0_b32 s{sStamp}, 30",
                      f"s_bitset0_b32 s{sStamp}, 0", f"s_bitset0_b32 s{sStamp}, 1", f"v_writelane_b32 v{vSel0}, s{sStamp}, 61"):
                e(x)
        e(f"s_and_b32 s{sH}, s{sB}, 7")
        e(f"s_lshl_b32 s{sH}, s{sH}, 2")
        e(f"s_bfe_u32 s{sTmp}, s{sB}, 0x20003")
        e(f"s_add_u32 s{sH}, s{sH}, s{sTmp}")
        e(f"s_lshr_b32 s{sJ}, s{sB}, 5")
        e(f"v_and_b32 v{t+2}, 31, v{t+1}")
        e(f"v_lshrrev_b32 v{t+3}, 5, v{t+1}")
        e(f"v_lshlrev_b32 v{t+4}, 10, v{t+3}")
        e(f"v_lshl_add_u32 v{t+4}, v{t+2}, 4, v{t+4}")
        e(f"s_lshl_b32 s{sTmp}, s{sB}, 13")
        e(f"s_lshl_b32 s{sTmp2}, s{sWv}, 11")
        e(f"s_add_u32 s{sTmp}, s{sTmp}, s{sTmp2}")
        e(f"v_lshrrev_b32 v{t+5}, 3, v{t+1}")
        e(f"v_and_b32 v{t+6}, 7, v{t+1}")
        e(f"v_lshrrev_b32 v{t+7}, 4, v{t+1}")
        e(f"v_xor_b32 v{t+8}, v{t+6}, v{t+7}")
        e(f"v_lshlrev_b32 v{t+8}, 4, v{t+8}")
        e(f"v_lshl_add_u32 v{vCD[0]}, v{t+5}, 10, v{t+8}")
        e(f"v_xor_b32 v{vCD[1]}, 64, v{vCD[0]}")
        e(f"v_add_u32 v{vCD[1]}, {8192 - 1024}, v{vCD[1]}")
        e(f"s_lshl_b32 s{sCb}, s{sJ}, 18")
        e(f"s_lshl_b32 s{sTmp2}, s{sWv}, 16")
        e(f"s_add_u32 s{sCb}, s{sCb}, s{sTmp2}")
        e(f"s_and_b32 s{sR}, s{sH}, {self.a.rmask}")
        e(f"s_mul_i32 s{sTmp2}, s{sR}, {(1 << 14) + (1 << 7)}")
        e(f"s_and_b32 s{sTmp2}, s{sTmp2}, {(1 << 15) + (1 << 7)}")
        e(f"s_add_u32 s{sCb}, s{sCb}, s{sTmp2}")
        e(f"s_lshl_b32 s{sM0c}, s{sWv}, 14")
        e(f"s_lshl_b32 s{sM0w}, s{sWv}, 13")
        e(f"s_and_b32 s{sSpin}, s{sJ}, {self.a.jmask}")
        e(f"s_lshl_b32 s{sM0j}, s{sSpin}, 10")
        e(f"s_add_u32 s{sM0j}, s{sM0j}, s{sM0w}")
        e(f"v_and_b32 v{t+9}, 3, v{t+5}")
        e(f"v_lshl_add_u32 v{t+9}, v{t+3}, 3, v{t+9}")
        e(f"v_lshlrev_b32 v{t+10}, 1, v{t+7}")
        e(f"v_xor_b32 v{t+10}, v{t+10}, v{t+6}")
        e(f"v_lshlrev_b32 v{t+10}, 4, v{t+10}")
        e(f"v_lshl_add_u32 v{vW8}, v{t+9}, 13, v{t+10}")
        e(f"v_mul_u32_u24 v{vW1}, 3584, v{t+9}")
        e(f"v_add_u32 v{vW1}, v{vW1}, v{t+10}")
        e(f"s_xor_b32 s{sWp8}, s{sWv}, s{sR}")
        e(f"s_and_b32 s{sWp8}, s{sWp8}, 1")
        e(f"s_lshl_b32 s{sWp8}, s{sWp8}, 19")
        e(f"s_and_b32 s{sTmp2}, s{sSpin}, 1")
        e(f"s_lshl_b32 s{sTmp2}, s{sTmp2}, 15")
        e(f"s_add_u32 s{sWp8}, s{sWp8}, s{sTmp2}")
        e(f"s_lshr_b32 s{sTmp2}, s{sSpin}, 1")
        e(f"s_lshl_b32 s{sTmp2}, s{sTmp2}, 17")
        e(f"s_add_u32 s{sWp8}, s{sWp8}, s{sTmp2}")
        e(f"s_lshr_b32 s{sTmp2}, s{sWv}, 1")
        e(f"s_lshl_b32 s{sTmp2}, s{sTmp2}, 7")
        e(f"s_add_u32 s{sWp8}, s{sWp8}, s{sTmp2}")
        e(f"s_lshl_b32 s{sTmp2}, s{sH}, 8")
        e(f"s_add_u32 s{sWp8}, s{sWp8}, s{sTmp2}")
        e("s_waitcnt lgkmcnt(0)")
        ps = lambda: [e(o) for o in (self.stamp_ops() if self.a.prostamps else [])]
        ps()
        self.mk_srd(e, rX, pX, 2 * MB)
        X = B2
        e(f"buffer_load_dwordx4 {vr(X)}, v{t+4}, {srd(rX)}, s{sTmp} offen{self.a.xld}")
        e(f"buffer_load_dwordx4 {vr(X+4)}, v{t+4}, {srd(rX)}, s{sTmp} offen offset:512{self.a.xld}")
        self.mk_srd(e, rC, pC, 2 * MB)
        self.mk_srd(e, rW, pWK, 4 * MB)
        if self.a.win1:
            e(f"s_lshl_b32 s{sTmp}, s{sJ}, 5")
            e(f"s_add_u32 s{sTmp}, s{sTmp}, s{sH}")
            e(f"s_lshl_b32 s{sTmp}, s{sTmp}, 2")
            e(f"s_add_u32 s{sTmp}, s{sTmp}, s{sWv}")
            e(f"s_lshl_b32 s{sTmp}, s{sTmp}, 11")
            e(f"v_and_b32 v{t+11}, 15, v{t+1}")
            e(f"v_lshlrev_b32 v{t+11}, 7, v{t+11}")
            e(f"buffer_load_dword v{B2+62}, v{t+11}, {srd(rC)}, s{sTmp} offen")
            for o in self.pad_m0(self.w_dma(0, 0) + self.w_dma(1, 0)):
                e(o)
            e(f"v_and_b32 v{t+11}, 1, v{t+1}")
            e(f"v_lshlrev_b32 v{t+11}, 20, v{t+11}")
            e(f"v_lshl_add_u32 v{t+11}, v{t+9}, 13, v{t+11}")
            e(f"s_add_u32 s{sTmp}, s{sWp8}, {2 << 20}")
            e(f"buffer_load_dword v{B2+61}, v{t+11}, {srd(rW)}, s{sTmp} offen{self.a.t23}")
            later = [lambda: self.c_dma(0), lambda: self.c_dma(1)]
        else:
            for o in self.pad_m0(self.w_dma(0, 0) + self.c_dma(0)):
                e(o)
            later = [lambda: self.c_dma(1)]
        later += [lambda i=i: self.w_dma(0, i) for i in range(1, 4)] + [lambda: self.c_dma(2)]
        later += [lambda i=i: self.w_dma(0, i) for i in range(4, 8)] + [lambda: self.c_dma(3)]
        if self.a.tlb:
            e("s_sub_u32 s90, s90, 2")
            e("s_cmp_lt_u32 s90, 4")
            e(f"s_cselect_b32 s90, s{sB}, 0")
            e("s_and_b32 s90, s90, 128")
            e("s_lshl_b32 s90, s90, 14")
            e("s_add_u32 s92, s92, s90")
            e("s_addc_u32 s93, s93, 0")
            e("s_load_dword s94, s[92:93], 0x0")
            e(f"s_lshr_b32 s90, s{sB}, 3")
            e(f"s_mul_i32 s91, s90, {ACT_RG}")
            e(f"s_add_u32 s91, s91, {ACT_OFF + ACT_RG - 1024}")
            e(f"s_mul_i32 s98, s{sH}, {KV_H}")
            e(f"s_mul_i32 s99, s{sJ}, {4 * KV_T}")
            e("s_add_u32 s98, s98, s99")
            e(f"s_add_u32 s99, s98, {V_OFF + 16384}")
            e(f"s_add_u32 s98, s98, {K_OFF + 16384}")
            e(f"s_mul_i32 s90, s90, {4 * XN_RT}")
            e(f"s_add_u32 s90, s90, {XN_OFF + 3 * XN_RT + 16384}")
            e(f"s_cmp_eq_u32 s{sWv}, 1")
            e("s_cselect_b32 s91, s98, s91")
            e(f"s_cmp_eq_u32 s{sWv}, 2")
            e("s_cselect_b32 s91, s99, s91")
            e(f"s_cmp_eq_u32 s{sWv}, 3")
            e("s_cselect_b32 s91, s90, s91")
            e(f"s_add_u32 s90, s{pWS}, s91")
            e(f"s_addc_u32 s91, s{pWS+1}, 0")
            e("s_load_dword s87, s[90:91], 0x0")
        for o in self.stamp_ops():
            e(o)
        mark = len(p.ops)
        self.mk_srd(e, rWS, pWS, WS_BYTES)
        self.mk_srd(e, rDBG, pDBG, 256)
        self.mk_srd(e, rH, pWS, WS_BYTES)
        e(f"s_cmp_lt_u32 s{sH}, 28")
        e(f"s_cselect_b32 s{rH+2}, s{rH+2}, 0")
        e(f"s_lshl_b32 s{sPollKV}, s{sH}, 7")
        e(f"s_add_u32 s{sPollKV}, s{sPollKV}, {FLAG_OFF}")
        e(f"s_lshl_b32 s{sTmp}, s{sJ}, 2")
        e(f"s_add_u32 s{sFlagKV}, s{sPollKV}, s{sTmp}")
        e(f"s_lshl_b32 s{sTmp}, s{sJ}, 5")
        e(f"s_add_u32 s{sTmp}, s{sTmp}, s{sH}")
        e(f"s_lshl_b32 s{sFlagH}, s{sTmp}, 2")
        e(f"s_add_u32 s{sFlagH}, s{sFlagH}, {HFLAG_OFF}")
        e(f"s_lshr_b32 s{sTmp}, s{sTmp}, 3")
        e(f"s_lshl_b32 s{sFlagC}, s{sTmp}, 7")
        e(f"s_add_u32 s{sFlagC}, s{sFlagC}, {CFLAG_OFF}")
        e(f"s_cmp_lt_u32 s{sB}, 72")
        e(f"s_cselect_b32 s{sTmp}, s{sWv}, 1")
        e(f"v_or_b32 v{t+11}, s{sTmp}, v{t+3}")
        e(f"v_lshlrev_b32 v{t+11}, 28, v{t+11}")
        e(f"v_lshl_add_u32 v{t+11}, v{t+2}, 2, v{t+11}")
        e(f"v_mov_b32 v{t+12}, 0")
        e(f"s_lshl_b32 s{sTmp}, s{sB}, 7")
        e(f"s_add_u32 s{sTmp}, s{sTmp}, {FLAG_OFF}")
        e(f"buffer_store_dword v{t+12}, v{t+11}, {srd(rWS)}, s{sTmp} offen sc1", tag="clr")
        e(f"s_and_b32 s{sTmp}, s{sR}, 1")
        e(f"s_xor_b32 s{sTmp}, s{sTmp}, s{sWv}")
        e(f"s_mul_i32 s{sWp1}, s{sTmp}, {64 * 3584}")
        e(f"s_lshl_b32 s{sTmp}, s{sH}, 7")
        e(f"s_add_u32 s{sWp1}, s{sWp1}, s{sTmp}")
        e(f"s_lshr_b32 s{sTmp}, s{sR}, 1")
        e(f"s_mul_i32 s{sTmp}, s{sTmp}, {32 * 3584}")
        e(f"s_sub_u32 s{sWp1b}, s{sWp1}, s{sTmp}")
        e(f"s_add_u32 s{sWp1b}, s{sWp1b}, {32 * 3584}")
        e(f"s_add_u32 s{sWp1}, s{sWp1}, s{sTmp}")
        e(f"s_mul_i32 s{sKVst}, s{sH}, {KV_H}")
        e(f"s_lshl_b32 s{sTmp}, s{sJ}, 2")
        e(f"s_add_u32 s{sTmp}, s{sTmp}, s{sWv}")
        e(f"s_mul_i32 s{sTmp}, s{sTmp}, {KV_T}")
        e(f"s_add_u32 s{sKVst}, s{sKVst}, s{sTmp}")
        e(f"s_lshr_b32 s{sTmp}, s{sR}, 1")
        e(f"s_lshl_b32 s{sTmp2}, s{sTmp}, 13")
        e(f"s_add_u32 s{sKa}, s{sKVst}, s{sTmp2}")
        e(f"s_sub_u32 s{sKb}, s{sKVst}, s{sTmp2}")
        e(f"s_lshl_b32 s{sTmp2}, s{sTmp}, 10")
        e(f"s_add_u32 s{sVa}, s{sKVst}, s{sTmp2}")
        e(f"s_sub_u32 s{sVb}, s{sKVst}, s{sTmp2}")
        e(f"s_lshl_b32 s{sTmp}, s{sJ}, 3")
        e(f"s_add_u32 s{sRT[0]}, s{sTmp}, s{sWv}")
        e(f"s_sub_u32 s{sRT[1]}, s{sTmp}, s{sWv}")
        e(f"s_add_u32 s{sRT[1]}, s{sRT[1]}, 7")
        e(f"s_sub_u32 s{sRT[2]}, 127, s{sRT[1]}")
        e(f"s_sub_u32 s{sRT[3]}, 127, s{sRT[0]}")
        for i in range(4):
            e(f"s_lshr_b32 s{sTmp}, s{sRT[i]}, 2")
            e(f"s_mul_i32 s{sAct[i]}, s{sTmp}, {ACT_RG}")
            e(f"s_and_b32 s{sTmp}, s{sRT[i]}, 3")
            e(f"s_lshl_b32 s{sTmp}, s{sTmp}, 10")
            e(f"s_add_u32 s{sAct[i]}, s{sAct[i]}, s{sTmp}")
            e(f"s_add_u32 s{sAct[i]}, s{sAct[i]}, {ACT_OFF}")
            e(f"s_mul_i32 s{sRT[i]}, s{sRT[i]}, {XN_RT}")
        e(f"s_mov_b32 s{sSC}, {f32(SCALE)}")
        e(f"s_mov_b32 s{sL2E}, {f32(LOG2E)}")
        e(f"s_mov_b32 s{sFb}, 0")
        e(f"v_and_b32 v{t+11}, 15, v{t+1}")
        e(f"v_lshrrev_b32 v{t+12}, 1, v{t+11}")
        e(f"v_xor_b32 v{t+12}, v{t+12}, v{t+7}")
        e(f"v_lshlrev_b32 v{t+12}, 4, v{t+12}")
        e(f"v_lshl_add_u32 v{t+12}, v{t+11}, 7, v{t+12}")
        e(f"v_xor_b32 v{t+13}, 64, v{t+12}")
        e(f"s_add_u32 s{sTmp}, s{sM0c}, {CST}")
        e(f"v_add_u32 v{vCR[0]}, s{sTmp}, v{t+12}")
        e(f"v_add_u32 v{vCR[1]}, s{sTmp}, v{t+13}")
        e(f"v_add_u32 v{t+14}, s{sM0w}, v{t+12}")
        e(f"v_add_u32 v{t+15}, s{sM0w}, v{t+13}")
        e(f"v_bfe_u32 v{t+12}, v{t+1}, 2, 3")
        e(f"v_lshlrev_b32 v{t+13}, 7, v{t+12}")
        e(f"v_lshl_add_u32 v{t+13}, v{t+3}, 11, v{t+13}")
        e(f"v_and_b32 v{t+11}, 3, v{t+1}")
        e(f"v_lshl_add_u32 v{t+13}, v{t+11}, 3, v{t+13}")
        e(f"v_lshrrev_b32 v{t+12}, 1, v{t+12}")
        e(f"v_lshl_add_u32 v{vWRa[0]}, v{t+12}, 5, v{t+13}")
        for c in range(1, 4):
            e(f"v_xor_b32 v{vWRa[c]}, {c * 32}, v{vWRa[0]}")
        for c in range(4):
            e(f"v_add_u32 v{vWRb[c]}, {SLOT[0]}, v{vWRa[c]}")
        e(f"v_lshrrev_b32 v{t+12}, 4, v{t+2}")
        e(f"v_lshlrev_b32 v{t+12}, 13, v{t+12}")
        e(f"v_and_b32 v{t+11}, 15, v{t+2}")
        e(f"v_lshl_add_u32 v{t+12}, v{t+11}, 7, v{t+12}")
        e(f"v_lshl_add_u32 v{t+12}, v{t+3}, 4, v{t+12}")
        e(f"s_lshl_b32 s{sTmp}, s{sWv}, 5")
        e(f"v_add_u32 v{t+12}, s{sTmp}, v{t+12}")
        e(f"v_lshlrev_b32 v{t+13}, 4, v{t+6}")
        e(f"v_lshl_add_u32 v{t+13}, v{t+5}, 8, v{t+13}")
        e(f"v_add_u32 v{t+11}, s{sM0w}, v{vL16}")
        e(f"s_lshr_b32 s{sTmp}, s{sB}, 1")
        e(f"s_mul_i32 s{sTmp}, s{sTmp}, {XN_RT}")
        e(f"s_and_b32 s{sTmp2}, s{sB}, 1")
        e(f"s_lshl_b32 s{sTmp2}, s{sTmp2}, 7")
        e(f"s_add_u32 s{sTmp}, s{sTmp}, s{sTmp2}")
        e(f"s_lshl_b32 s{sTmp2}, s{sWv}, 12")
        e(f"s_add_u32 s{sTmp}, s{sTmp}, s{sTmp2}")
        F = X + 8
        D = X + 24
        a, b2 = X + 40, X + 41
        ps()
        e(W(vm=True))
        ps()
        for i in range(8):
            e(f"v_lshlrev_b32 v{F+2*i}, 16, v{X+i}")
            e(f"v_and_b32 v{F+2*i+1}, 0xffff0000, v{X+i}")

        def rowsum(src):
            for i in range(8):
                e(f"v_add_f32 v{X+44+i}, v{src+2*i}, v{src+2*i+1}")
            for i in range(4):
                e(f"v_add_f32 v{X+44+i}, v{X+44+i}, v{X+48+i}")
            e(f"v_add_f32 v{X+44}, v{X+44}, v{X+46}")
            e(f"v_add_f32 v{X+45}, v{X+45}, v{X+47}")
            e(f"v_add_f32 v{a}, v{X+44}, v{X+45}")
            for m in ("quad_perm:[1,0,3,2]", "quad_perm:[2,3,0,1]", "row_half_mirror", "row_mirror"):
                e("s_nop 1")
                e(f"v_add_f32_dpp v{a}, v{a}, v{a} {m} row_mask:0xf bank_mask:0xf")
            e(f"v_mov_b32 v{b2}, v{a}")
            e("s_nop 1")
            e(f"v_permlane16_swap_b32 v{a}, v{b2}")
            e(f"v_add_f32 v{a}, v{a}, v{b2}")
            e(f"v_mul_f32 v{a}, {f32(1 / 512)}, v{a}")

        def rnd(r):
            e(f"v_cvt_pk_bf16_f32 v{r}, v{r}, v{r}")
            e(f"v_and_b32 v{r}, 0xffff0000, v{r}")
        rowsum(F)
        mean = X + 42
        e(f"v_mov_b32 v{mean}, v{a}")
        for i in range(16):
            e(f"v_sub_f32 v{D+i}, v{F+i}, v{a}")
        for i in range(16):
            e(f"v_mul_f32 v{D+i}, v{D+i}, v{D+i}")
        rowsum(D)
        rnd(a)
        rnd(mean)
        e(f"v_add_f32 v{a}, {f32(1e-5)}, v{a}")
        rnd(a)
        e(f"v_sqrt_f32 v{a}, v{a}")
        for i in range(16):
            e(f"v_sub_f32 v{F+i}, v{F+i}, v{mean}")
        rnd(a)
        e(f"v_rcp_f32 v{a}, v{a}")
        for i in range(8):
            e(f"v_cvt_pk_bf16_f32 v{X+i}, v{F+2*i}, v{F+2*i+1}")
        for i in range(8):
            e(f"v_lshlrev_b32 v{F+2*i}, 16, v{X+i}")
            e(f"v_and_b32 v{F+2*i+1}, 0xffff0000, v{X+i}")
        for i in range(16):
            e(f"v_mul_f32 v{F+i}, v{F+i}, v{a}")
        for i in range(8):
            e(f"v_cvt_pk_bf16_f32 v{X+i}, v{F+2*i}, v{F+2*i+1}")
        body = p.ops[mark:]
        del p.ops[mark:]
        groups = []
        for f in later:
            cur = []
            for o in self.pad_m0(f()):
                cur.append(o)
                if o.kind == "dma":
                    groups.append(cur)
                    cur = []
        quick = self.a.quick
        step = len(body) / (len(groups) - quick + 1)
        gi = 0
        for k, o in enumerate(body):
            while gi < len(groups) and k >= (gi - quick + 1) * step and ("s", "scc") not in o.reads:
                p.ops += groups[gi]
                gi += 1
            p.ops.append(o)
        assert gi == len(groups)
        ps()
        e(f"ds_write_b128 v{t+12}, {vr(X)} offset:{SLOT[1]}", lds_wr=(("X", 0), "ln", True))
        e(f"ds_write_b128 v{t+12}, {vr(X+4)} offset:{SLOT[1] + 16384}", lds_wr=(("X", 0), "ln", True))
        early = ([] if self.a.win1 else self.w_dma(1, 0)) + self.c_dma(4)
        for i in range(1, self.a.w1early):
            early += self.w_dma(1, i)
        for o in self.pad_m0(early):
            e(o)
        for o in self.stamp_ops():
            e(o)
        e("s_waitcnt lgkmcnt(0)")
        e(W(vm=True))
        e("s_barrier")
        for o in self.stamp_ops():
            e(o)
        for o in self.w_reads(0) + self.c_reads(0):
            e(o)
        e(W(lg=True))
        for o in self.c_reads(1) + self.c_reads(2) + self.c_reads(3):
            e(o)
        e(W(lg=True))
        return p

    def acc(self, n, c, rt):
        base = B0 if n < 10 else (B1 if n < 12 else B2)
        return base + 16 * c + 4 * rt

    def proj(self):
        S = Seg("proj")
        A = self.a
        BIASR, BIAS = T0, T0 + 8
        NG = 14 * 8
        for G in range(NG):
            n, gi = G >> 3, G & 7
            if n >= 8:
                kq, c = 2 * (n & 1) + (gi >> 2), gi & 3
            else:
                kq, c = n % 4, gi
            for rt in range(4):
                d = vr(self.acc(n, c, rt))
                for s in range(4):
                    w = vr(WF + 16 * (G & 1) + 4 * s)
                    x = ar(64 * kq + 16 * rt + 4 * s)
                    cc = d
                    if kq == 0 and s == 0:
                        cc = vr(BIAS + 4 * (c & 1)) if n == 8 else "0"
                    if 4 <= n < 8:
                        S.mfma(f"{MF} {d}, {x}, {w}, {cc}")
                    else:
                        S.mfma(f"{MF} {d}, {w}, {x}, {cc}")
        RG = [0, 1, 2, 4, 5, 6, 8, 9]
        for G in range(NG - 1):
            for i, o in enumerate(self.w_reads(G + 1)):
                S.put(16 * G + RG[i], o)
            if (G + 1) % 8 == 7:
                S.put(16 * G + 15, W(vm=True, lg=True))
                S.put(16 * G + 15, "s_barrier")
                if A.finestamps:
                    for o in self.stamp_ops():
                        S.put(16 * G + 15, o)
            else:
                w = W(lg=True)
                if G % 8 == 2:
                    w.vm = 36
                S.put(16 * G + 15, w)
        bar_gap = lambda n: 16 * (8 * n + 6) + 15
        gp = lambda x: int(16 * x)
        jobs = []
        pos = {}
        J = lambda rel, f, name=None: jobs.append((rel, f, name))
        X = B2
        S.put(10, Op(f"ds_read_b128 {vr(X)}, v{T0+11} offset:{SLOT[1]}", lds_rd=(("X", 0), "ln", True)))
        S.put(12, Op(f"ds_read_b128 {vr(X+4)}, v{T0+11} offset:{SLOT[1] + 1024}", lds_rd=(("X", 0), "ln", True)))
        J(gp(2), lambda: [Op(f"buffer_store_dwordx4 {vr(X)}, v{T0+13}, {srd(rWS)}, s{sTmp} offen sc1"),
                          Op(f"buffer_store_dwordx4 {vr(X+4)}, v{T0+13}, {srd(rWS)}, s{sTmp} offen offset:2048 sc1", tag="xn")], "xnst")
        CR = {4: 1, 5: 4.5, 6: 5.7, 7: 6.8}
        CR.update({u: 2 * (u - 4) + 0.5 - (0.5 if u & 3 == 3 else 0) for u in range(8, 16)})
        cpos = [16 * G + k for G in range(1, 24) for k in (10, 12, 13)]
        cdone = {}
        ci = 0
        for u in range(4, 16):
            while cpos[ci] < gp(CR[u]):
                ci += 1
            S.put(cpos[ci], W(vm=True))
            for o in self.c_reads(u):
                S.put(cpos[ci], o)
                cdone[u] = cpos[ci]
                ci += 1
            assert cdone[u] < 128 * (u >> 2), (u, cdone[u])
        J(0, lambda: self.c_dma(5))
        J(1, lambda: self.c_dma(6))
        for i in range(A.w1early, 8):
            J(gp(2) + 1, lambda i=i: self.w_dma(1, i))
        J(gp(2) + 2, lambda: self.c_dma(7))
        for u in range(8, 16):
            rel = gp(CR[u] - A.clead)
            if u >= 9:
                rel = max(rel, (cdone[u - 4] + 6) // 16 * 16 + 16)
            J(max(rel, gp(2) + 3), lambda u=u: self.c_dma(u))
        wrel = 0
        for n in range(2, 14):
            for i in range(8):
                if n < 4:
                    G = 8 * (n - 1) + 6 - A.wlead - 7 + i
                else:
                    G = A.wstart[n - 4] + i * A.wstep[n - 4]
                wrel = max(wrel, gp(G), bar_gap(n - 3) + 1 if n > 2 else 0)
                J(wrel, lambda n=n, i=i: self.w_dma(n, i), f"w{n}")
        S.flow([f"v_lshrrev_b32 v{vA}, 8, v{vL16}", f"v_lshlrev_b32 v{vA}, 3, v{vA}"], gp(8), gp(12))

        def fb():
            s = self.st()
            return [Op(f"s_mov_b32 s{rX}, s{pB1}"), Op(f"s_mov_b32 s{rX+1}, s{pB1+1}"), Op(f"s_min_u32 s{rX+2}, s{rH+2}, 3584"),
                    Op(f"s_lshl_b32 s{s}, s{sH}, 7")] + \
                   [Op(f"buffer_load_dwordx2 {vr(BIASR + 2*c, 2)}, v{vA}, {srd(rX)}, s{s} offen offset:{32*c}") for c in range(4)]
        J(gp(A.tg[3]), fb, "bias")
        if A.wtouch:
            t0, t1, td = T0 + 8, T0 + 9, T0 + 10
            S.flow([f"v_and_b32 v{t0}, {31 * 16}, v{vL16}", f"v_lshlrev_b32 v{t0}, 3, v{t0}", f"v_min_u32 v{t1}, {13 * 128}, v{t0}"], gp(1), gp(4))

            def ft(p, w1, fl):
                s = self.st()
                return [Op(f"s_mov_b32 s{rX}, s{p}"), Op(f"s_mov_b32 s{rX+1}, s{p+1}"),
                        Op(f"s_mov_b32 s{rX+2}, {512 * 3584 if w1 else 4 * MB}"),
                        Op(f"s_lshl_b32 s{s}, s{sB}, 2"), Op(f"s_add_u32 s{s}, s{s}, s{sWv}"),
                        Op(f"s_mul_i32 s{s}, s{s}, {1792 if w1 else 4096}"),
                        Op(f"buffer_load_dword v{td}, v{t1 if w1 else t0}, {srd(rX)}, s{s} offen{fl}")]
            for k, (p, w1) in enumerate(((pWV, 0), (pW1, 1), (pWQ, 0))):
                if A.tg[k] >= 0:
                    J(gp(A.tg[k]), lambda p=p, w1=w1, k=k: ft(p, w1, " nt" if A.tnt[k] else ""))
                    if A.tnt[k] > 1:
                        J(gp(A.tg[k] + A.tnt[k]), lambda p=p, w1=w1: ft(p, w1, ""))
        for G in A.ct2:
            if G > 0:
                vt, vd = (T0 + 14, T0 + 15) if G < 60 else (3, T0 + 15)
                val, ops = self.code_touch(vt, vd, 2048)
                S.flow(val, gp(G - 3), gp(G) - 1)
                J(gp(G), lambda ops=ops: ops)
        SEL = {("v", vSel0): f"v_lshlrev_b32 v{vSel0}, 28, v0"}
        S.flow([f"s_and_b32 s{sTmp2}, s{sB}, 3", f"s_lshl_b32 s{sTmp2}, s{sTmp2}, 6", f"v_mov_b32 v{vD}, 1"], gp(5), bar_gap(0))
        J(bar_gap(0) + 1, lambda: [Op(f"buffer_atomic_add v{vD}, v{vSel0}, {srd(rDBG)}, s{sTmp2} offen sc1",
                                      needs=[("xn", True), ("clr", True)],
                                      expect={("v", vD): f"v_mov_b32 v{vD}, 1", ("s", sTmp2): f"s_lshl_b32 s{sTmp2}, s{sTmp2}, 6", **SEL})])
        KREL, VREL = {}, {}
        for u in range(4):
            for rt in range(4):
                k = 4 * u + rt
                KREL[k] = max(gp(A.kst[0] + k * A.kst[1]), gp(28.5 + 2.4 * u + 0.6 * rt))

                def f(u=u, rt=rt):
                    s = self.st()
                    return [Op(f"s_add_u32 s{s}, s{sKb if rt >> 1 else sKa}, {K_OFF + rt * 4096}"),
                            Op(f"buffer_store_dwordx4 {vr(B2 + 16*u + 4*rt)}, v{vL16}, {srd(rWS)}, s{s} offen offset:{u*1024}{A.st}", tag="kst")]
                J(KREL[k], f, f"k{k}")
        for dt in range(8):
            for kg in range(2):
                k = 2 * dt + kg
                VREL[k] = max(gp(56 + dt) + 40, gp(A.vst[0] + k * A.vst[1]))

                def f(dt=dt, kg=kg):
                    s = self.st()
                    return [Op(f"s_add_u32 s{s}, s{sVb if kg else sVa}, {V_OFF + (dt >> 1) * 4096}"),
                            Op(f"buffer_store_dwordx4 {vr(B2 + 8*dt + 4*kg)}, v{vL16}, {srd(rWS)}, s{s} offen offset:{(dt & 1)*2048 + kg*1024}{A.st}", tag="vst")]
                J(VREL[k], f, f"v{k}")
        S.flow([f"v_bfe_u32 v{vA}, v{vL16}, 4, 2", f"v_lshlrev_b32 v{vA}, 6, v{vA}"], gp(31), gp(33))
        ld, chk, br = self.poll("xn", f"buffer_load_dword v{vP}, v{vA}, {srd(rDBG)}, 0 offen sc1", f"v_cmp_gt_u32 vcc, 64, v{vP}",
                                expect={("v", vA): f"v_lshlrev_b32 v{vA}, 6, v{vA}"})
        J(gp(34), lambda: [ld])
        self.put_check(S, gp(39), chk, br)
        vX = [4, 5, 6, 7]
        S.flow([f"s_mul_i32 s{sTmp2}, s{sR}, {(1 << 11) + (1 << 9)}", f"s_and_b32 s{sTmp2}, s{sTmp2}, {3 << 10}",
                f"v_xor_b32 v{vX[0]}, s{sTmp2}, v{vL16}"] + [f"v_xor_b32 v{vX[k]}, {k << 10}, v{vX[0]}" for k in range(1, 4)], gp(35), gp(39))
        for kq in range(4):
            for k in range(4):
                for rt in range(4):
                    def f(kq=kq, rt=rt, k=k):
                        ops = [Op(f"buffer_load_dwordx4 {ar(64*kq + 16*rt + 4*k)}, v{vX[k]}, {srd(rWS)}, s{sRT[rt]} offen{A.ld}", after="xn")]
                        if k == 3 and kq < 3:
                            ops.append(Op(f"s_add_u32 s{sRT[rt]}, s{sRT[rt]}, 4096"))
                        return ops
                    J(max(128 * (5 + kq), gp(A.xn[0] + (16 * kq + 4 * k + rt) * A.xn[1])), f, f"x{kq}")
        for kq in range(4):
            w = S.nv[gp(64 + 4 * kq) - 1][0]
            assert w.kind == "wait"
            w.vm = 63
        FL = {("v", vWRb[0]): f"v_add_u32 v{vWRb[0]}, {SLOT[0]}, v{vWRa[0]}", ("s", sFlagKV): f"s_add_u32 s{sFlagKV}, s{sPollKV}, s{sTmp}", **SEL}
        J(bar_gap(A.kflag) + 1, lambda: [Op(f"buffer_store_dword v{vWRb[0]}, v{vSel0}, {srd(rWS)}, s{sFlagKV} offen sc1",
                                            needs=[("kst", True)], after="xn", expect=FL)])
        if A.upto != "proj":
            J(bar_gap(A.vflag) + 1, lambda: [Op(f"buffer_store_dword v{vWRb[0]}, v{vSel0}, {srd(rWS)}, s{sFlagKV} offen offset:32 sc1",
                                                needs=[("vst", True)], after="xn", expect=FL)])
        self.extra_jobs(S, J, gp)
        HREL = [gp(A.hst[0] + k * A.hst[1]) for k in range(8)]
        S.flow([f"s_lshl_b32 s{sWp1b}, s{sH}, 13", f"s_add_u32 s{sWp1b}, s{sWp1b}, {ACT_HOFF}"], gp(72), gp(76))
        for u in range(2):
            for rt in range(4):
                def f(u=u, rt=rt):
                    s = self.st()
                    ops = [Op(f"s_add_u32 s{s}, s{sWp1b}, s{sAct[rt]}"),
                           Op(f"buffer_store_dwordx4 {vr(B0 + 32*u + 4*rt)}, v{vL16}, {srd(rH)}, s{s} offen{A.st}", tag="hst")]
                    if (u, rt) == (0, 3):
                        ops.append(Op(f"s_add_u32 s{sWp1b}, s{sWp1b}, 4096"))
                    return ops
                J(HREL[4 * u + rt], f)
        jobs.sort(key=lambda x: x[0])
        g = 0
        last_vm, bucket = -3, 0.0
        isfree = lambda gg: S.used(gg) == 1 and (gg % 16 != 15 or gg >= gp(111))
        for rel, f, name in jobs:
            ops = f()
            k = 0
            while k < len(ops):
                k2 = k
                while k2 < len(ops) and ops[k2].kind not in VM:
                    k2 += 1
                sal = ops[k:k2]
                if k2 == len(ops):
                    g = S.flow(sal, g + 1, S.n() - 1)[-1]
                    break
                tgt = max(rel, last_vm + A.vmin, int(bucket), g + (1 if sal else 0))
                while True:
                    while not isfree(tgt):
                        tgt += 1
                    lo = max(g, tgt - 14)
                    cand = [x for x in range(lo, tgt) if not S.nv[x]]
                    if len(cand) >= len(sal):
                        place = cand[len(cand) - len(sal):]
                        break
                    cap = []
                    for x in range(lo, tgt):
                        cap += [x] * max(0, 4 - S.used(x))
                    if len(cap) >= len(sal):
                        place = cap[len(cap) - len(sal):]
                        break
                    tgt += 1
                for o, x in zip(sal, place):
                    S.put(x, o)
                S.put(tgt, ops[k2])
                g = last_vm = tgt
                bucket = max(bucket, tgt - A.vburst) + A.vrate
                k = k2 + 1
            if name:
                pos[name] = last_vm
            if last_vm > rel + 40 and A.verbose:
                print(f"  job slipped: rel {rel/16:.1f} -> {last_vm/16:.1f}: {ops[-1].text}")
        if A.verbose:
            print("  job last positions:", {k: round(v / 16, 1) for k, v in pos.items()})
        assert pos["xnst"] < gp(5) and pos["x3"] < gp(75) and pos["bias"] < gp(31) and pos["w9"] < gp(72)
        for u in range(4):
            for rt in range(4):
                a0, a1 = self.acc(3, 2 * u, rt), self.acc(3, 2 * u + 1, rt)
                rel0 = gp(24 + 2 * u) + 4 * rt + 3 + 3
                rel1 = rel0 + 16
                dl = min(gp(32 + 2 * u) + 4 * rt - 2, pos[f"k{4 * u + rt}"] - 1)
                d = B2 + 16 * u + 4 * rt
                for (a, rel, o) in ((a0, rel0, 0), (a1, rel1, 2)):
                    ops = [f"v_mul_f32 v{a+i}, s{sSC}, v{a+i}" for i in range(4)]
                    ops += [f"v_cvt_pk_bf16_f32 v{d+o}, v{a}, v{a+1}", f"v_cvt_pk_bf16_f32 v{d+o+1}, v{a+2}, v{a+3}"]
                    S.flow(ops, rel, dl)
        for dt in range(8):
            for rt in range(4):
                a = self.acc(7, dt, rt)
                rel = max(gp(56 + dt) + 4 * rt + 3 + 3, pos[f"k{2 * dt + (rt >> 1)}"] + 1)
                dl = pos[f"v{2 * dt + (rt >> 1)}"] - 1
                dl = min(dl, gp(64 + dt) + 4 * rt - 2 if dt < 4 else gp(76))
                assert rel <= dl
                d = B2 + 8 * dt + 2 * rt
                S.flow([f"v_cvt_pk_bf16_f32 v{d}, v{a}, v{a+1}", f"v_cvt_pk_bf16_f32 v{d+1}, v{a+2}, v{a+3}"], rel, dl)
        for k in range(16):
            assert pos[f"v{k}"] < gp(96 + (k >> 2)) + 4 * (k & 3), k
        for c in range(4):
            b = BIAS + 4 * (c & 1)
            ops = []
            for i in range(2):
                ops += [f"v_lshlrev_b32 v{b+2*i}, 16, v{BIASR+2*c+i}", f"v_and_b32 v{b+2*i+1}, 0xffff0000, v{BIASR+2*c+i}"]
            S.flow(ops, gp(63 + c), gp(64 + c) - 2)
        T = []
        qtail = []
        qa = {}
        for u in range(4):
            n = 11 if u < 2 else 13
            for rt in range(4):
                d = Qf(rt, u)
                prev = None
                for half in range(2):
                    c = 2 * (u & 1) + half
                    a = self.acc(n, c, rt)
                    rel = gp(8 * n + 4 + c) + 4 * rt + 3 + 3
                    for h in range(2):
                        txt = f"v_cvt_pk_bf16_f32 v{d+2*half+h}, v{a+2*h}, v{a+2*h+1}"
                        if rel >= S.n():
                            qtail.append(txt)
                        else:
                            prev = Task(txt, rel, gp(104) if u < 2 else S.n() - 1, [(prev, 0)] if prev else [])
                            T.append(prev)
        free = [None] * 8
        k = 0
        for u in range(2):
            for rt in range(4):
                a0 = self.acc(9, 2 * u, rt)
                dl = HREL[4 * u + rt] - 1
                prevc = None
                for half in range(2):
                    a = self.acc(9, 2 * u + half, rt)
                    rel = gp(76 + 2 * u + half) + 4 * rt + 3 + 3
                    E = T0 + 4 * (k & 1)
                    k += 1
                    last = []
                    for i in range(4):
                        e = E + i
                        seq = [(f"v_mul_f32 v{e}, s{sL2E}, v{a+i}", 0), (f"v_exp_f32 v{e}, v{e}", 0), (f"v_add_f32 v{e}, 1.0, v{e}", 1),
                               (f"v_fma_f32 v{e}, v{e}, v{e}, 1.0", 0), (f"v_rcp_f32 v{e}, v{e}", 0), (f"v_fma_f32 v{e}, v{e}, -2.0, 1.0", 1),
                               (f"v_mul_f32 v{e}, v{e}, v{a+i}", 0)]
                        prev = free[e - T0]
                        for txt, dist in seq:
                            prev = Task(txt, rel, dl, [(prev, dist)] if prev else [])
                            T.append(prev)
                        last.append(prev)
                    for h in range(2):
                        pre = [(last[2 * h], 0), (last[2 * h + 1], 0)] + ([(prevc, 0)] if prevc else [])
                        prevc = Task(f"v_cvt_pk_bf16_f32 v{a0+2*half+h}, v{E+2*h}, v{E+2*h+1}", rel, dl, pre)
                        T.append(prevc)
                        free[E - T0 + 2 * h] = free[E - T0 + 2 * h + 1] = prevc
        schedule(S, T, start=gp(76))
        S.auto_lg_waits(lat=6, verbose=A.verbose)
        S.post += [Op("s_nop 7")] + [Op(x) for x in qtail]
        if A.verbose:
            print("  est cycles per stage:", [sum(4 * max(4, S.used(g)) for g in range(128 * n, 128 * n + 128)) for n in range(14)])
        return S

    def put_check(self, S, g, chk, br):
        while S.used(g) > 1 or S.used(g + 1) > 1 or g % 16 != 12:
            g += 1
        S.put(g, chk[0])
        S.put(g, chk[1])
        S.put(g + 1, br[0])
        S.put(g + 1, br[1])
        return g + 1


    def kv_dma(self, which, xr, creg, nreg, first=False):
        ring = KRING if which == "K" else VRING
        base = creg if (xr >> 1) % 2 == 0 else nreg
        so, r = (sKo, rK) if which == "K" else (sVo, rV)

        def wr(c):
            X = 2 * c["i"] + xr
            al = [(("C", k), (which, X), True) for k in range(4)] if which == "K" else [(("W", 1 + ((X & 3) >> 1)), (which, X), True)]
            return [((which, X & 3), (which, X), True)] + (al if X < 4 else [])
        ops = [Op(f"s_add_u32 m0, s{base}, {ring + (xr & 1) * 16384}")]
        for k in range(4):
            ops.append(Op(f"buffer_load_dwordx4 v{vL16}, {srd(r)}, s{so} offen offset:{k * 1024}{self.a.ld} lds", lds_wr=wr, after=which.lower()))
        ops.append(Op(f"s_add_u32 s{so}, s{so}, {KV_T}"))
        self.m0 = None
        return ops

    def k_read(self, xr, kt, u, names):
        a = names["Kc"] if (xr >> 1) % 2 == 0 else names["Kn"]
        return Op(f"ds_read_b128 {ar(aK + 16 * (kt & 1) + 4 * u)}, v{a} offset:{(xr & 1) * 16384 + kt * 4096 + u * 1024}",
                  lds_rd=lambda c: (("K", (2 * c["i"] + xr) & 3), ("K", 2 * c["i"] + xr), True))

    def v_read(self, xr, dt, kg, names):
        a = names["Vc"] if (xr >> 1) % 2 == 0 else names["Vn"]
        return Op(f"ds_read_b128 {ar(aV + 8 * (dt & 3) + 4 * kg)}, v{a} offset:{(xr & 1) * 16384 + dt * 2048 + kg * 1024}",
                  lds_rd=lambda c: (("V", (2 * c["i"] + xr) & 3), ("V", 2 * c["i"] + xr), True))

    def mask_ops(self, dst, z, kt, neg):
        ng = neg if isinstance(neg, list) else [neg] * 4
        m = ["vcc", f"s[{sMA}:{sMA+1}]", f"s[{sMB}:{sMB+1}]", "vcc"]
        cmp = lambda r: f"v_cmp_le_i32 {m[r]}, {16 * kt + r}, v{z}"
        cnd = lambda r: f"v_cndmask_b32 v{dst + r}, v{NINF}, v{ng[r]}, {m[r]}"
        return [cmp(0), cmp(1), cmp(2), cnd(0), cmp(3), cnd(1), cnd(2), cnd(3)]

    def att_regs_init(self):
        return [f"v_add_u32 v{vKc}, {KRING}, v{vL16}", f"v_add_u32 v{vKn}, {KRING + 32768}, v{vL16}",
                f"v_mov_b32 v{vVc}, v{vL16}", f"v_add_u32 v{vVn}, 32768, v{vL16}"]

    def att_sregs_init(self):
        return [f"s_lshl_b32 s{sMc}, s{sWv}, 12", f"s_add_u32 s{sMn}, s{sMc}, 32768",
                f"s_mov_b32 s{sKo}, s{sMc}", f"s_mov_b32 s{sVo}, s{sMc}", f"s_mov_b64 s[{sBad}:{sBad+1}], 0"]

    def first_k_reads(self):
        nm = dict(Kc=vKc, Kn=vKn, Vc=vVc, Vn=vVn)
        return [self.k_read(0, 0, u, nm) for u in range(4)] + [self.k_read(0, 1, u, nm) for u in range(2)]

    def extra_jobs(self, S, J, gp):
        if self.a.upto == "proj":
            return
        ops = [f"s_mul_i32 s{sTmp}, s{sH}, {KV_H}",
               f"s_lshl_b32 s{rK+2}, s{sJ}, 1", f"s_sub_u32 s{rK+2}, 32, s{rK+2}", f"s_mul_i32 s{rK+2}, s{rK+2}, {KV_T}",
               f"s_mov_b32 s{rV+2}, s{rK+2}", f"s_mov_b32 s{rV+3}, 0x20000",
               f"s_add_u32 s{sTmp}, s{sTmp}, {K_OFF}"]
        g = S.flow(ops + self.att_sregs_init()[:4], 16 * 66, 16 * 74)[-1]
        for (r, off) in ((rK, 0), (rV, V_OFF - K_OFF)):
            g += 1
            while S.used(g) > 1:
                g += 1
            if off:
                S.put(g, f"s_add_u32 s{sTmp}, s{sTmp}, {off}")
            S.put(g, f"s_add_u32 s{r}, s{pWS}, s{sTmp}")
            S.put(g, f"s_addc_u32 s{r+1}, s{pWS+1}, 0")
        S.flow(self.att_regs_init(), 16 * 75, 16 * 80)
        S.flow(self.att_sregs_init()[4:], 16 * 100, 16 * 104)
        ops = [
            f"v_bfe_u32 v{Z0}, v{vL16}, 4, 4", f"v_lshrrev_b32 v{Z1}, 8, v{vL16}", f"v_lshlrev_b32 v{Z1}, 2, v{Z1}",
            f"v_sub_u32 v{Z0}, v{Z0}, v{Z1}", f"v_lshlrev_b32 v{Zt}, 4, s{sWv}", f"v_sub_u32 v{Z1}, v{Z0}, v{Zt}",
            f"v_add_u32 v{Z1}, 48, v{Z1}", f"v_add_u32 v{Z0}, v{Z0}, v{Zt}", f"v_mov_b32 v{NINF}, 0xff800000",
            f"v_bfe_u32 v{vA}, v{vL16}, 2, 5",
            f"v_lshlrev_b32 v{Zt}, 7, s{sJ}", f"v_add_u32 v{Zt}, v{Zt}, v{Z0}"]
        S.flow(ops, 16 * 69, 16 * 76)
        S.flow([f"v_mov_b32 v{ZERO+i}, 0" for i in range(4)] + [f"v_mov_b32 v{ONES+i}, 0x3f803f80" for i in range(4)], 16 * 111, 16 * 112 - 1)
        ldt = f"buffer_load_dword v{vP}, v{vA}, {srd(rWS)}, s{sPollKV} offen sc1"
        ex = {("v", vA): f"v_bfe_u32 v{vA}, v{vL16}, 2, 5", ("s", sPollKV): f"s_add_u32 s{sPollKV}, s{sPollKV}, {FLAG_OFF}"}
        ld, chk, br = self.poll("k", ldt, f"v_cmp_eq_u32 vcc, 0, v{vP}", expect=ex, after="xn")
        J(gp(self.a.kv[0] - 5), lambda ld=ld: [ld])
        g = self.put_check(S, gp(self.a.kv[0] - 1), chk, br)
        for X in range(3):
            J(gp(self.a.kv[0] + self.a.kv[1] * X), lambda X=X: self.kv_dma("K", X, sMc, sMn))
        ld, chk, br = self.poll("v", ldt.replace("offen", "offen offset:32"), f"v_cmp_eq_u32 vcc, 0, v{vP}", expect=ex, after="xn")
        J(gp(self.a.kv[2] - 4), lambda ld=ld: [ld])
        g = self.put_check(S, gp(self.a.kv[2] - 1), chk, br)
        for X in range(2):
            J(gp(self.a.kv[2] + X), lambda X=X: self.kv_dma("V", X, sMc, sMn))
        for i, o in enumerate(self.first_k_reads()):
            S.put(16 * 111 + i, o)

    def rowmax_reduce(self):
        ops = []
        for sw in ("v_permlane16_swap_b32", "v_permlane32_swap_b32"):
            ops += [f"v_mov_b32 v{MX+4+t}, v{MX+t}" for t in range(4)]
            ops += [f"{sw} v{MX+t}, v{MX+4+t}" for t in range(4)]
            ops += [f"v_max_f32 v{MX+t}, v{MX+t}, v{MX+4+t}" for t in range(4)]
        return ops

    def prestep(self):
        S = Seg("prestep")
        S.pre.append(W(lg=True))
        for t in range(4):
            for u in range(4):
                S.mfma(f"{MF} {vr(SB+4*t)}, {ar(aK+4*u)}, {vr(Qf(t, u))}, {vr(SB+4*t) if u else 0}")
        for k in range(9):
            S.mfma(f"{MF32} {ar(16*k, 16)}, {vr(ZERO)}, {vr(ZERO)}, 0")
        S.flow(self.mask_ops(SB, Zt, 0, [SB, SB + 1, SB + 2, SB + 3]), 7, 15)
        ops = [f"v_max3_f32 v{MX+t}, v{SB+4*t}, v{SB+4*t+1}, v{SB+4*t+2}" for t in range(4)]
        ops += [f"v_max_f32 v{MX+t}, v{MX+t}, v{SB+4*t+3}" for t in range(4)]
        ops += self.rowmax_reduce()
        S.flow(ops, 17, 24)
        S.flow([f"v_mov_b32 v{vD}, 1"], 0, 6)
        self.p3_setup(S)
        G = Plain("att_go")
        e = G.e
        e("L_att_go:")
        for r in range(4):
            e(f"v_sub_f32 v{NEG3L+r}, 0, v{MX+3}")
        e(f"v_sub_f32 v{NEG0}, 0, v{MX}")
        for r in range(4):
            e(f"v_sub_f32 v{NEG[2]+r}, 0, v{MX+2}")
        rest = [f"v_sub_f32 v{NEG[t]+r}, 0, v{MX+t}" for t in (1, 3) for r in range(4)]
        for u in range(4):
            e(f"{MF} {vr(SB)}, {ar(aK+4*u)}, {vr(Qf(3, u))}, {vr(SB) if u else vr(NEG3L)}")
            e(rest[2 * u])
            e(rest[2 * u + 1])
        for kt in range(4):
            for o in self.mask_ops(BANK + 4 * kt, Zt, kt, NEG0):
                e(o)
        e(f"s_mov_b32 s{sCnt}, s{sJ}")
        return S, G

    def att_seg(self, name, Trel, qk, pv, bank_tile, look=True, flip=None, dma=True, bar=True, pvfirst=False, lfirst=False, extra=None):
        S = Seg(name)
        par = Trel & 1
        names = dict(Kc=vKc, Kn=vKn, Vc=vVc, Vn=vVn)
        if flip == 2:
            names = dict(Kc=vKn, Kn=vKc, Vc=vVn, Vn=vVc)
        na = len(qk)
        chains = [(kt, t) for kt in range(4) for t in qk]
        n = len(chains)
        dts = ([8] + list(range(8))) if lfirst else list(range(9))
        pvc = [(dt, t) for dt in dts for t in pv]
        M = len(pvc)
        nmu = max(n, 1)
        cstart, cend = {0: -100}, {0: -100}
        pstart, pend = {}, {}

        def qk_chain(i):
            if i == n:
                kt, t, c = 0, 3, NEG3L
            else:
                kt, t = chains[i]
                c = BANK + 4 * kt if t == bank_tile else NEG[t]
            d = SB + 4 * (i % 4)
            cstart[i] = S.n()
            for u in range(4):
                S.mfma(f"{MF} {vr(d)}, {ar(aK + 16 * (kt & 1) + 4 * u)}, {vr(Qf(t, u))}, {vr(d) if u else vr(c)}")
            cend[i] = S.n() - 1

        def pv_share(mu):
            for k in range(mu * M // nmu, (mu + 1) * M // nmu):
                dt, t = pvc[k]
                pstart.setdefault(dt, S.n())
                for kg in range(2):
                    if dt == 8:
                        d, a = ar(aL + 4 * t), vr(ONES)
                    else:
                        d, a = ar(aO + 32 * t + 4 * dt), ar(aV + 8 * (dt & 3) + 4 * kg)
                    S.mfma(f"{MF} {d}, {a}, {vr(Pf(1 - par, t, kg))}, {d}")
                pend[dt] = S.n() - 1
        for mu in range(nmu):
            if pvfirst:
                pv_share(mu)
            if n and (mu + 1 < n or look):
                qk_chain(mu + 1)
            if not pvfirst:
                pv_share(mu)
        N = S.n()
        T = []
        info = dict(cstart=cstart, cend=cend, pstart=pstart, pend=pend, N=N)
        tail = []
        for i in range(n):
            kt, t = chains[i]
            d = SB + 4 * (i % 4)
            rel = cend[i] + 3
            dl = cstart[i + 4] - 1 if (i + 4) in cstart else N - 1
            p = Pf(par, t, kt >> 1) + 2 * (kt & 1)
            if rel + 5 > N - 1:
                tail += ["s_nop 7"] + [f"v_exp_f32 v{d+r}, v{d+r}" for r in range(4)] + [f"v_cvt_pk_bf16_f32 v{p+h}, v{d+2*h}, v{d+2*h+1}" for h in range(2)]
                continue
            ex = []
            for r in range(4):
                ex.append(Task(f"v_exp_f32 v{d+r}, v{d+r}", rel, dl, [(ex[-1], 0)] if ex else []))
            T += ex
            for h in range(2):
                T.append(Task(f"v_cvt_pk_bf16_f32 v{p+h}, v{d+2*h}, v{d+2*h+1}", rel, dl, [(ex[2 * h + 1], 1)]))
        bg = None
        if bar:
            bg = cstart[3 * na] + 2
            S.put(bg, W(vm=True, lg=True))
            S.put(bg + 1, "s_barrier")
            bg += 1
        info["bar"] = bg
        lastk = None
        if n:
            for kt in range(1, 4):
                first = cstart[kt * na]
                free = cend[(kt - 1) * na - 1] if kt >= 2 else 0
                for u in range(2 if kt == 1 else 0, 4):
                    dl = first + u - LAT
                    if kt == 3 and bar:
                        dl = min(dl, bg - 1 - 5)
                    lastk = Task(self.k_read(Trel, kt, u, names), max(0, free - 3 + u), dl)
                    T.append(lastk)
            if look:
                for u in range(4):
                    T.append(Task(self.k_read(Trel + 1, 0, u, names), bg + 1, cstart[n] + u - LAT))
                for u in range(2):
                    T.append(Task(self.k_read(Trel + 1, 1, u, names), max(bg + 1, cend[n - 1] - 3 + u), N - 2 + u))
        if pv:
            for dt in range(1, 8):
                free = pend[dt - 4] if dt >= 4 else 0
                for kg in range(2):
                    T.append(Task(self.v_read(Trel - 1, dt, kg, names), free, pstart[dt] + kg - LAT))
        v0 = []
        if n:
            free = max(bg + 1, pend[4] if pv else 0)
            for kg in range(2):
                v0.append(Task(self.v_read(Trel, 0, kg, names), free, N + 4 + kg - LAT))
            T += v0
        if dma:
            prev = None
            for which, xr, lo, hi in (("K", Trel + 3, 1, bg - 2), ("V", Trel + 2, bg + 1, N - 2)):
                ops = self.kv_dma(which, xr, sMc, sMn)
                step = (hi - lo + 1) / 4
                m = Task(ops[0], lo - 1 if which == "K" else 0, int(lo + step - 2), [(prev, 0)] if prev else [])
                T.append(m)
                prev = m
                for k in range(4):
                    d = Task(ops[1 + k], int(lo + k * step), int(lo + (k + 1) * step - 1), [(prev, 1 if k == 0 else 3)])
                    T.append(d)
                    prev = d
                T.append(Task(ops[5], 0, N - 2, [(prev, 0)]))
                if which == "V":
                    info["vm0"] = m
        if flip == 1:
            T.append(Task(f"v_xor_b32 v{vVn}, 0x8000, v{vVn}", 0, N - 1))
            T.append(Task(f"v_xor_b32 v{vKc}, 0x8000, v{vKc}", bg, N - 1))
        if flip == 2:
            T.append(Task(f"v_xor_b32 v{vKn}, 0x8000, v{vKn}", 0, N - 1))
            T.append(Task(f"v_xor_b32 v{vVc}, 0x8000, v{vVc}", 0, bg))
            T.append(Task(f"s_xor_b32 s{sMn}, s{sMn}, 0x8000", 0, N - 2))
            T.append(Task(f"s_xor_b32 s{sMc}, s{sMc}, 0x8000", 0, N - 2, [(info["vm0"], 0)]))
        if extra:
            extra(S, T, info)
        schedule(S, T)
        inc = [("a", aK + 16 + r) for r in range(8)] + [("a", aV + r) for r in range(8)]
        S.auto_lg_waits(lat=5, incoming=inc, verbose=self.a.verbose)
        S.post += [Op(x) for x in tail]
        return S

    def chain_tasks(self, T, ops, rel, dl, after=None):
        prev = after
        for o in ops:
            t = Task(o, rel, dl, [(prev, 0)] if prev else [])
            T.append(t)
            prev = t
        return prev

    def bad_check(self, e, tiles):
        for k, t in enumerate(tiles):
            e(f"v_accvgpr_read_b32 v{ET+2*k}, a{aL+4*t}")
        e(f"v_add_f32 v{ET+3}, v{ET}, v{ET+2}")
        e(f"v_rcp_f32 v{ET}, v{ET}")
        e(f"v_cmp_ngt_f32 vcc, 0x5f800000, v{ET+3}")
        e(f"v_rcp_f32 v{ET+2}, v{ET+2}")
        e(f"s_or_b64 s[{sBad}:{sBad+1}], s[{sBad}:{sBad+1}], vcc")

    def epilogue(self, e, tiles):
        e(f"s_mul_i32 s{sTmp2}, s{sH}, {ACT_HD}")
        k = 0
        for ti, t in enumerate(tiles):
            e(f"s_add_u32 s{sTmp}, s{sTmp2}, s{sAct[t]}")
            for u in range(4):
                b = ET + 4
                o = ET + 12 + 4 * (k % 3)
                k += 1
                for i in range(8):
                    e(f"v_accvgpr_read_b32 v{b+i}, a{aO + 32*t + 8*u + i}")
                for i in range(4):
                    e(f"v_pk_mul_f32 {vr(b+2*i, 2)}, {vr(b+2*i, 2)}, {vr(ET+2*ti, 2)} op_sel_hi:[1,0]")
                for i in range(4):
                    e(f"v_cvt_pk_bf16_f32 v{o+i}, v{b+2*i}, v{b+2*i+1}")
                e(f"buffer_store_dwordx4 {vr(o)}, v{vL16}, {srd(rWS)}, s{sTmp} offen{self.a.st}", tag="cst")
                if u < 3:
                    e(f"s_add_u32 s{sTmp}, s{sTmp}, 4096")

    def attention(self):
        D, TH, SS, ONE = [3, 2, 1, 0], [3, 2, 1], [3, 2], [3]
        B = {}

        def x_d0(S, T, info):
            T.append(Task(Op(f"buffer_store_dword v{vD}, v{vSel0}, {srd(rWS)}, s{sFlagH} offen sc1", needs=[("hst", True)],
                             expect={("v", vD): f"v_mov_b32 v{vD}, 1", ("s", sFlagH): f"s_add_u32 s{sFlagH}, s{sFlagH}, {HFLAG_OFF}", ("v", vSel0): f"v_lshlrev_b32 v{vSel0}, 28, v0"}), info["bar"] + 1, info["N"] - 1))
            S.put(info["N"] - 1, f"s_cmp_eq_u32 s{sCnt}, 0")
        B["D0"] = self.att_seg("D0", 0, D, [], 0, extra=x_d0)
        B["D0"].post += [Op("s_cbranch_scc1 L_three"), Op(".p2align 4"), Op("L_dloop:")]
        B["Da"] = self.att_seg("Da", 1, D, D, 0, flip=1, extra=lambda S, T, i: S.put(i["N"] - 1, f"s_cmp_eq_u32 s{sCnt}, 1"))
        B["Da"].post += [Op("s_cbranch_scc1 L_dmask"), Op("L_dmask_back:")]

        def x_loop(S, T, info):
            T.append(Task(f"s_sub_u32 s{sCnt}, s{sCnt}, 1", 0, info["N"] - 2))
            S.put(info["N"] - 1, f"s_cmp_lg_u32 s{sCnt}, 0")
        B["Db"] = self.att_seg("Db", 2, D, D, 0, flip=2, extra=x_loop)
        B["Db"].post += [Op("s_cbranch_scc1 L_dloop"), Op("L_three:")]
        p = Plain("dmask")
        p.e("L_dmask:")
        for kt in range(4):
            for o in self.mask_ops(BANK + 4 * kt, Z0, kt, NEG0):
                p.e(o)
        p.e("s_branch L_dmask_back")
        self.ool.append(p)
        B["dmask"] = p

        def x_three(S, T, info):
            cs = info["cstart"]
            last = None
            last = self.chain_tasks(T, self.mask_ops(BANK, Z1, 0, NEG[1]), 0, cs[2] - 2, last)
            last = self.chain_tasks(T, [f"v_sub_u32 v{Zu}, 7, s{sJ}".replace("v_sub_u32", "v_sub_u32_e64"), f"v_lshlrev_b32 v{Zu}, 7, v{Zu}",
                                        f"v_add_u32 v{Zt}, v{Zu}, v{Z0}", f"v_add_u32 v{Zu}, v{Zu}, v{Z1}"], 0, cs[5], last)
            for kt in range(1, 4):
                last = self.chain_tasks(T, self.mask_ops(BANK + 4 * kt, Z1, kt, NEG[1]), 0, cs[3 * kt + 2] - 2, last)
            for kt in range(4):
                last = self.chain_tasks(T, self.mask_ops(BANK + 4 * kt, Zt, kt, NEG[2]), cs[3 * kt + 2] + 2, info["N"] - 2, last)
        B["T3"] = self.att_seg("T3", 1, TH, D, 1, flip=1, extra=x_three)

        def x_s3(S, T, info):
            last = self.chain_tasks(T, self.mask_ops(NEG3L, Zu, 0, NEG[3]), 0, info["cstart"][8] - 2)
            if self.a.upto == "full":
                self.p3_table(T, last, info["N"])
            T.append(Task(f"s_sub_u32 s{sCnt}, 7, s{sJ}", 0, info["N"] - 2))
        B["S3"] = self.att_seg("S3", 2, SS, TH, 2, flip=2, extra=x_s3)
        p = Plain("epiA")
        if self.a.otouch and self.a.upto == "full":
            p.e(f"s_lshl_b32 s{sTmp}, s{sB}, 2")
            p.e(f"s_add_u32 s{sTmp}, s{sTmp}, s{sWv}")
            p.e(f"s_lshl_b32 s{sTmp}, s{sTmp}, 13")
            p.e(f"v_lshl_add_u32 v{MX}, v{vL16}, 3, s{sTmp}")
            p.e(f"v_subrev_u32 v{MX+1}, {4 * MB}, v{MX}")
            p.e(f"buffer_load_dword v{MX+2}, v{MX}, {srd(rX)}, 0 offen")
            p.e(f"buffer_load_dword v{MX+2}, v{MX+1}, {srd(rW)}, 0 offen")
            p.e("s_nop 0")
        else:
            p.e("s_nop 7")
        self.bad_check(p.e, [0, 1])
        self.epilogue(p.e, [0, 1])
        for o in self.stamp_ops():
            p.e(o)
        p.e(f"s_cmp_eq_u32 s{sCnt}, 0")
        p.e("s_cbranch_scc1 L_one")
        p.e(".p2align 4")
        p.e("L_sloop:")
        B["epiA"] = p
        B["Sa"] = self.att_seg("Sa", 1, SS, SS, 2)
        B["Sb"] = self.att_seg("Sb", 2, SS, SS, 2)
        B["Sc"] = self.att_seg("Sc", 3, SS, SS, 2, extra=lambda S, T, i: S.put(i["N"] - 1, f"s_cmp_eq_u32 s{sCnt}, 1"))
        B["Sc"].post += [Op("s_cbranch_scc1 L_smask"), Op("L_smask_back:")]
        B["Sd"] = self.att_seg("Sd", 4, SS, SS, 2, extra=x_loop)
        B["Sd"].post += [Op("s_cbranch_scc1 L_sloop"), Op("L_one:")]
        p = Plain("smask")
        p.e("L_smask:")
        for kt in range(4):
            for o in self.mask_ops(BANK + 4 * kt, Z0, kt, NEG[2]):
                p.e(o)
        for o in self.mask_ops(NEG3L, Z1, 0, NEG[3]):
            p.e(o)
        p.e("s_branch L_smask_back")
        self.ool.append(p)
        B["smask"] = p

        def x_one(S, T, info):
            last = None
            for kt in range(1, 4):
                last = self.chain_tasks(T, self.mask_ops(BANK + 4 * kt, Z1, kt, NEG[3]), 0, info["cstart"][kt] - 2, last)
            self.one_extra(S, T, info, last)
        B["One"] = self.att_seg("One", 1, ONE, SS, 3, look=False, dma=False, pvfirst=True, extra=x_one)
        B["Dr"] = self.att_seg("Dr", 2, [], ONE, None, look=False, dma=False, bar=False, lfirst=True)
        B["Dr"].pre.insert(0, Op("s_nop 1"))
        p = Plain("check")
        e = p.e
        self.bad_check(e, [2, 3])
        e(f"s_cmp_lg_u64 s[{sBad}:{sBad+1}], 0")
        e(f"s_cselect_b32 s{sTmp}, 1, {1 if self.a.redo else 0}")
        e(f"s_andn2_b32 s{sTmp}, s{sTmp}, s{sFb}")
        e(f"s_lshl_b32 s{sTmp2}, s{sWv}, 2")
        e(f"s_add_u32 s{sTmp2}, s{sTmp2}, {SPARE}")
        e(f"v_mov_b32 v{ET+4}, s{sTmp2}")
        e(f"v_mov_b32 v{ET+5}, s{sTmp}")
        e(f"v_mov_b32 v{ET+6}, {SPARE}")
        e(f"ds_write_b32 v{ET+4}, v{ET+5}", lds_wr=lambda c: [(("F", 0), ("bad", c.get("fb")), True), (("W", 0), "bad", True)])
        e("s_waitcnt lgkmcnt(0)")
        e("s_barrier")
        e(f"ds_read_b128 {vr(ET+8)}, v{ET+6}", lds_rd=lambda c: (("F", 0), ("bad", c.get("fb")), True))
        B["check"] = p
        p = Plain("check2")
        e = p.e
        e(W(lg=True))
        e(f"v_or3_b32 v{ET+8}, v{ET+8}, v{ET+9}, v{ET+10}")
        e(f"v_or_b32 v{ET+8}, v{ET+8}, v{ET+11}")
        e(f"v_cmp_ne_u32 vcc, 0, v{ET+8}")
        e("s_nop 1")
        e("s_cbranch_vccnz L_fallback")
        B["check2"] = p
        B["fb"] = self.fallback()
        return B

    def fallback(self):
        p0, p1, p2 = Plain("fb0"), Plain("fb1"), Plain("fb2")
        e = p0.e
        e("L_fallback:")
        e(f"s_mov_b32 s{sFb}, 1")
        e("s_waitcnt vmcnt(0) lgkmcnt(0)")
        e("s_barrier")
        ZG = BANK
        e(f"s_lshl_b32 s{sTmp}, s{sJ}, 7")
        e(f"s_sub_u32 s{sTmp2}, {15 * 128}, s{sTmp}")
        e(f"v_add_u32 v{ZG}, s{sTmp}, v{Z0}")
        e(f"v_add_u32 v{ZG+1}, s{sTmp}, v{Z1}")
        e(f"v_add_u32 v{ZG+2}, s{sTmp2}, v{Z0}")
        e(f"v_add_u32 v{ZG+3}, s{sTmp2}, v{Z1}")
        e(f"v_add_u32 v{ZG+1}, 64, v{ZG+1}")
        e(f"v_add_u32 v{ZG+3}, 64, v{ZG+3}")
        e(f"v_mov_b32 v{Zt}, v{ZG}")
        for t in range(4):
            e(f"v_mov_b32 v{MX+t}, v{NINF}")
        e(f"s_mov_b32 s{sCnt}, 0")
        e(f"s_lshl_b32 s{sSpin}, s{sJ}, 3")
        e(f"s_sub_u32 s{sSpin}, 128, s{sSpin}")
        if self.a.redo:
            e(f"s_mov_b32 s{sSpin}, 1")
        e("L_fb_loop:")
        e = p1.e
        e(f"s_lshr_b32 s{sTmp}, s{sCnt}, 2")
        e(f"s_mul_i32 s{sTmp}, s{sTmp}, {KV_T}")
        e(f"s_and_b32 s{sTmp2}, s{sCnt}, 3")
        e(f"s_lshl_b32 s{sTmp2}, s{sTmp2}, 12")
        e(f"s_add_u32 s{sTmp}, s{sTmp}, s{sTmp2}")
        for u in range(4):
            e(f"buffer_load_dwordx4 {ar(aK+4*u)}, v{vL16}, {srd(rK)}, s{sTmp} offen offset:{u*1024} sc1")
        e("s_waitcnt vmcnt(0)")
        for t in range(4):
            for u in range(4):
                e(f"{MF} {vr(SB+4*t)}, {ar(aK+4*u)}, {vr(Qf(t, u))}, {vr(SB+4*t) if u else 0}")
        e("s_nop 7")
        for t in range(4):
            for o in self.mask_ops(SB + 4 * t, ZG + t, 0, [SB + 4 * t + r for r in range(4)]):
                e(o)
            e(f"v_max3_f32 v{MX+t}, v{MX+t}, v{SB+4*t}, v{SB+4*t+1}")
            e(f"v_max3_f32 v{MX+t}, v{MX+t}, v{SB+4*t+2}, v{SB+4*t+3}")
            e(f"v_subrev_u32 v{ZG+t}, 16, v{ZG+t}")
        e(f"s_add_u32 s{sCnt}, s{sCnt}, 1")
        e(f"s_cmp_lt_u32 s{sCnt}, s{sSpin}")
        e("s_cbranch_scc1 L_fb_loop")
        e = p2.e
        for o in self.rowmax_reduce() + self.att_regs_init() + self.att_sregs_init():
            e(o)
        for which, X in (("K", 0), ("K", 1), ("K", 2), ("V", 0), ("V", 1)):
            for o in self.pad_m0(self.kv_dma(which, X, sMc, sMn)):
                e(o)
        for k in range(9):
            e(f"{MF32} {ar(16*k, 16)}, {vr(ZERO)}, {vr(ZERO)}, 0")
        e("s_waitcnt vmcnt(0)")
        e("s_barrier")
        for o in self.first_k_reads():
            e(o)
        e("s_waitcnt lgkmcnt(0)")
        e("s_branch L_att_go")
        self.ool += [p0, p1, p2]
        return p0, p1, p2

    def att_trace(self, B, G, j, fb=0):
        tr = []
        add = lambda b, i: tr.extend((o, {"i": i, "fb": fb}) for o in b.linear())
        add(G, 0)
        add(B["D0"], 0)
        for i in range(j):
            add(B["Da"], i)
            if i == j - 1:
                add(B["dmask"], i)
            add(B["Db"], i)
        add(B["T3"], j)
        add(B["S3"], j)
        add(B["epiA"], j)
        i = j + 1
        for k in range(7 - j):
            for nm in ("Sa", "Sb", "Sc"):
                add(B[nm], i)
            if k == 6 - j:
                add(B["smask"], i)
            add(B["Sd"], i)
            i += 2
        add(B["One"], i)
        add(B["Dr"], i)
        add(B["check"], i)
        return tr

    def dump_q(self):
        p = Plain("dumpq")
        e = p.e
        e(f"s_lshl_b32 s{sTmp}, s{sB}, 2")
        e(f"s_add_u32 s{sTmp}, s{sTmp}, s{sWv}")
        e(f"s_lshl_b32 s{sTmp}, s{sTmp}, 14")
        e(f"s_add_u32 s{sTmp}, s{sTmp}, {QDUMP_OFF}")
        for u in range(4):
            for rt in range(4):
                e(f"buffer_store_dwordx4 {vr(Qf(rt, u))}, v{vL16}, {srd(rWS)}, s{sTmp} offen offset:{rt*1024}")
            e(f"s_add_u32 s{sTmp}, s{sTmp}, 4096")
        return p

    def dump_stamps(self):
        p = Plain("stamps")
        if self.a.stamps:
            p.e("s_waitcnt vmcnt(0)")
            for o in self.hold_ops("end") + self.stamp_ops() + self.rt_ops(63):
                p.e(o)
            p.e(f"s_lshl_b32 s{sTmp}, s{sB}, 2")
            p.e(f"s_add_u32 s{sTmp}, s{sTmp}, s{sWv}")
            p.e(f"s_lshl_b32 s{sTmp}, s{sTmp}, 8")
            p.e(f"s_add_u32 s{sTmp}, s{sTmp}, {STAMP_OFF}")
            p.e(f"v_lshrrev_b32 v{vL16}, 2, v{vL16}")
            p.e(f"buffer_store_dword v{vSel0}, v{vL16}, {srd(rWS)}, s{sTmp} offen")
            if self.a.dbgout >= 0:
                p.e(f"v_readlane_b32 s{sTmp}, v{vSel0}, 1")
                p.e(f"s_memtime s[{sStamp}:{sStamp+1}]")
                p.e("s_waitcnt lgkmcnt(0)")
                p.e(f"v_readlane_b32 s{sTmp2}, v{vSel0}, 61")
                p.e("s_nop 1")
                p.e(f"s_sub_u32 s{sStamp}, s{sStamp}, s{sTmp2}")
                p.e(f"s_and_b32 s{sStamp}, s{sStamp}, 0x3fffffff")
                p.e(f"v_subrev_u32 v8, s{sTmp}, v{vSel0}")
                p.e(f"v_lshrrev_b32 v8, 2, v8")
                p.e(f"v_writelane_b32 v8, s{sStamp}, 1")
                p.e(f"s_lshl_b32 s{sTmp}, s{sB}, 2")
                p.e(f"s_add_u32 s{sTmp}, s{sTmp}, s{sWv}")
                p.e(f"s_cmp_eq_u32 s{sTmp}, {self.a.dbgout}")
                p.e(f"s_cselect_b32 s{rDBG+2}, 64, 0")
                p.e(f"s_mov_b32 s{sTmp}, 0x10000000")
                p.e(f"v_writelane_b32 v{vL16}, s{sTmp}, 0")
                p.e(f"buffer_store_dword v8, v{vL16}, {srd(rDBG)}, 0 offen")
        return p

    def build(self):
        pro = self.prologue()
        pj = self.proj()
        pj.post += self.stamp_ops() + self.hold_ops("proj")
        pro.ops += self.hold_ops("pro")
        blocks = [pro, pj]
        end = Plain("end")
        lin = lambda bl, c={"i": 0}: [(o, c) for b in bl for o in b.linear()]
        if self.a.upto == "proj":
            blocks += [self.dump_q(), self.dump_stamps(), end]
            traces = [("main", lin(blocks))]
        else:
            S, G = self.prestep()
            for o in self.stamp_ops():
                G.e(o)
            B = self.attention()
            mid, tailb = self.tail(B)
            tailb += [self.dump_stamps(), end]
            blocks += [S, G] + [B[k] for k in ("D0", "Da", "Db", "T3", "S3", "epiA", "Sa", "Sb", "Sc", "Sd", "One", "Dr", "check")] + mid + tailb
            traces = []
            for j in range(8):
                traces.append((f"j{j}", lin([pro, pj, S]) + self.att_trace(B, G, j) + lin(mid) + lin(tailb)))
            f0, f1, f2 = B["fb"]
            for j in (0, 3, 7):
                traces.append((f"fb{j}", lin([pro, pj, S]) + self.att_trace(B, G, j) + lin(mid) + lin([f0, f1, f1, f2])
                               + self.att_trace(B, G, j, 1) + lin(mid, {"i": 0, "fb": 1}) + lin(tailb, {"i": 0, "fb": 1})))
        end.e("L_end:")
        end.e("s_endpgm")
        self.finish(blocks, traces)

    def p3_setup(self, S):
        t = ET
        sal = [f"s_and_b32 s{sRG}, s{sB}, 7", f"s_lshl_b32 s{sRG}, s{sRG}, 2", f"s_bfe_u32 s{sTmp}, s{sB}, 0x20003",
               f"s_add_u32 s{sRG}, s{sRG}, s{sTmp}", f"s_xor_b32 s{sCG}, s{sJ}, {self.a.cgx}", f"s_lshl_b32 s{sCG}, s{sCG}, 7",
               f"s_mul_i32 s{sActH}, s{sRG}, {ACT_RG}", f"s_mul_i32 s{sTmp}, s{sWv}, {8 * ACT_HD}",
               f"s_add_u32 s{sActC}, s{sActH}, s{sTmp}", f"s_mul_i32 s{sTmp}, s{sWv}, {14 * 4096}",
               f"s_add_u32 s{sActH}, s{sActH}, s{sTmp}", f"s_add_u32 s{sActH}, s{sActH}, {ACT_OFF + ACT_HOFF}",
               f"s_add_u32 s{sActC}, s{sActC}, {ACT_OFF}",
               f"s_mul_i32 s{sW2b}, s{sWv}, {14 * 32768}", f"s_add_u32 s{sW2b}, s{sW2b}, s{sCG}",
               f"s_lshl_b32 s{sWob}, s{sWv}, 20", f"s_add_u32 s{sWob}, s{sWob}, s{sCG}",
               f"s_lshl_b32 s{sM0p}, s{sWv}, 15",
               f"s_lshr_b32 s{sTmp}, s{sRG}, 1", f"s_sub_u32 s{sTmp2}, 15, s{sTmp}", f"s_min_u32 s{sTmp}, s{sTmp}, s{sTmp2}",
               f"s_lshl_b32 s{sPollH}, s{sTmp}, 7", f"s_add_u32 s{sPollH}, s{sPollH}, {HFLAG_OFF}",
               f"s_lshl_b32 s{sTmp}, s{sTmp}, 2", f"s_add_u32 s{sTmp}, s{sTmp}, s{sWv}", f"s_lshl_b32 s{sTmp}, s{sTmp}, 7",
               f"s_add_u32 s{sTmp}, s{sTmp}, {CFLAG_OFF}",
               f"s_mov_b32 s{rW}, s{pW2}", f"s_mov_b32 s{rW+1}, s{pW2+1}", f"s_mov_b32 s{rW+2}, {1792 * 1024}",
               f"s_mov_b32 s{rX}, s{pWO}", f"s_mov_b32 s{rX+1}, s{pWO+1}", f"s_mov_b32 s{rX+2}, {4 * MB}",
               f"s_mov_b32 s{rH}, s{pOUT}", f"s_mov_b32 s{rH+1}, s{pOUT+1}", f"s_mov_b32 s{rH+2}, {2 * MB}"]
        g = S.flow(sal, 0, 23)[-1]
        S.put(24, f"s_add_u32 s{sPollC}, s{pWS}, s{sTmp}")
        S.put(24, f"s_addc_u32 s{sPollC+1}, s{pWS+1}, 0")
        val = [f"v_lshrrev_b32 v{t}, 9, v{vL16}", f"v_lshlrev_b32 v{t}, 10, v{t}", f"v_lshlrev_b32 v{t+1}, 15, s{sWv}",
               f"v_sub_u32 v{t}, v{t+1}, v{t}"]
        val += [f"v_add_u32 v{vR[c]}, v{vWRa[c]}, v{t}" for c in range(4)]
        val += [f"v_lshrrev_b32 v{t}, 7, v{vL16}", f"v_and_b32 v{t+1}, 0x7f, v{vW8}", f"v_lshl_add_u32 v{vDm[0]}, v{t}, 10, v{t+1}"]
        val += [f"v_add_u32 v{vDm[i]}, {7168 * i}, v{vDm[0]}" for i in range(1, 4)]
        val += [f"v_lshl_add_u32 v{vAo[0]}, s{sWv}, 10, v{vL16}"]
        for k in range(1, 4):
            val += [f"v_add_u32 v{vAo[k]}, {1024 * k}, v{vAo[0]}", f"v_and_b32 v{vAo[k]}, 0xfff, v{vAo[k]}"]
        val += [f"v_bfe_u32 v{vA}, v{vL16}, 2, 7"]
        S.flow(val, 0, 24)

    def p3_table(self, T, last, N):
        t = ET
        s1 = self.chain_tasks(T, [f"s_xor_b32 s{sTmp}, s{sRG}, s{sJ}", f"s_and_b32 s{sTmp}, s{sTmp}, {self.a.pmask}",
                                  f"s_and_b32 s{sTmp2}, s{sTmp}, 1", f"s_mul_i32 s{sSpin}, s{sWv}, {self.a.pshift}"], 0, 20)
        m = f"s[{sMA}:{sMA+1}]"
        ops = [f"v_lshrrev_b32 v{t}, 4, v{vL16}",
               f"v_add_u32 v{t+1}, s{sSpin}, v{t}",
               f"v_cmp_le_i32 vcc, 14, v{t+1}",
               f"v_subrev_u32 v{t+2}, 14, v{t+1}",
               f"v_cmp_le_i32 {m}, 14, v{t}",
               f"v_cndmask_b32 v{t+1}, v{t+1}, v{t+2}, vcc",
               f"v_cmp_le_i32 vcc, 12, v{t+1}",
               f"v_xor_b32 v{t+3}, s{sTmp}, v{t+1}",
               f"v_xor_b32 v{t+1}, s{sTmp2}, v{t+1}",
               f"v_cndmask_b32 v{t+1}, v{t+3}, v{t+1}, vcc",
               f"v_xor_b32 v{t+2}, s{sTmp}, v{t+2}",
               f"v_and_b32 v{t+2}, 31, v{t+2}",
               f"v_lshl_add_u32 v{t+3}, v{t+1}, 15, s{sW2b}",
               f"v_lshl_add_u32 v{t+4}, v{t+2}, 15, s{sWob}",
               f"v_cndmask_b32 v{vTW}, v{t+3}, v{t+4}, {m}",
               f"v_lshl_add_u32 v{t+3}, v{t+1}, 12, s{sActH}",
               f"v_lshl_add_u32 v{t+4}, v{t+2}, 12, s{sActC}",
               f"v_lshrrev_b32 v{t+2}, 2, v{t+2}",
               f"v_mul_u32_u24 v{t+2}, {ACT_HD - 16384}, v{t+2}",
               f"v_add_u32 v{t+4}, v{t+4}, v{t+2}",
               f"v_cndmask_b32 v{vTA}, v{t+3}, v{t+4}, {m}"]
        self.chain_tasks(T, ops, 21, N - 1, last)

    def p3_off(self, ks):
        return [Op(f"v_readlane_b32 s{sT[2 * (ks & 1)]}, v{vTW}, {ks}"), Op(f"v_readlane_b32 s{sT[2 * (ks & 1) + 1]}, v{vTA}, {ks}")]

    def p3_w(self, ks):
        ops = []
        if ks == 14:
            ops += [Op(f"s_mov_b32 s{rW}, s{pWO}"), Op(f"s_mov_b32 s{rW+1}, s{pWO+1}"), Op(f"s_mov_b32 s{rW+2}, {4 * MB}")]
        ops.append(Op(f"s_add_u32 m0, s{sM0p}, {(ks & 7) * 4096}"))

        def wr(c):
            al = [((w, k), ("P", ks), True) for w in "KV" for k in range(4)] if ks < 8 else []
            return [(("P", ks & 7), ("P", ks, c.get("fb")), False)] + al
        for i in range(4):
            ops.append(Op(f"buffer_load_dwordx4 v{vDm[i]}, {srd(rW)}, s{sT[2 * (ks & 1)]} offen offset:{i * 1024} lds", lds_wr=wr))
        return ops

    def p3_a(self, ks):
        return [Op(f"buffer_load_dwordx4 {vr(AR + 16 * (ks & 7) + 4 * k)}, v{vAo[k]}, {srd(rWS)}, s{sT[2 * (ks & 1) + 1]} offen{self.a.ld}",
                   after="h" if ks < 14 else "c", expect={("s", sT[2 * (ks & 1) + 1]): f"v_readlane_b32 s{sT[2 * (ks & 1) + 1]}, v{vTA}, {ks}"})
                for k in range(4)]

    def p3_reads(self, ks):
        ops = []
        for c in range(4):
            for hh in range(2):
                ops.append(Op(f"ds_read_b64_tr_b16 {vr(WF2 + 16 * (ks & 1) + 4 * c + 2 * hh, 2)}, v{vR[c]} offset:{(ks & 7) * 4096 + hh * 2048}",
                              lds_rd=lambda cx: (("P", ks & 7), ("P", ks, cx.get("fb")), False)))
        return ops

    def one_extra(self, S, T, info, last):
        if self.a.upto == "attn":
            return
        ld, chk, br = self.poll("h", f"buffer_load_dword v{vP}, v{vA}, {srd(rWS)}, s{sPollH} offen sc1", f"v_cmp_eq_u32 vcc, 0, v{vP}",
                                expect={("v", vA): f"v_bfe_u32 v{vA}, v{vL16}, 2, 7", ("s", sPollH): f"s_add_u32 s{sPollH}, s{sPollH}, {HFLAG_OFF}"})
        T.append(Task(ld, 8, 20))
        if self.a.ct3:
            val, ops = self.code_touch(MX + 3, MX + 4, 1024)
            l0 = self.chain_tasks(T, val, 0, 24)
            l1 = Task(ops[0], 0, 26)
            T += [l1, Task(ops[1], 0, 28, [(l0, 1), (l1, 0)])]
        if self.a.t3:
            last = self.chain_tasks(T, [f"s_lshr_b32 s{sKo}, s{sB}, 3", f"s_mul_i32 s{sVo}, s{sKo}, {14 * 1024}",
                                        f"s_mul_i32 s{sTmp}, s{sWv}, {14 * 32768}", f"s_add_u32 s{sVo}, s{sVo}, s{sTmp}",
                                        f"s_sub_u32 s{sTmp}, 384, s{pW2}", f"s_and_b32 s{sTmp}, s{sTmp}, 0x380", f"s_add_u32 s{sVo}, s{sVo}, s{sTmp}",
                                        f"s_lshl_b32 s{sKo}, s{sKo}, 13", f"s_lshl_b32 s{sTmp}, s{sWv}, 20", f"s_add_u32 s{sKo}, s{sKo}, s{sTmp}",
                                        f"s_sub_u32 s{sTmp}, 384, s{pWO}", f"s_and_b32 s{sTmp}, s{sTmp}, 0x380", f"s_add_u32 s{sKo}, s{sKo}, s{sTmp}"], 0, 30)
            l2 = self.chain_tasks(T, [f"v_min_u32 v{MX}, {13 * 16}, v{vL16}", f"v_lshlrev_b32 v{MX}, 6, v{MX}",
                                      f"v_and_b32 v{MX+1}, {7 * 16}, v{vL16}", f"v_lshlrev_b32 v{MX+1}, 6, v{MX+1}"], 0, 30)
            T.append(Task(f"buffer_load_dword v{MX+2}, v{MX}, {srd(rW)}, s{sVo} offen", 0, 40, [(last, 1), (l2, 1)]))
        self.hpoll = chk + [Op("s_nop 0")] + br

    def tail(self, B):
        if self.a.upto == "attn":
            p = Plain("epiB")
            for o in self.stamp_ops():
                p.e(o)
            self.epilogue(p.e, [2, 3])
            return [B["check2"]], [p]
        PD = self.a.pd
        m = Plain("p3pre0")
        for o in self.p3_off(0) + self.p3_off(1) + self.hpoll + self.pad_m0(self.p3_w(0)):
            m.e(o)
        p = Plain("p3pre")
        e = p.e
        for o in self.hold_ops("att"):
            e(o)
        for o in self.stamp_ops():
            e(o)
        lds = self.p3_a(0)
        for ks in range(1, PD):
            lds += self.p3_off(ks + 1) + self.pad_m0(self.p3_w(ks)) + self.p3_a(ks)
        ep = Plain("tmp")
        self.epilogue(ep.e, [2, 3])
        li = [0]

        def take(n):
            while li[0] < len(lds) and n > 0:
                o = lds[li[0]]
                e(o)
                li[0] += 1
                if o.kind in VM:
                    n -= 1
        take(4)
        k = 0
        for o in ep.ops:
            e(o)
            k += 1
            if k % self.a.epistep == 0:
                take(1)
        take(1000)
        sel = ET + 4
        e(f"v_min_u32 v{Zt}, 1, v{vL16}")
        e(f"v_lshlrev_b32 v{Zt}, 28, v{Zt}")
        e(f"v_bfe_u32 v{Zu}, v{vL16}, 4, 4")
        e(f"v_lshlrev_b32 v{Zu}, 10, v{Zu}")
        e(f"v_lshrrev_b32 v{vA}, 8, v{vL16}")
        e(f"v_lshl_add_u32 v{Zu}, v{vA}, 3, v{Zu}")
        e(f"s_lshl_b32 s{sRG}, s{sRG}, 16")
        e(f"s_lshl_b32 s{sTmp}, s{sWv}, 14")
        e(f"s_add_u32 s{sRG}, s{sRG}, s{sTmp}")
        e(f"s_add_u32 s{sRG}, s{sRG}, s{sCG}")
        for o in self.stamp_ops():
            e(o)
        e(W(vm=True))
        for o in self.p3_reads(0):
            e(o)
        for o in self.p3_off(PD + 1) + self.pad_m0(self.p3_w(PD)) + self.p3_a(PD):
            e(o)
        e(W(lg=True))
        S = Seg("p3")
        NK = 46
        for ks in range(NK):
            for c in range(4):
                for k in range(4):
                    d = ar(16 * k + 4 * c)
                    S.mfma(f"{MF} {d}, {vr(WF2 + 16 * (ks & 1) + 4 * c)}, {vr(AR + 16 * (ks & 7) + 4 * k)}, {d if ks else 0}")
        XR = B2 + 32
        for ks in range(NK):
            g0 = 16 * ks
            if ks + 1 < NK:
                S.put(g0, W(vm=True))
                for i, o in enumerate(self.p3_reads(ks + 1)):
                    S.put(g0 + [0, 1, 3, 4, 6, 7, 9, 10][i], o)
            ops = []
            kn = ks + PD + 1
            if ks == PD - 1:
                ops += [Op(f"buffer_atomic_add v{vD}, v{Zt}, {srd(rWS)}, s{sFlagC} offen sc1", needs=[("cst", False)],
                           expect={("v", vD): f"v_mov_b32 v{vD}, 1", ("v", Zt): f"v_lshlrev_b32 v{Zt}, 28, v{Zt}",
                                   ("s", sFlagC): f"s_add_u32 s{sFlagC}, s{sFlagC}, {CFLAG_OFF}"})]
            if kn < NK:
                ops += self.p3_w(kn)
                if kn == 14:
                    keep = lambda l: [setattr(o, "kind", "salu" if o.kind == "valu" else o.kind) or o for o in l]
                    ops += keep(self.stamp_ops()) if self.a.p3stamps else []
                    ops += [Op(f"s_cmp_lt_u32 s{sSpin}, 32", expect={("s", sSpin): f"s_load_dword s{sSpin}, s[{sPollC}:{sPollC+1}], 0x0 glc",
                                                                     ("s", sPollC): f"s_add_u32 s{sPollC}, s{pWS}, s{sTmp}"}),
                            Op("s_cbranch_scc1 L_spin_c"), Op("L_back_c:")]
                    ops += keep(self.stamp_ops()) if self.a.p3stamps else []
                if kn in (6, 22, 30, 38) and self.a.p3stamps:
                    keep = lambda l: [setattr(o, "kind", "salu" if o.kind == "valu" else o.kind) or o for o in l]
                    ops += keep(self.stamp_ops())
                ops += self.p3_a(kn)
            if self.a.t3 and kn + self.a.t3 in (14, 22, 30, 38):
                ops += [Op(f"buffer_load_dword v{MX+2}, v{MX+1}, {srd(rX)}, s{sKo} offen"), Op(f"s_add_u32 s{sKo}, s{sKo}, {256 * 1024}")]
            if ks == NK - PD - 1:
                ops += [Op(f"s_mov_b32 s{rX}, s{pX}"), Op(f"s_mov_b32 s{rX+1}, s{pX+1}"), Op(f"s_mov_b32 s{rX+2}, {2 * MB}")]
                ops += [Op(f"buffer_load_dwordx2 {vr(XR + 2 * c, 2)}, v{Zu}, {srd(rX)}, s{sRG} offen offset:{32 * c}") for c in range(4)]
            S.flow(ops, g0 + 1, g0 + 15)
            if kn + 1 < NK:
                S.flow(self.p3_off(kn + 1), g0 + 3, g0 + 10)
            if kn == 13:
                S.put(g0 + 11, f"s_load_dword s{sSpin}, s[{sPollC}:{sPollC+1}], 0x0 glc", front=True)
                S.put(g0 + 15, "s_waitcnt lgkmcnt(0)")
            elif ks + 1 < NK:
                S.put(g0 + 15, W(lg=True))
        q = Plain("spin_c")
        q.e("L_spin_c:")
        q.e(f"s_mov_b32 s{sCnt}, 0")
        q.e("L_spin2_c:")
        q.e(f"s_load_dword s{sSpin}, s[{sPollC}:{sPollC+1}], 0x0 glc")
        q.e(f"s_add_u32 s{sCnt}, s{sCnt}, 1")
        q.e(f"s_cmp_gt_u32 s{sCnt}, 400000")
        q.e("s_waitcnt lgkmcnt(0)")
        q.e("s_cbranch_scc1 L_back_c")
        q.e(f"s_cmp_lt_u32 s{sSpin}, 32")
        q.e("s_cbranch_scc0 L_back_c")
        q.e("s_sleep 2")
        q.e("s_branch L_spin2_c")
        self.ool.append(q)
        f = Plain("final")
        e = f.e
        for o in self.stamp_ops():
            e(o)
        a0 = AR
        e(f"v_add_u32 v{a0}, s{sM0p}, v{vL16}")
        for k in range(1, 4):
            e(f"v_subrev_u32 v{a0+k}, {32768 * k}, v{a0}")
            e(f"v_and_b32 v{a0+k}, 0x1ffff, v{a0+k}")
        e("s_nop 3")
        for k in range(1, 4):
            for c in range(4):
                e(f"ds_write_b128 v{a0}, {ar(16 * k + 4 * c)} offset:{k * 4096 + c * 1024}", lds_wr=(("P", k), "red", False))
        O = AR + 16
        for i in range(16):
            e(f"v_accvgpr_read_b32 v{O+i}, a{i}")
        e(W(vm=True))
        U = AR + 32
        for i in range(8):
            e(f"v_lshlrev_b32 v{U+2*i}, 16, v{XR+i}")
            e(f"v_and_b32 v{U+2*i+1}, 0xffff0000, v{XR+i}")
        for i in range(8):
            e(f"v_pk_add_f32 {vr(O+2*i, 2)}, {vr(O+2*i, 2)}, {vr(U+2*i, 2)}")
        e(W(lg=True))
        e("s_barrier")
        R = AR + 48
        for c in range(4):
            for k in range(1, 4):
                e(f"ds_read_b128 {vr(R + 16 * (k - 1) + 4 * c)}, v{a0+k} offset:{k * 4096 + c * 1024}", lds_rd=(("P", k), "red", True))
        for c in range(4):
            e(W(lg=True))
            for k in range(3):
                for h in range(2):
                    e(f"v_pk_add_f32 {vr(O+4*c+2*h, 2)}, {vr(O+4*c+2*h, 2)}, {vr(R+16*k+4*c+2*h, 2)}")
            for h in range(2):
                e(f"v_cvt_pk_bf16_f32 v{U+2*c+h}, v{O+4*c+2*h}, v{O+4*c+2*h+1}")
            e(f"buffer_store_dwordx2 {vr(U+2*c, 2)}, v{Zu}, {srd(rH)}, s{sRG} offen offset:{32 * c}")
        return [m, B["check2"]], [p, S, f]

    def finish(self, blocks, traces):
        for it in range(2):
            for name, tr in traces:
                Tracer(name, tr).run(resolve=True)
        soft = 0
        for name, tr in traces:
            T = Tracer(name, tr)
            T.run(resolve=False)
            soft += T.hazards()
            T.intent()
        for b in blocks:
            n = b.n() if isinstance(b, Seg) else 0
            print(f"  block {b.name:12s} mfma={n:5d} est.cycles={b.cycles():6d}" + (f" (ideal {16*n})" if n else ""))
        print("  mfma distances satisfied by pipe timing only:", soft, " stamps:", self.nstamp)
        hdr = open(self.a.ref).read().split("; Override launch")[0]
        out = [hdr.rstrip("\n"),
               "; generated by gen/gen.py (hand-written generator)",
               f"; @launch grid=(256,1,1) block=(256,1,1) lds={LDS_BYTES}",
               '.amdgcn_target "amdgcn-amd-amdhsa--gfx950"', ".text", f".globl {NAME}_kernel", ".p2align 8",
               f".type {NAME}_kernel,@function", f"{NAME}_kernel:"]
        for b in blocks + self.ool:
            out.append(f"; ---- {b.name} ----")
            for o in b.linear():
                t = o.render()
                out.append(t if o.kind == "label" else " " + t)
        out += ["L_code_end:", " s_endpgm"]
        out += ['.section .rodata,"a"', ".p2align 6", f".amdhsa_kernel {NAME}_kernel",
                "  .amdhsa_next_free_vgpr 512", "  .amdhsa_next_free_sgpr 102", "  .amdhsa_accum_offset 256",
                "  .amdhsa_group_segment_fixed_size 0", "  .amdhsa_kernarg_size 104", "  .amdhsa_user_sgpr_count 2",
                "  .amdhsa_user_sgpr_kernarg_segment_ptr 1", "  .amdhsa_system_sgpr_workgroup_id_x 1", ".end_amdhsa_kernel", ""]
        open(self.a.out, "w").write("\n".join(out))


def args():
    ap = argparse.ArgumentParser()
    ap.add_argument("--out", default="k.s")
    ap.add_argument("--ref", default=f"cdna_kernels/{NAME}.s.ref")
    ap.add_argument("--upto", default="full")
    ap.add_argument("--stamps", action="store_true")
    ap.add_argument("--finestamps", action="store_true")
    ap.add_argument("--wld", default="")
    ap.add_argument("--tld", default="")
    ap.add_argument("--prostamps", action="store_true")
    ap.add_argument("--rmask", type=int, default=3)
    ap.add_argument("--jmask", type=int, default=7)
    ap.add_argument("--ctouch", type=int, default=1)
    ap.add_argument("--wtouch", type=int, default=1)
    ap.add_argument("--otouch", type=int, default=1)
    ap.add_argument("--quick", type=int, default=4)
    ap.add_argument("--pd", type=int, default=3)
    ap.add_argument("--win1", type=int, default=0)
    ap.add_argument("--xld", default=" nt")
    ap.add_argument("--lead", default=" nt")
    ap.add_argument("--t23", default="")
    fl = lambda x: [float(v) for v in x.split(",")]
    ap.add_argument("--tg", type=fl, default=fl("21.5,25.5,26,21"))
    ap.add_argument("--w1early", type=int, default=5)
    ap.add_argument("--lite", action="store_true")
    ap.add_argument("--tlb", type=int, default=0)
    ap.add_argument("--hold", default="")
    ap.add_argument("--redo", action="store_true")
    ap.add_argument("--dbgout", type=int, default=-1)
    ap.add_argument("--ct2", type=fl, default=fl("44,92"))
    ap.add_argument("--ct3", type=int, default=1)
    ap.add_argument("--t3", type=int, default=6)
    ap.add_argument("--tnt", type=fl, default=fl("0,0,0"))
    ap.add_argument("--clead", type=float, default=4.5)
    ap.add_argument("--wlead", type=float, default=3)
    ap.add_argument("--wstart", type=fl, default=fl("19,23,31,39,47,55,63,71,79,87"))
    ap.add_argument("--wstep", type=fl, default=fl("0.3,0.3,1,1,1,1,1,1,1,1"))
    ap.add_argument("--kst", type=fl, default=fl("35,1.35"))
    ap.add_argument("--vst", type=fl, default=fl("70.5,1.2"))
    ap.add_argument("--hst", type=fl, default=fl("84,3.6"))
    ap.add_argument("--xn", type=fl, default=fl("40,0.5"))
    ap.add_argument("--kv", type=fl, default=fl("96,3,109"))
    ap.add_argument("--kflag", type=int, default=8)
    ap.add_argument("--vflag", type=int, default=11)
    ap.add_argument("--vmin", type=int, default=3)
    ap.add_argument("--vrate", type=float, default=4.4)
    ap.add_argument("--vburst", type=float, default=6)
    ap.add_argument("--rt", action="store_true")
    ap.add_argument("--p3stamps", action="store_true")
    ap.add_argument("--cgx", type=int, default=0)
    ap.add_argument("--pmask", type=int, default=3)
    ap.add_argument("--pshift", type=int, default=0)
    ap.add_argument("--epistep", type=int, default=12)
    ap.add_argument("--verbose", action="store_true")
    ap.add_argument("--ld", default=" sc1")
    ap.add_argument("--st", default=" sc1")
    return ap.parse_args()


if __name__ == "__main__":
    Gen(args()).build()
```

```python
import sys, struct, argparse
from fw import *

NAME = "parallel_sum__compressed_kv_cla__dense_activation_mish__prompt"
MB = 1 << 20
KB = 1024
XN_RT = 17 * KB
KV_T = 17 * KB
KV_H = 32 * KV_T + 5 * KB
ACT_HD = 17 * KB
ACT_HOFF = 32 * ACT_HD
ACT_RG = ACT_HOFF + 56 * 4096 + 5 * KB
XN_OFF = 0
K_OFF = 3 * MB
V_OFF = 21 * MB + 10 * KB
ACT_OFF = 39 * MB
FLAG_OFF = 66 * MB
HFLAG_OFF = FLAG_OFF + 4096
CFLAG_OFF = FLAG_OFF + 5120
XCH_OFF = 67 * MB
XCH_W = 7 * KB
STAMP_OFF = 75 * MB
QDUMP_OFF = 76 * MB
WS_BYTES = 256 * MB

SLOT = [128 * 1024, 0, 32 * 1024]
CST = 64 * 1024
VRING = 0
KRING = 64 * 1024
SPARE = 128 * 1024
LDS_BYTES = 160 * 1024


def f32(x):
    return "0x%08x" % struct.unpack("<I", struct.pack("<f", x))[0]


LOG2E = 1.4426950408889634
SCALE = LOG2E * 128 ** -0.5

pX, pC, pWQ, pWK, pWV, pWO, pBX, pW1, pB1, pW2, pOUT, pDBG, pWS = [4 + 2 * i for i in range(13)]
rW, rC, rWS, rH, rDBG, rX, rV = 32, 36, 40, 44, 48, 52, 56
rK = rC
sB = 2
sWv, sH, sJ = 60, 61, 62
sWp8, sWp1 = 63, 64
sT = [65, 66, 67, 68]
sCb = 69
sM0c, sM0w = 70, 71
sKVst = 72
sRT = [73, 74, 75, 76]
sAct = [77, 78, 79, 80]
sFlagKV, sFlagH, sFlagC = 81, 82, 83
sSC = 84
sTmp, sTmp2 = 85, 86
sSpin = 87
sBad = 88
sKo, sVo = 90, 91
sMc, sMn = 92, 93
sCnt = 94
sFb = 95
sStamp = 96
sMask = 98
sPollKV = 3
sL2E = 30
sWp1b = 31
sPC = 16
sKa, sKb, sVa, sVb = 98, 99, 100, 101
sM0j = 88
sR = 89


def srd(r):
    return f"s[{r}:{r+3}]"


def vr(b, n=4):
    return f"v[{b}:{b+n-1}]" if n > 1 else f"v{b}"


def ar(b, n=4):
    return f"a[{b}:{b+n-1}]" if n > 1 else f"a{b}"


vSel0 = 0
vL16 = 1
vW8, vW1 = 2, 3
vCD = [4, 5]
vCR = [6, 7]
vWRa = [8, 9, 10, 11]
vWRb = [12, 13, 14, 15]
B0, B1, B2 = 16, 80, 144
WF = 208
T0 = 240

MF = "v_mfma_f32_16x16x32_bf16"
MF32 = "v_mfma_f32_32x32x16_bf16"
vKc, vKn, vVc, vVn = 4, 5, 6, 7
SB = B2
BANK = B2 + 16
NEG = {1: B2 + 32, 2: B2 + 36, 3: B2 + 40}
NEG3L = B2 + 44
NEG0 = B2 + 48
MX = B2 + 52
ZERO, ONES = WF, WF + 4
ET = WF + 8
Z0, Z1, NINF, vP, vA, vD, Zt, Zu = [T0 + 8 + i for i in range(8)]
aO, aL, aK, aV = 0, 128, 144, 176
sMA, sMB = 98, 100
LAT = 7
vR = [[8, 9, 10, 11], [4, 5, 6, 7], [ET + 16 + i for i in range(4)]]
vDm = [12, 13, 14, 15]
vAo = [[T0 + i for i in range(4)], [T0 + 4 + i for i in range(4)], [ET + 20 + i for i in range(4)]]
PSLOT = [128 * 1024, 64 * 1024, 96 * 1024, 0, 32 * 1024]
FA, FW = B0, B1
ACC = B2
XR = WF
sRG, sCG = sRT[0], sRT[1]
sActH, sActC = sRT[2], sRT[3]
sW2b, sWob = sWp8, sWp1
sM0p = sCb
sXch = sKVst
sPollC = 70
NST = 23


def Qf(t, u):
    return B1 + 32 * (u & 1) + 16 * (u >> 1) + 4 * t


def Pf(par, t, kg):
    return B0 + 32 * par + 8 * t + 4 * kg


def negsrc(t):
    return NEG0 if t == 0 else NEG[t]


class Gen:
    def __init__(self, a):
        self.a = a
        self.blocks = []
        self.ool = []
        self.nstamp = 0
        self.rot = 0
        self.m0 = None
        self.nct = 0

    def st(self):
        self.rot = (self.rot + 1) % 4
        return sT[self.rot]

    def stamp_ops(self):
        if not self.a.stamps or self.a.lite:
            return []
        i = self.nstamp
        self.nstamp += 1
        if self.a.rt:
            return [Op(f"s_memrealtime s[{sStamp}:{sStamp+1}]"), Op("s_waitcnt lgkmcnt(0)"), Op(f"s_mul_i32 s{sStamp}, s{sStamp}, 4"),
                    Op(f"s_bitset1_b32 s{sStamp}, 31"), Op(f"s_bitset0_b32 s{sStamp}, 30"),
                    Op(f"v_writelane_b32 v{vSel0}, s{sStamp}, {i + 1}")]
        return [Op(f"s_memtime s[{sStamp}:{sStamp+1}]"), Op("s_waitcnt lgkmcnt(0)"),
                Op(f"s_bitset1_b32 s{sStamp}, 31"), Op(f"s_bitset0_b32 s{sStamp}, 30"), Op(f"s_bitset0_b32 s{sStamp}, 0"), Op(f"s_bitset0_b32 s{sStamp}, 1"),
                Op(f"v_writelane_b32 v{vSel0}, s{sStamp}, {i + 1}")]

    def hold_ops(self, where):
        if self.a.hold != where:
            return []
        L = ["s_nop 1", f"v_readlane_b32 s{sSpin}, v{vSel0}, 62", "L_hold:", f"s_memrealtime s[{sStamp}:{sStamp+1}]", "s_waitcnt lgkmcnt(0)",
             f"s_lshl_b32 s{sStamp}, s{sStamp}, 2", f"s_sub_u32 s{sStamp}, s{sStamp}, s{sSpin}", f"s_and_b32 s{sStamp}, s{sStamp}, 0x3fffffff",
             f"s_cmp_lt_u32 s{sStamp}, 40000", "s_cbranch_scc1 L_hold"]
        return [Op(x) for x in L]

    def rt_ops(self, lane):
        if not self.a.stamps:
            return []
        return [Op(f"s_memrealtime s[{sStamp}:{sStamp+1}]"), Op("s_waitcnt lgkmcnt(0)"), Op(f"s_lshl_b32 s{sStamp}, s{sStamp}, 2"),
                Op(f"s_bitset1_b32 s{sStamp}, 31"), Op(f"s_bitset0_b32 s{sStamp}, 30"),
                Op(f"v_writelane_b32 v{vSel0}, s{sStamp}, {lane}")]

    def set_m0(self, text):
        if text == self.m0:
            return []
        self.m0 = text
        return [Op(text)]

    def mk_srd(self, e, r, p, nbytes):
        e(f"s_mov_b32 s{r}, s{p}")
        e(f"s_mov_b32 s{r+1}, s{p+1}")
        e(f"s_mov_b32 s{r+2}, {nbytes}")
        e(f"s_mov_b32 s{r+3}, 0x20000")

    def w_dma(self, n, i):
        slot = (n + 2) % 3
        ops = []
        if i == 0 and n in (4, 8, 10):
            p = {4: pWV, 8: pW1, 10: pWQ}[n]
            ops += [Op(f"s_mov_b32 s{rW}, s{p}"), Op(f"s_mov_b32 s{rW+1}, s{p+1}")]
            if n == 8:
                ops.append(Op(f"s_min_u32 s{rW+2}, s{rH+2}, {512*3584}"))
            if n == 10:
                s = self.st()
                ops += [Op(f"s_mov_b32 s{rW+2}, {4*MB}"), Op(f"s_lshr_b32 s{s}, s{sR}, 1"), Op(f"s_lshl_b32 s{s}, s{s}, 18"),
                        Op(f"s_xor_b32 s{sWp8}, s{sWp8}, s{s}"), Op(f"s_lshr_b32 s{s}, s{sWv}, 1"),
                        Op(f"s_mul_i32 s{s}, s{s}, {(1 << 20) + (1 << 7)}"), Op(f"s_xor_b32 s{sWp8}, s{sWp8}, s{s}")]
        s = self.st()
        wr = [(("W", slot), ("W", n), True)]
        if n == 2:
            wr += [(("X", 0), ("W", n), False), (("X", 1), ("W", n), False)]
        if n in (8, 9):
            ops += self.set_m0(f"s_add_u32 m0, s{sM0w}, {SLOT[slot] + (i >> 2) * 4096}")
            off = (n - 8) * 256 * 3584 + (16 * ((i >> 1) & 1) + 4 * (i & 1)) * 3584 - (i & 3) * 1024
            ops.append(Op(f"s_add_u32 s{s}, s{sWp1b if i >> 2 else sWp1}, {off}"))
            ops.append(Op(f"buffer_load_dwordx4 v{vW1}, {srd(rW)}, s{s} offen offset:{(i & 3) * 1024}{self.a.wld} lds", lds_wr=wr))
        else:
            base = (n % 4) << 20 if n < 8 else ((n & 1) << 21) + (((n - 10) >> 1) << 7)
            ops += self.set_m0(f"s_xor_b32 m0, s{sM0j}, {SLOT[slot] + i * 1024}")
            ops.append(Op(f"s_xor_b32 s{s}, s{sWp8}, {base + (16 * (i >> 1) + 4 * (i & 1)) * 8192}"))
            fl = self.a.lead if (i == 0 and n < 2) else self.a.wld
            ops.append(Op(f"buffer_load_dwordx4 v{vW8}, {srd(rW)}, s{s} offen{fl} lds", lds_wr=wr))
        return ops

    def c_region(self, u):
        if u < 4:
            return ("C", u)
        if u == 4:
            return ("X", 1)
        return ("C", (u - 5) % 4)

    def c_dma(self, u):
        kq, p0, p1 = u >> 2, u & 1, (u >> 1) & 1
        reg = self.c_region(u)
        s, s2 = self.st(), self.st()
        if reg[0] == "C":
            m = f"s_add_u32 m0, s{sM0c}, {CST + reg[1] * 4096}"
        else:
            m = f"s_add_u32 m0, s{sM0w}, {SLOT[1] + reg[1] * 4096}"
        ops = self.set_m0(m)
        ops += [Op(f"s_xor_b32 s{s}, s{sCb}, {(p1 << 15) + (kq << 8) + (p0 << 7)}"), Op(f"s_add_u32 s{s2}, s{s}, 14336")]
        for q in range(4):
            ops.append(Op(f"buffer_load_dwordx4 v{vCD[q & 1]}, {srd(rC)}, s{s2 if q >> 1 else s} offen offset:{q * 1024} lds",
                          lds_wr=(reg, ("c", u), False)))
        return ops

    def c_reads(self, u):
        kq, p0, p1 = u >> 2, u & 1, (u >> 1) & 1
        reg = self.c_region(u)
        ops = []
        for t in range(2):
            for sb in range(2):
                a = vCR[sb] if reg[0] == "C" else T0 + 14 + sb
                ops.append(Op(f"ds_read_b128 {ar(64*kq + 16*(2*p1 + t) + 4*(2*p0 + sb))}, v{a} offset:{reg[1] * 4096 + t * 2048}",
                              lds_rd=(reg, ("c", u), False)))
        return ops

    def w_reads(self, G):
        n, gi = G >> 3, G & 7
        slot = (n + 2) % 3
        hf, c4 = gi >> 2, gi & 3
        a = (vWRb if slot == 0 else vWRa)[c4]
        base = (0 if slot == 0 else SLOT[slot]) + hf * 16384
        ops = []
        for s in range(4):
            for hh in range(2):
                d = WF + 16 * (G & 1) + 4 * s + 2 * hh
                ops.append(Op(f"ds_read_b64_tr_b16 {vr(d, 2)}, v{a} offset:{base + s * 4096 + hh * 1024}",
                              lds_rd=(("W", slot), ("W", n), True)))
        return ops

    def code_touch(self, vt, vd, skip):
        self.nct += 1
        lab = f"L_pc{self.nct}"
        val = [f"v_lshrrev_b32 v{vt}, 9, v{vL16}", f"v_lshlrev_b32 v{vt}, 14, v{vt}", f"v_lshl_add_u32 v{vt}, s{sWv}, 7, v{vt}",
               f"v_lshrrev_b32 v{vd}, 3, s{sB}", f"v_lshl_add_u32 v{vt}, v{vd}, 9, v{vt}", f"v_add_u32 v{vt}, {skip}, v{vt}",
               f"v_min_u32 v{vt}, L_code_end-{lab}-4, v{vt}"]
        o = Op(f"s_getpc_b64 s[{sPC}:{sPC+1}]")
        o.text += f"\n{lab}:"
        return val, [o, Op(f"global_load_dword v{vd}, v{vt}, s[{sPC}:{sPC+1}]")]

    def pad_m0(self, ops):
        out = []
        for o in ops:
            if o.kind == "dma" and out and ("s", "m0") in out[-1].writes:
                out.append(Op("s_nop 0"))
            out.append(o)
        return out

    def poll(self, name, load_text, cmp_text, expect=None, after=None, mid=()):
        p = Plain("spin_" + name)
        p.e(f"L_spin_{name}:")
        p.e(f"s_mov_b32 s{sSpin}, 0")
        p.e(f"L_spin2_{name}:")
        p.e("s_sleep 4")
        p.e(load_text)
        p.e(f"s_add_u32 s{sSpin}, s{sSpin}, 1")
        p.e(f"s_cmp_gt_u32 s{sSpin}, 200000")
        p.e("s_waitcnt vmcnt(0)")
        p.e(f"s_cbranch_scc1 L_back_{name}")
        for x in mid:
            p.e(x)
        p.e(cmp_text)
        p.e("s_nop 1")
        p.e(f"s_cbranch_vccnz L_spin2_{name}")
        p.e(f"s_branch L_back_{name}")
        self.ool.append(p)
        ldo = Op(load_text, expect=expect, after=after)
        mids = [Op(x) for x in mid]
        for o in mids:
            o.expect = {r: load_text for r in o.reads if r in ldo.writes}
        return (ldo, [W(vm=True)] + mids + [Op(cmp_text, expect={("v", vP): mid[-1] if mid else load_text})],
                [Op(f"s_cbranch_vccnz L_spin_{name}", expect=expect), Op(f"L_back_{name}:")])

    def prologue(self):
        p = Plain("prologue")
        e = p.e
        e(f"s_cmp_ge_u32 s{sB}, 256")
        e("s_cbranch_scc1 L_end")
        e("s_load_dwordx16 s[4:19], s[0:1], 0")
        e("s_load_dwordx8 s[20:27], s[0:1], 64")
        e("s_load_dwordx2 s[28:29], s[0:1], 96")
        if self.a.tlb:
            e(f"s_bfe_u32 s90, s{sB}, 0x40003")
            e("s_min_u32 s90, s90, 11")
            e("s_lshl_b32 s91, s90, 3")
            e("s_load_dwordx2 s[92:93], s[0:1], s91")
        t = T0
        if self.a.ctouch:
            e(f"s_getpc_b64 s[{sStamp}:{sStamp+1}]")
            e("L_pc:")
            e(f"s_lshr_b32 s{sTmp}, s{sB}, 3")
            e(f"s_lshl_b32 s{sTmp}, s{sTmp}, 9")
            e(f"v_and_b32 v{t+6}, 7, v0")
            e(f"v_lshl_add_u32 v{t+11}, v{t+6}, 14, s{sTmp}")
            e(f"v_and_b32 v{t+6}, 0xc0, v0")
            e(f"v_lshl_add_u32 v{t+11}, v{t+6}, 1, v{t+11}")
            e(f"v_min_u32 v{t+11}, L_code_end-L_pc-4, v{t+11}")
            e(f"global_load_dword v{B2+63}, v{t+11}, s[{sStamp}:{sStamp+1}]")
        e(f"v_lshrrev_b32 v{t}, 6, v0")
        e(f"v_and_b32 v{t+1}, 63, v0")
        e(f"v_readfirstlane_b32 s{sWv}, v{t}")
        e(f"v_lshlrev_b32 v{vL16}, 4, v{t+1}")
        e(f"v_min_u32 v0, 1, v0")
        e(f"v_lshlrev_b32 v{vSel0}, 28, v0")
        for o in self.rt_ops(62) + self.stamp_ops():
            e(o)
        if self.a.dbgout >= 0:
            for x in (f"s_memtime s[{sStamp}:{sStamp+1}]", "s_waitcnt lgkmcnt(0)", f"s_bitset1_b32 s{sStamp}, 31", f"s_bitset0_b32 s{sStamp}, 30",
                      f"s_bitset0_b32 s{sStamp}, 0", f"s_bitset0_b32 s{sStamp}, 1", f"v_writelane_b32 v{vSel0}, s{sStamp}, 61"):
                e(x)
        e(f"s_and_b32 s{sH}, s{sB}, 7")
        e(f"s_lshl_b32 s{sH}, s{sH}, 2")
        e(f"s_bfe_u32 s{sTmp}, s{sB}, 0x20003")
        e(f"s_add_u32 s{sH}, s{sH}, s{sTmp}")
        e(f"s_lshr_b32 s{sJ}, s{sB}, 5")
        e(f"v_and_b32 v{t+2}, 31, v{t+1}")
        e(f"v_lshrrev_b32 v{t+3}, 5, v{t+1}")
        e(f"v_lshlrev_b32 v{t+4}, 10, v{t+3}")
        e(f"v_lshl_add_u32 v{t+4}, v{t+2}, 4, v{t+4}")
        e(f"s_lshl_b32 s{sTmp}, s{sB}, 13")
        e(f"s_lshl_b32 s{sTmp2}, s{sWv}, 11")
        e(f"s_add_u32 s{sTmp}, s{sTmp}, s{sTmp2}")
        e(f"v_lshrrev_b32 v{t+5}, 3, v{t+1}")
        e(f"v_and_b32 v{t+6}, 7, v{t+1}")
        e(f"v_lshrrev_b32 v{t+7}, 4, v{t+1}")
        e(f"v_xor_b32 v{t+8}, v{t+6}, v{t+7}")
        e(f"v_lshlrev_b32 v{t+8}, 4, v{t+8}")
        e(f"v_lshl_add_u32 v{vCD[0]}, v{t+5}, 10, v{t+8}")
        e(f"v_xor_b32 v{vCD[1]}, 64, v{vCD[0]}")
        e(f"v_add_u32 v{vCD[1]}, {8192 - 1024}, v{vCD[1]}")
        e(f"s_lshl_b32 s{sCb}, s{sJ}, 18")
        e(f"s_lshl_b32 s{sTmp2}, s{sWv}, 16")
        e(f"s_add_u32 s{sCb}, s{sCb}, s{sTmp2}")
        e(f"s_and_b32 s{sR}, s{sH}, {self.a.rmask}")
        e(f"s_mul_i32 s{sTmp2}, s{sR}, {(1 << 14) + (1 << 7)}")
        e(f"s_and_b32 s{sTmp2}, s{sTmp2}, {(1 << 15) + (1 << 7)}")
        e(f"s_add_u32 s{sCb}, s{sCb}, s{sTmp2}")
        e(f"s_lshl_b32 s{sM0c}, s{sWv}, 14")
        e(f"s_lshl_b32 s{sM0w}, s{sWv}, 13")
        e(f"s_and_b32 s{sSpin}, s{sJ}, {self.a.jmask}")
        e(f"s_lshl_b32 s{sM0j}, s{sSpin}, 10")
        e(f"s_add_u32 s{sM0j}, s{sM0j}, s{sM0w}")
        e(f"v_and_b32 v{t+9}, 3, v{t+5}")
        e(f"v_lshl_add_u32 v{t+9}, v{t+3}, 3, v{t+9}")
        e(f"v_lshlrev_b32 v{t+10}, 1, v{t+7}")
        e(f"v_xor_b32 v{t+10}, v{t+10}, v{t+6}")
        e(f"v_lshlrev_b32 v{t+10}, 4, v{t+10}")
        e(f"v_lshl_add_u32 v{vW8}, v{t+9}, 13, v{t+10}")
        e(f"v_mul_u32_u24 v{vW1}, 3584, v{t+9}")
        e(f"v_add_u32 v{vW1}, v{vW1}, v{t+10}")
        e(f"s_xor_b32 s{sWp8}, s{sWv}, s{sR}")
        e(f"s_and_b32 s{sWp8}, s{sWp8}, 1")
        e(f"s_lshl_b32 s{sWp8}, s{sWp8}, 19")
        e(f"s_and_b32 s{sTmp2}, s{sSpin}, 1")
        e(f"s_lshl_b32 s{sTmp2}, s{sTmp2}, 15")
        e(f"s_add_u32 s{sWp8}, s{sWp8}, s{sTmp2}")
        e(f"s_lshr_b32 s{sTmp2}, s{sSpin}, 1")
        e(f"s_lshl_b32 s{sTmp2}, s{sTmp2}, 17")
        e(f"s_add_u32 s{sWp8}, s{sWp8}, s{sTmp2}")
        e(f"s_lshr_b32 s{sTmp2}, s{sWv}, 1")
        e(f"s_lshl_b32 s{sTmp2}, s{sTmp2}, 7")
        e(f"s_add_u32 s{sWp8}, s{sWp8}, s{sTmp2}")
        e(f"s_lshl_b32 s{sTmp2}, s{sH}, 8")
        e(f"s_add_u32 s{sWp8}, s{sWp8}, s{sTmp2}")
        e("s_waitcnt lgkmcnt(0)")
        ps = lambda: [e(o) for o in (self.stamp_ops() if self.a.prostamps else [])]
        ps()
        self.mk_srd(e, rX, pX, 2 * MB)
        X = B2
        e(f"buffer_load_dwordx4 {vr(X)}, v{t+4}, {srd(rX)}, s{sTmp} offen{self.a.xld}")
        e(f"buffer_load_dwordx4 {vr(X+4)}, v{t+4}, {srd(rX)}, s{sTmp} offen offset:512{self.a.xld}")
        self.mk_srd(e, rC, pC, 2 * MB)
        self.mk_srd(e, rW, pWK, 4 * MB)
        if self.a.win1:
            e(f"s_lshl_b32 s{sTmp}, s{sJ}, 5")
            e(f"s_add_u32 s{sTmp}, s{sTmp}, s{sH}")
            e(f"s_lshl_b32 s{sTmp}, s{sTmp}, 2")
            e(f"s_add_u32 s{sTmp}, s{sTmp}, s{sWv}")
            e(f"s_lshl_b32 s{sTmp}, s{sTmp}, 11")
            e(f"v_and_b32 v{t+11}, 15, v{t+1}")
            e(f"v_lshlrev_b32 v{t+11}, 7, v{t+11}")
            e(f"buffer_load_dword v{B2+62}, v{t+11}, {srd(rC)}, s{sTmp} offen")
            for o in self.pad_m0(self.w_dma(0, 0) + self.w_dma(1, 0)):
                e(o)
            e(f"v_and_b32 v{t+11}, 1, v{t+1}")
            e(f"v_lshlrev_b32 v{t+11}, 20, v{t+11}")
            e(f"v_lshl_add_u32 v{t+11}, v{t+9}, 13, v{t+11}")
            e(f"s_add_u32 s{sTmp}, s{sWp8}, {2 << 20}")
            e(f"buffer_load_dword v{B2+61}, v{t+11}, {srd(rW)}, s{sTmp} offen{self.a.t23}")
            later = [lambda: self.c_dma(0), lambda: self.c_dma(1)]
        else:
            for o in self.pad_m0(self.w_dma(0, 0) + self.c_dma(0)):
                e(o)
            later = [lambda: self.c_dma(1)]
        later += [lambda i=i: self.w_dma(0, i) for i in range(1, 4)] + [lambda: self.c_dma(2)]
        later += [lambda i=i: self.w_dma(0, i) for i in range(4, 8)] + [lambda: self.c_dma(3)]
        if self.a.tlb:
            e("s_sub_u32 s90, s90, 2")
            e("s_cmp_lt_u32 s90, 4")
            e(f"s_cselect_b32 s90, s{sB}, 0")
            e("s_and_b32 s90, s90, 128")
            e("s_lshl_b32 s90, s90, 14")
            e("s_add_u32 s92, s92, s90")
            e("s_addc_u32 s93, s93, 0")
            e("s_load_dword s94, s[92:93], 0x0")
            e(f"s_lshr_b32 s90, s{sB}, 3")
            e(f"s_mul_i32 s91, s90, {ACT_RG}")
            e(f"s_add_u32 s91, s91, {ACT_OFF + ACT_RG - 1024}")
            e(f"s_mul_i32 s98, s{sH}, {KV_H}")
            e(f"s_mul_i32 s99, s{sJ}, {4 * KV_T}")
            e("s_add_u32 s98, s98, s99")
            e(f"s_add_u32 s99, s98, {V_OFF + 16384}")
            e(f"s_add_u32 s98, s98, {K_OFF + 16384}")
            e(f"s_mul_i32 s90, s90, {4 * XN_RT}")
            e(f"s_add_u32 s90, s90, {XN_OFF + 3 * XN_RT + 16384}")
            e(f"s_cmp_eq_u32 s{sWv}, 1")
            e("s_cselect_b32 s91, s98, s91")
            e(f"s_cmp_eq_u32 s{sWv}, 2")
            e("s_cselect_b32 s91, s99, s91")
            e(f"s_cmp_eq_u32 s{sWv}, 3")
            e("s_cselect_b32 s91, s90, s91")
            e(f"s_add_u32 s90, s{pWS}, s91")
            e(f"s_addc_u32 s91, s{pWS+1}, 0")
            e("s_load_dword s87, s[90:91], 0x0")
        for o in self.stamp_ops():
            e(o)
        mark = len(p.ops)
        self.mk_srd(e, rWS, pWS, WS_BYTES)
        self.mk_srd(e, rDBG, pDBG, 256)
        self.mk_srd(e, rH, pWS, WS_BYTES)
        e(f"s_cmp_lt_u32 s{sH}, 28")
        e(f"s_cselect_b32 s{rH+2}, s{rH+2}, 0")
        e(f"s_lshl_b32 s{sPollKV}, s{sH}, 7")
        e(f"s_add_u32 s{sPollKV}, s{sPollKV}, {FLAG_OFF}")
        e(f"s_lshl_b32 s{sTmp}, s{sJ}, 2")
        e(f"s_add_u32 s{sFlagKV}, s{sPollKV}, s{sTmp}")
        e(f"s_lshl_b32 s{sTmp}, s{sJ}, 5")
        e(f"s_add_u32 s{sTmp}, s{sTmp}, s{sH}")
        e(f"s_lshl_b32 s{sFlagH}, s{sTmp}, 2")
        e(f"s_add_u32 s{sFlagH}, s{sFlagH}, {HFLAG_OFF}")
        e(f"s_lshr_b32 s{sFlagC}, s{sTmp}, 3")
        e(f"s_lshl_b32 s{sFlagC}, s{sFlagC}, 7")
        e(f"s_and_b32 s{sTmp}, s{sTmp}, 7")
        e(f"s_lshl_b32 s{sTmp}, s{sTmp}, 2")
        e(f"s_add_u32 s{sFlagC}, s{sFlagC}, s{sTmp}")
        e(f"s_add_u32 s{sFlagC}, s{sFlagC}, {CFLAG_OFF}")
        e(f"s_cmp_lt_u32 s{sB}, 72")
        e(f"s_cselect_b32 s{sTmp}, s{sWv}, 1")
        e(f"v_or_b32 v{t+11}, s{sTmp}, v{t+3}")
        e(f"v_lshlrev_b32 v{t+11}, 28, v{t+11}")
        e(f"v_lshl_add_u32 v{t+11}, v{t+2}, 2, v{t+11}")
        e(f"v_mov_b32 v{t+12}, 0")
        e(f"s_lshl_b32 s{sTmp}, s{sB}, 7")
        e(f"s_add_u32 s{sTmp}, s{sTmp}, {FLAG_OFF}")
        e(f"buffer_store_dword v{t+12}, v{t+11}, {srd(rWS)}, s{sTmp} offen sc1", tag="clr")
        e(f"s_and_b32 s{sTmp}, s{sR}, 1")
        e(f"s_xor_b32 s{sTmp}, s{sTmp}, s{sWv}")
        e(f"s_mul_i32 s{sWp1}, s{sTmp}, {64 * 3584}")
        e(f"s_lshl_b32 s{sTmp}, s{sH}, 7")
        e(f"s_add_u32 s{sWp1}, s{sWp1}, s{sTmp}")
        e(f"s_lshr_b32 s{sTmp}, s{sR}, 1")
        e(f"s_mul_i32 s{sTmp}, s{sTmp}, {32 * 3584}")
        e(f"s_sub_u32 s{sWp1b}, s{sWp1}, s{sTmp}")
        e(f"s_add_u32 s{sWp1b}, s{sWp1b}, {32 * 3584}")
        e(f"s_add_u32 s{sWp1}, s{sWp1}, s{sTmp}")
        e(f"s_mul_i32 s{sKVst}, s{sH}, {KV_H}")
        e(f"s_lshl_b32 s{sTmp}, s{sJ}, 2")
        e(f"s_add_u32 s{sTmp}, s{sTmp}, s{sWv}")
        e(f"s_mul_i32 s{sTmp}, s{sTmp}, {KV_T}")
        e(f"s_add_u32 s{sKVst}, s{sKVst}, s{sTmp}")
        e(f"s_lshr_b32 s{sTmp}, s{sR}, 1")
        e(f"s_lshl_b32 s{sTmp2}, s{sTmp}, 13")
        e(f"s_add_u32 s{sKa}, s{sKVst}, s{sTmp2}")
        e(f"s_sub_u32 s{sKb}, s{sKVst}, s{sTmp2}")
        e(f"s_lshl_b32 s{sTmp2}, s{sTmp}, 10")
        e(f"s_add_u32 s{sVa}, s{sKVst}, s{sTmp2}")
        e(f"s_sub_u32 s{sVb}, s{sKVst}, s{sTmp2}")
        e(f"s_lshl_b32 s{sTmp}, s{sJ}, 3")
        e(f"s_add_u32 s{sRT[0]}, s{sTmp}, s{sWv}")
        e(f"s_sub_u32 s{sRT[1]}, s{sTmp}, s{sWv}")
        e(f"s_add_u32 s{sRT[1]}, s{sRT[1]}, 7")
        e(f"s_sub_u32 s{sRT[2]}, 127, s{sRT[1]}")
        e(f"s_sub_u32 s{sRT[3]}, 127, s{sRT[0]}")
        for i in range(4):
            e(f"s_lshr_b32 s{sTmp}, s{sRT[i]}, 2")
            e(f"s_mul_i32 s{sAct[i]}, s{sTmp}, {ACT_RG}")
            e(f"s_and_b32 s{sTmp}, s{sRT[i]}, 3")
            e(f"s_lshl_b32 s{sTmp}, s{sTmp}, 10")
            e(f"s_add_u32 s{sAct[i]}, s{sAct[i]}, s{sTmp}")
            e(f"s_add_u32 s{sAct[i]}, s{sAct[i]}, {ACT_OFF}")
            e(f"s_mul_i32 s{sRT[i]}, s{sRT[i]}, {XN_RT}")
        e(f"s_mov_b32 s{sSC}, {f32(SCALE)}")
        e(f"s_mov_b32 s{sL2E}, {f32(LOG2E)}")
        e(f"s_mov_b32 s{sFb}, 0")
        e(f"v_and_b32 v{t+11}, 15, v{t+1}")
        e(f"v_lshrrev_b32 v{t+12}, 1, v{t+11}")
        e(f"v_xor_b32 v{t+12}, v{t+12}, v{t+7}")
        e(f"v_lshlrev_b32 v{t+12}, 4, v{t+12}")
        e(f"v_lshl_add_u32 v{t+12}, v{t+11}, 7, v{t+12}")
        e(f"v_xor_b32 v{t+13}, 64, v{t+12}")
        e(f"s_add_u32 s{sTmp}, s{sM0c}, {CST}")
        e(f"v_add_u32 v{vCR[0]}, s{sTmp}, v{t+12}")
        e(f"v_add_u32 v{vCR[1]}, s{sTmp}, v{t+13}")
        e(f"v_add_u32 v{t+14}, s{sM0w}, v{t+12}")
        e(f"v_add_u32 v{t+15}, s{sM0w}, v{t+13}")
        e(f"v_bfe_u32 v{t+12}, v{t+1}, 2, 3")
        e(f"v_lshlrev_b32 v{t+13}, 7, v{t+12}")
        e(f"v_lshl_add_u32 v{t+13}, v{t+3}, 11, v{t+13}")
        e(f"v_and_b32 v{t+11}, 3, v{t+1}")
        e(f"v_lshl_add_u32 v{t+13}, v{t+11}, 3, v{t+13}")
        e(f"v_lshrrev_b32 v{t+12}, 1, v{t+12}")
        e(f"v_lshl_add_u32 v{vWRa[0]}, v{t+12}, 5, v{t+13}")
        for c in range(1, 4):
            e(f"v_xor_b32 v{vWRa[c]}, {c * 32}, v{vWRa[0]}")
        for c in range(4):
            e(f"v_add_u32 v{vWRb[c]}, {SLOT[0]}, v{vWRa[c]}")
        e(f"v_lshrrev_b32 v{t+12}, 4, v{t+2}")
        e(f"v_lshlrev_b32 v{t+12}, 13, v{t+12}")
        e(f"v_and_b32 v{t+11}, 15, v{t+2}")
        e(f"v_lshl_add_u32 v{t+12}, v{t+11}, 7, v{t+12}")
        e(f"v_lshl_add_u32 v{t+12}, v{t+3}, 4, v{t+12}")
        e(f"s_lshl_b32 s{sTmp}, s{sWv}, 5")
        e(f"v_add_u32 v{t+12}, s{sTmp}, v{t+12}")
        e(f"v_lshlrev_b32 v{t+13}, 4, v{t+6}")
        e(f"v_lshl_add_u32 v{t+13}, v{t+5}, 8, v{t+13}")
        e(f"v_add_u32 v{t+11}, s{sM0w}, v{vL16}")
        e(f"s_lshr_b32 s{sTmp}, s{sB}, 1")
        e(f"s_mul_i32 s{sTmp}, s{sTmp}, {XN_RT}")
        e(f"s_and_b32 s{sTmp2}, s{sB}, 1")
        e(f"s_lshl_b32 s{sTmp2}, s{sTmp2}, 7")
        e(f"s_add_u32 s{sTmp}, s{sTmp}, s{sTmp2}")
        e(f"s_lshl_b32 s{sTmp2}, s{sWv}, 12")
        e(f"s_add_u32 s{sTmp}, s{sTmp}, s{sTmp2}")
        F = X + 8
        D = X + 24
        a, b2 = X + 40, X + 41
        ps()
        e(W(vm=True))
        ps()
        for i in range(8):
            e(f"v_lshlrev_b32 v{F+2*i}, 16, v{X+i}")
            e(f"v_and_b32 v{F+2*i+1}, 0xffff0000, v{X+i}")

        def rowsum(src):
            for i in range(8):
                e(f"v_add_f32 v{X+44+i}, v{src+2*i}, v{src+2*i+1}")
            for i in range(4):
                e(f"v_add_f32 v{X+44+i}, v{X+44+i}, v{X+48+i}")
            e(f"v_add_f32 v{X+44}, v{X+44}, v{X+46}")
            e(f"v_add_f32 v{X+45}, v{X+45}, v{X+47}")
            e(f"v_add_f32 v{a}, v{X+44}, v{X+45}")
            for m in ("quad_perm:[1,0,3,2]", "quad_perm:[2,3,0,1]", "row_half_mirror", "row_mirror"):
                e("s_nop 1")
                e(f"v_add_f32_dpp v{a}, v{a}, v{a} {m} row_mask:0xf bank_mask:0xf")
            e(f"v_mov_b32 v{b2}, v{a}")
            e("s_nop 1")
            e(f"v_permlane16_swap_b32 v{a}, v{b2}")
            e(f"v_add_f32 v{a}, v{a}, v{b2}")
            e(f"v_mul_f32 v{a}, {f32(1 / 512)}, v{a}")

        def rnd(r):
            e(f"v_cvt_pk_bf16_f32 v{r}, v{r}, v{r}")
            e(f"v_and_b32 v{r}, 0xffff0000, v{r}")
        rowsum(F)
        mean = X + 42
        e(f"v_mov_b32 v{mean}, v{a}")
        for i in range(16):
            e(f"v_sub_f32 v{D+i}, v{F+i}, v{a}")
        for i in range(16):
            e(f"v_mul_f32 v{D+i}, v{D+i}, v{D+i}")
        rowsum(D)
        rnd(a)
        rnd(mean)
        e(f"v_add_f32 v{a}, {f32(1e-5)}, v{a}")
        rnd(a)
        e(f"v_sqrt_f32 v{a}, v{a}")
        for i in range(16):
            e(f"v_sub_f32 v{F+i}, v{F+i}, v{mean}")
        rnd(a)
        e(f"v_rcp_f32 v{a}, v{a}")
        for i in range(8):
            e(f"v_cvt_pk_bf16_f32 v{X+i}, v{F+2*i}, v{F+2*i+1}")
        for i in range(8):
            e(f"v_lshlrev_b32 v{F+2*i}, 16, v{X+i}")
            e(f"v_and_b32 v{F+2*i+1}, 0xffff0000, v{X+i}")
        for i in range(16):
            e(f"v_mul_f32 v{F+i}, v{F+i}, v{a}")
        for i in range(8):
            e(f"v_cvt_pk_bf16_f32 v{X+i}, v{F+2*i}, v{F+2*i+1}")
        body = p.ops[mark:]
        del p.ops[mark:]
        groups = []
        for f in later:
            cur = []
            for o in self.pad_m0(f()):
                cur.append(o)
                if o.kind == "dma":
                    groups.append(cur)
                    cur = []
        quick = self.a.quick
        step = len(body) / (len(groups) - quick + 1)
        gi = 0
        for k, o in enumerate(body):
            while gi < len(groups) and k >= (gi - quick + 1) * step and ("s", "scc") not in o.reads:
                p.ops += groups[gi]
                gi += 1
            p.ops.append(o)
        assert gi == len(groups)
        ps()
        e(f"ds_write_b128 v{t+12}, {vr(X)} offset:{SLOT[1]}", lds_wr=(("X", 0), "ln", True))
        e(f"ds_write_b128 v{t+12}, {vr(X+4)} offset:{SLOT[1] + 16384}", lds_wr=(("X", 0), "ln", True))
        early = ([] if self.a.win1 else self.w_dma(1, 0)) + self.c_dma(4)
        for i in range(1, self.a.w1early):
            early += self.w_dma(1, i)
        for o in self.pad_m0(early):
            e(o)
        for o in self.stamp_ops():
            e(o)
        e("s_waitcnt lgkmcnt(0)")
        e(W(vm=True))
        e("s_barrier")
        for o in self.stamp_ops():
            e(o)
        for o in self.w_reads(0) + self.c_reads(0):
            e(o)
        e(W(lg=True))
        for o in self.c_reads(1) + self.c_reads(2) + self.c_reads(3):
            e(o)
        e(W(lg=True))
        return p

    def acc(self, n, c, rt):
        base = B0 if n < 10 else (B1 if n < 12 else B2)
        return base + 16 * c + 4 * rt

    def proj(self):
        S = Seg("proj")
        A = self.a
        BIASR, BIAS = T0, T0 + 8
        NG = 14 * 8
        for G in range(NG):
            n, gi = G >> 3, G & 7
            if n >= 8:
                kq, c = 2 * (n & 1) + (gi >> 2), gi & 3
            else:
                kq, c = n % 4, gi
            for rt in range(4):
                d = vr(self.acc(n, c, rt))
                for s in range(4):
                    w = vr(WF + 16 * (G & 1) + 4 * s)
                    x = ar(64 * kq + 16 * rt + 4 * s)
                    cc = d
                    if kq == 0 and s == 0:
                        cc = vr(BIAS + 4 * (c & 1)) if n == 8 else "0"
                    if 4 <= n < 8:
                        S.mfma(f"{MF} {d}, {x}, {w}, {cc}")
                    else:
                        S.mfma(f"{MF} {d}, {w}, {x}, {cc}")
        RG = [0, 1, 2, 4, 5, 6, 8, 9]
        for G in range(NG - 1):
            for i, o in enumerate(self.w_reads(G + 1)):
                S.put(16 * G + RG[i], o)
            if (G + 1) % 8 == 7:
                S.put(16 * G + 15, W(vm=True, lg=True))
                S.put(16 * G + 15, "s_barrier")
                if A.finestamps:
                    for o in self.stamp_ops():
                        S.put(16 * G + 15, o)
            else:
                w = W(lg=True)
                if G % 8 == 2:
                    w.vm = 36
                S.put(16 * G + 15, w)
        bar_gap = lambda n: 16 * (8 * n + 6) + 15
        gp = lambda x: int(16 * x)
        jobs = []
        pos = {}
        J = lambda rel, f, name=None: jobs.append((rel, f, name))
        X = B2
        S.put(10, Op(f"ds_read_b128 {vr(X)}, v{T0+11} offset:{SLOT[1]}", lds_rd=(("X", 0), "ln", True)))
        S.put(12, Op(f"ds_read_b128 {vr(X+4)}, v{T0+11} offset:{SLOT[1] + 1024}", lds_rd=(("X", 0), "ln", True)))
        J(gp(2), lambda: [Op(f"buffer_store_dwordx4 {vr(X)}, v{T0+13}, {srd(rWS)}, s{sTmp} offen sc1"),
                          Op(f"buffer_store_dwordx4 {vr(X+4)}, v{T0+13}, {srd(rWS)}, s{sTmp} offen offset:2048 sc1", tag="xn")], "xnst")
        CR = {4: 1, 5: 4.5, 6: 5.7, 7: 6.8}
        CR.update({u: 2 * (u - 4) + 0.5 - (0.5 if u & 3 == 3 else 0) for u in range(8, 16)})
        cpos = [16 * G + k for G in range(1, 24) for k in (10, 12, 13)]
        cdone = {}
        ci = 0
        for u in range(4, 16):
            while cpos[ci] < gp(CR[u]):
                ci += 1
            S.put(cpos[ci], W(vm=True))
            for o in self.c_reads(u):
                S.put(cpos[ci], o)
                cdone[u] = cpos[ci]
                ci += 1
            assert cdone[u] < 128 * (u >> 2), (u, cdone[u])
        J(0, lambda: self.c_dma(5))
        J(1, lambda: self.c_dma(6))
        for i in range(A.w1early, 8):
            J(gp(2) + 1, lambda i=i: self.w_dma(1, i))
        J(gp(2) + 2, lambda: self.c_dma(7))
        for u in range(8, 16):
            rel = gp(CR[u] - A.clead)
            if u >= 9:
                rel = max(rel, (cdone[u - 4] + 6) // 16 * 16 + 16)
            J(max(rel, gp(2) + 3), lambda u=u: self.c_dma(u))
        wrel = 0
        for n in range(2, 14):
            for i in range(8):
                if n < 4:
                    G = 8 * (n - 1) + 6 - A.wlead - 7 + i
                else:
                    G = A.wstart[n - 4] + i * A.wstep[n - 4]
                wrel = max(wrel, gp(G), bar_gap(n - 3) + 1 if n > 2 else 0)
                J(wrel, lambda n=n, i=i: self.w_dma(n, i), f"w{n}")
        S.flow([f"v_lshrrev_b32 v{vA}, 8, v{vL16}", f"v_lshlrev_b32 v{vA}, 3, v{vA}"], gp(8), gp(12))

        def fb():
            s = self.st()
            return [Op(f"s_mov_b32 s{rX}, s{pB1}"), Op(f"s_mov_b32 s{rX+1}, s{pB1+1}"), Op(f"s_min_u32 s{rX+2}, s{rH+2}, 3584"),
                    Op(f"s_lshl_b32 s{s}, s{sH}, 7")] + \
                   [Op(f"buffer_load_dwordx2 {vr(BIASR + 2*c, 2)}, v{vA}, {srd(rX)}, s{s} offen offset:{32*c}") for c in range(4)]
        J(gp(A.tg[3]), fb, "bias")
        if A.wtouch:
            t0, t1, td = T0 + 8, T0 + 9, T0 + 10
            S.flow([f"v_and_b32 v{t0}, {31 * 16}, v{vL16}", f"v_lshlrev_b32 v{t0}, 3, v{t0}", f"v_min_u32 v{t1}, {13 * 128}, v{t0}"], gp(1), gp(4))

            def ft(p, w1, fl):
                s = self.st()
                return [Op(f"s_mov_b32 s{rX}, s{p}"), Op(f"s_mov_b32 s{rX+1}, s{p+1}"),
                        Op(f"s_mov_b32 s{rX+2}, {512 * 3584 if w1 else 4 * MB}"),
                        Op(f"s_lshl_b32 s{s}, s{sB}, 2"), Op(f"s_add_u32 s{s}, s{s}, s{sWv}"),
                        Op(f"s_mul_i32 s{s}, s{s}, {1792 if w1 else 4096}"),
                        Op(f"buffer_load_dword v{td}, v{t1 if w1 else t0}, {srd(rX)}, s{s} offen{fl}")]
            for k, (p, w1) in enumerate(((pWV, 0), (pW1, 1), (pWQ, 0))):
                if A.tg[k] >= 0:
                    J(gp(A.tg[k]), lambda p=p, w1=w1, k=k: ft(p, w1, " nt" if A.tnt[k] else ""))
                    if A.tnt[k] > 1:
                        J(gp(A.tg[k] + A.tnt[k]), lambda p=p, w1=w1: ft(p, w1, ""))
        for G in A.ct2:
            if G > 0:
                vt, vd = (T0 + 14, T0 + 15) if G < 60 else (3, T0 + 15)
                val, ops = self.code_touch(vt, vd, 2048)
                S.flow(val, gp(G - 3), gp(G) - 1)
                J(gp(G), lambda ops=ops: ops)
        SEL = {("v", vSel0): f"v_lshlrev_b32 v{vSel0}, 28, v0"}
        S.flow([f"s_and_b32 s{sTmp2}, s{sB}, 3", f"s_lshl_b32 s{sTmp2}, s{sTmp2}, 6", f"v_mov_b32 v{vD}, 1"], gp(5), bar_gap(0))
        J(bar_gap(0) + 1, lambda: [Op(f"buffer_atomic_add v{vD}, v{vSel0}, {srd(rDBG)}, s{sTmp2} offen sc1",
                                      needs=[("xn", True), ("clr", True)],
                                      expect={("v", vD): f"v_mov_b32 v{vD}, 1", ("s", sTmp2): f"s_lshl_b32 s{sTmp2}, s{sTmp2}, 6", **SEL})])
        KREL, VREL = {}, {}
        for u in range(4):
            for rt in range(4):
                k = 4 * u + rt
                KREL[k] = max(gp(A.kst[0] + k * A.kst[1]), gp(28.5 + 2.4 * u + 0.6 * rt))

                def f(u=u, rt=rt):
                    s = self.st()
                    return [Op(f"s_add_u32 s{s}, s{sKb if rt >> 1 else sKa}, {K_OFF + rt * 4096}"),
                            Op(f"buffer_store_dwordx4 {vr(B2 + 16*u + 4*rt)}, v{vL16}, {srd(rWS)}, s{s} offen offset:{u*1024}{A.st}", tag="kst")]
                J(KREL[k], f, f"k{k}")
        for dt in range(8):
            for kg in range(2):
                k = 2 * dt + kg
                VREL[k] = max(gp(56 + dt) + 40, gp(A.vst[0] + k * A.vst[1]))

                def f(dt=dt, kg=kg):
                    s = self.st()
                    return [Op(f"s_add_u32 s{s}, s{sVb if kg else sVa}, {V_OFF + (dt >> 1) * 4096}"),
                            Op(f"buffer_store_dwordx4 {vr(B2 + 8*dt + 4*kg)}, v{vL16}, {srd(rWS)}, s{s} offen offset:{(dt & 1)*2048 + kg*1024}{A.st}", tag="vst")]
                J(VREL[k], f, f"v{k}")
        S.flow([f"v_bfe_u32 v{vA}, v{vL16}, 4, 2", f"v_lshlrev_b32 v{vA}, 6, v{vA}"], gp(31), gp(33))
        ld, chk, br = self.poll("xn", f"buffer_load_dword v{vP}, v{vA}, {srd(rDBG)}, 0 offen sc1", f"v_cmp_gt_u32 vcc, 64, v{vP}",
                                expect={("v", vA): f"v_lshlrev_b32 v{vA}, 6, v{vA}"})
        J(gp(34), lambda: [ld])
        self.put_check(S, gp(39), chk, br)
        vX = [4, 5, 6, 7]
        S.flow([f"s_mul_i32 s{sTmp2}, s{sR}, {(1 << 11) + (1 << 9)}", f"s_and_b32 s{sTmp2}, s{sTmp2}, {3 << 10}",
                f"v_xor_b32 v{vX[0]}, s{sTmp2}, v{vL16}"] + [f"v_xor_b32 v{vX[k]}, {k << 10}, v{vX[0]}" for k in range(1, 4)], gp(35), gp(39))
        for kq in range(4):
            for k in range(4):
                for rt in range(4):
                    def f(kq=kq, rt=rt, k=k):
                        ops = [Op(f"buffer_load_dwordx4 {ar(64*kq + 16*rt + 4*k)}, v{vX[k]}, {srd(rWS)}, s{sRT[rt]} offen{A.ld}", after="xn")]
                        if k == 3 and kq < 3:
                            ops.append(Op(f"s_add_u32 s{sRT[rt]}, s{sRT[rt]}, 4096"))
                        return ops
                    J(max(128 * (5 + kq), gp(A.xn[0] + (16 * kq + 4 * k + rt) * A.xn[1])), f, f"x{kq}")
        for kq in range(4):
            w = S.nv[gp(64 + 4 * kq) - 1][0]
            assert w.kind == "wait"
            w.vm = 63
        FL = {("v", vWRb[0]): f"v_add_u32 v{vWRb[0]}, {SLOT[0]}, v{vWRa[0]}", ("s", sFlagKV): f"s_add_u32 s{sFlagKV}, s{sPollKV}, s{sTmp}", **SEL}
        J(bar_gap(A.kflag) + 1, lambda: [Op(f"buffer_store_dword v{vWRb[0]}, v{vSel0}, {srd(rWS)}, s{sFlagKV} offen sc1",
                                            needs=[("kst", True)], after="xn", expect=FL)])
        if A.upto != "proj":
            J(bar_gap(A.vflag) + 1, lambda: [Op(f"buffer_store_dword v{vWRb[0]}, v{vSel0}, {srd(rWS)}, s{sFlagKV} offen offset:32 sc1",
                                                needs=[("vst", True)], after="xn", expect=FL)])
        self.extra_jobs(S, J, gp)
        HREL = [gp(A.hst[0] + k * A.hst[1]) for k in range(8)]
        S.flow([f"s_lshl_b32 s{sWp1b}, s{sH}, 13", f"s_add_u32 s{sWp1b}, s{sWp1b}, {ACT_HOFF}"], gp(72), gp(76))
        for u in range(2):
            for rt in range(4):
                def f(u=u, rt=rt):
                    s = self.st()
                    ops = [Op(f"s_add_u32 s{s}, s{sWp1b}, s{sAct[rt]}"),
                           Op(f"buffer_store_dwordx4 {vr(B0 + 32*u + 4*rt)}, v{vL16}, {srd(rH)}, s{s} offen{A.st}", tag="hst")]
                    if (u, rt) == (0, 3):
                        ops.append(Op(f"s_add_u32 s{sWp1b}, s{sWp1b}, 4096"))
                    return ops
                J(HREL[4 * u + rt], f)
        if A.upto == "full":
            M1 = B0 + 16
            S.flow([f"v_mov_b32 v{M1+i}, -1" for i in range(4)], HREL[0] + 1, gp(A.xcl[0]) - 1)
            for k in range(6):
                def f(k=k):
                    s = self.st()
                    return [Op(f"s_lshl_b32 s{s}, s{sB}, 2"), Op(f"s_add_u32 s{s}, s{s}, s{sWv}"), Op(f"s_mul_i32 s{s}, s{s}, {XCH_W}"),
                            Op(f"s_add_u32 s{s}, s{s}, {XCH_OFF + 1024 * k}"),
                            Op(f"buffer_store_dwordx4 {vr(M1)}, v{vL16}, {srd(rWS)}, s{s} offen sc1", tag="xcl",
                               expect={("v", M1 + i): f"v_mov_b32 v{M1+i}, -1" for i in range(4)})]
                J(gp(A.xcl[0] + k * A.xcl[1]), f)
        jobs.sort(key=lambda x: x[0])
        g = 0
        last_vm, bucket = -3, 0.0
        isfree = lambda gg: S.used(gg) == 1 and (gg % 16 != 15 or gg >= gp(111))
        for rel, f, name in jobs:
            ops = f()
            k = 0
            while k < len(ops):
                k2 = k
                while k2 < len(ops) and ops[k2].kind not in VM:
                    k2 += 1
                sal = ops[k:k2]
                if k2 == len(ops):
                    g = S.flow(sal, g + 1, S.n() - 1)[-1]
                    break
                tgt = max(rel, last_vm + A.vmin, int(bucket), g + (1 if sal else 0))
                while True:
                    while not isfree(tgt):
                        tgt += 1
                    lo = max(g, tgt - 14)
                    cand = [x for x in range(lo, tgt) if not S.nv[x]]
                    if len(cand) >= len(sal):
                        place = cand[len(cand) - len(sal):]
                        break
                    cap = []
                    for x in range(lo, tgt):
                        cap += [x] * max(0, 4 - S.used(x))
                    if len(cap) >= len(sal):
                        place = cap[len(cap) - len(sal):]
                        break
                    tgt += 1
                for o, x in zip(sal, place):
                    S.put(x, o)
                S.put(tgt, ops[k2])
                g = last_vm = tgt
                bucket = max(bucket, tgt - A.vburst) + A.vrate
                k = k2 + 1
            if name:
                pos[name] = last_vm
            if last_vm > rel + 40 and A.verbose:
                print(f"  job slipped: rel {rel/16:.1f} -> {last_vm/16:.1f}: {ops[-1].text}")
        if A.verbose:
            print("  job last positions:", {k: round(v / 16, 1) for k, v in pos.items()})
        assert pos["xnst"] < gp(5) and pos["x3"] < gp(75) and pos["bias"] < gp(31) and pos["w9"] < gp(72)
        for u in range(4):
            for rt in range(4):
                a0, a1 = self.acc(3, 2 * u, rt), self.acc(3, 2 * u + 1, rt)
                rel0 = gp(24 + 2 * u) + 4 * rt + 3 + 3
                rel1 = rel0 + 16
                dl = min(gp(32 + 2 * u) + 4 * rt - 2, pos[f"k{4 * u + rt}"] - 1)
                d = B2 + 16 * u + 4 * rt
                for (a, rel, o) in ((a0, rel0, 0), (a1, rel1, 2)):
                    ops = [f"v_mul_f32 v{a+i}, s{sSC}, v{a+i}" for i in range(4)]
                    ops += [f"v_cvt_pk_bf16_f32 v{d+o}, v{a}, v{a+1}", f"v_cvt_pk_bf16_f32 v{d+o+1}, v{a+2}, v{a+3}"]
                    S.flow(ops, rel, dl)
        for dt in range(8):
            for rt in range(4):
                a = self.acc(7, dt, rt)
                rel = max(gp(56 + dt) + 4 * rt + 3 + 3, pos[f"k{2 * dt + (rt >> 1)}"] + 1)
                dl = pos[f"v{2 * dt + (rt >> 1)}"] - 1
                dl = min(dl, gp(64 + dt) + 4 * rt - 2 if dt < 4 else gp(76))
                assert rel <= dl
                d = B2 + 8 * dt + 2 * rt
                S.flow([f"v_cvt_pk_bf16_f32 v{d}, v{a}, v{a+1}", f"v_cvt_pk_bf16_f32 v{d+1}, v{a+2}, v{a+3}"], rel, dl)
        for k in range(16):
            assert pos[f"v{k}"] < gp(96 + (k >> 2)) + 4 * (k & 3), k
        for c in range(4):
            b = BIAS + 4 * (c & 1)
            ops = []
            for i in range(2):
                ops += [f"v_lshlrev_b32 v{b+2*i}, 16, v{BIASR+2*c+i}", f"v_and_b32 v{b+2*i+1}, 0xffff0000, v{BIASR+2*c+i}"]
            S.flow(ops, gp(63 + c), gp(64 + c) - 2)
        T = []
        qtail = []
        qa = {}
        for u in range(4):
            n = 11 if u < 2 else 13
            for rt in range(4):
                d = Qf(rt, u)
                prev = None
                for half in range(2):
                    c = 2 * (u & 1) + half
                    a = self.acc(n, c, rt)
                    rel = gp(8 * n + 4 + c) + 4 * rt + 3 + 3
                    for h in range(2):
                        txt = f"v_cvt_pk_bf16_f32 v{d+2*half+h}, v{a+2*h}, v{a+2*h+1}"
                        if rel >= S.n():
                            qtail.append(txt)
                        else:
                            prev = Task(txt, rel, gp(104) if u < 2 else S.n() - 1, [(prev, 0)] if prev else [])
                            T.append(prev)
        free = [None] * 8
        k = 0
        for u in range(2):
            for rt in range(4):
                a0 = self.acc(9, 2 * u, rt)
                dl = HREL[4 * u + rt] - 1
                prevc = None
                for half in range(2):
                    a = self.acc(9, 2 * u + half, rt)
                    rel = gp(76 + 2 * u + half) + 4 * rt + 3 + 3
                    E = T0 + 4 * (k & 1)
                    k += 1
                    last = []
                    for i in range(4):
                        e = E + i
                        seq = [(f"v_mul_f32 v{e}, s{sL2E}, v{a+i}", 0), (f"v_exp_f32 v{e}, v{e}", 0), (f"v_add_f32 v{e}, 1.0, v{e}", 1),
                               (f"v_fma_f32 v{e}, v{e}, v{e}, 1.0", 0), (f"v_rcp_f32 v{e}, v{e}", 0), (f"v_fma_f32 v{e}, v{e}, -2.0, 1.0", 1),
                               (f"v_mul_f32 v{e}, v{e}, v{a+i}", 0)]
                        prev = free[e - T0]
                        for txt, dist in seq:
                            prev = Task(txt, rel, dl, [(prev, dist)] if prev else [])
                            T.append(prev)
                        last.append(prev)
                    for h in range(2):
                        pre = [(last[2 * h], 0), (last[2 * h + 1], 0)] + ([(prevc, 0)] if prevc else [])
                        prevc = Task(f"v_cvt_pk_bf16_f32 v{a0+2*half+h}, v{E+2*h}, v{E+2*h+1}", rel, dl, pre)
                        T.append(prevc)
                        free[E - T0 + 2 * h] = free[E - T0 + 2 * h + 1] = prevc
        schedule(S, T, start=gp(76))
        S.auto_lg_waits(lat=6, verbose=A.verbose)
        S.post += [Op("s_nop 7")] + [Op(x) for x in qtail]
        if A.verbose:
            print("  est cycles per stage:", [sum(4 * max(4, S.used(g)) for g in range(128 * n, 128 * n + 128)) for n in range(14)])
        return S

    def put_check(self, S, g, chk, br):
        while S.used(g) > 1 or S.used(g + 1) > 1 or g % 16 != 12:
            g += 1
        S.put(g, chk[0])
        S.put(g, chk[1])
        S.put(g + 1, br[0])
        S.put(g + 1, br[1])
        return g + 1


    def kv_dma(self, which, xr, creg, nreg, first=False):
        ring = KRING if which == "K" else VRING
        base = creg if (xr >> 1) % 2 == 0 else nreg
        so, r = (sKo, rK) if which == "K" else (sVo, rV)

        def wr(c):
            X = 2 * c["i"] + xr
            al = [(("C", k), (which, X), True) for k in range(4)] if which == "K" else [(("W", 1 + ((X & 3) >> 1)), (which, X), True)]
            return [((which, X & 3), (which, X), True)] + (al if X < 4 else [])
        ops = [Op(f"s_add_u32 m0, s{base}, {ring + (xr & 1) * 16384}")]
        for k in range(4):
            ops.append(Op(f"buffer_load_dwordx4 v{vL16}, {srd(r)}, s{so} offen offset:{k * 1024}{self.a.ld} lds", lds_wr=wr, after=which.lower()))
        ops.append(Op(f"s_add_u32 s{so}, s{so}, {KV_T}"))
        self.m0 = None
        return ops

    def k_read(self, xr, kt, u, names):
        a = names["Kc"] if (xr >> 1) % 2 == 0 else names["Kn"]
        return Op(f"ds_read_b128 {ar(aK + 16 * (kt & 1) + 4 * u)}, v{a} offset:{(xr & 1) * 16384 + kt * 4096 + u * 1024}",
                  lds_rd=lambda c: (("K", (2 * c["i"] + xr) & 3), ("K", 2 * c["i"] + xr), True))

    def v_read(self, xr, dt, kg, names):
        a = names["Vc"] if (xr >> 1) % 2 == 0 else names["Vn"]
        return Op(f"ds_read_b128 {ar(aV + 8 * (dt & 3) + 4 * kg)}, v{a} offset:{(xr & 1) * 16384 + dt * 2048 + kg * 1024}",
                  lds_rd=lambda c: (("V", (2 * c["i"] + xr) & 3), ("V", 2 * c["i"] + xr), True))

    def mask_ops(self, dst, z, kt, neg):
        ng = neg if isinstance(neg, list) else [neg] * 4
        m = ["vcc", f"s[{sMA}:{sMA+1}]", f"s[{sMB}:{sMB+1}]", "vcc"]
        cmp = lambda r: f"v_cmp_le_i32 {m[r]}, {16 * kt + r}, v{z}"
        cnd = lambda r: f"v_cndmask_b32 v{dst + r}, v{NINF}, v{ng[r]}, {m[r]}"
        return [cmp(0), cmp(1), cmp(2), cnd(0), cmp(3), cnd(1), cnd(2), cnd(3)]

    def att_regs_init(self):
        return [f"v_add_u32 v{vKc}, {KRING}, v{vL16}", f"v_add_u32 v{vKn}, {KRING + 32768}, v{vL16}",
                f"v_mov_b32 v{vVc}, v{vL16}", f"v_add_u32 v{vVn}, 32768, v{vL16}"]

    def att_sregs_init(self):
        return [f"s_lshl_b32 s{sMc}, s{sWv}, 12", f"s_add_u32 s{sMn}, s{sMc}, 32768",
                f"s_mov_b32 s{sKo}, s{sMc}", f"s_mov_b32 s{sVo}, s{sMc}", f"s_mov_b64 s[{sBad}:{sBad+1}], 0"]

    def first_k_reads(self):
        nm = dict(Kc=vKc, Kn=vKn, Vc=vVc, Vn=vVn)
        return [self.k_read(0, 0, u, nm) for u in range(4)] + [self.k_read(0, 1, u, nm) for u in range(2)]

    def extra_jobs(self, S, J, gp):
        if self.a.upto == "proj":
            return
        ops = [f"s_mul_i32 s{sTmp}, s{sH}, {KV_H}",
               f"s_lshl_b32 s{rK+2}, s{sJ}, 1", f"s_sub_u32 s{rK+2}, 32, s{rK+2}", f"s_mul_i32 s{rK+2}, s{rK+2}, {KV_T}",
               f"s_mov_b32 s{rV+2}, s{rK+2}", f"s_mov_b32 s{rV+3}, 0x20000",
               f"s_add_u32 s{sTmp}, s{sTmp}, {K_OFF}"]
        g = S.flow(ops + self.att_sregs_init()[:4], 16 * 66, 16 * 74)[-1]
        for (r, off) in ((rK, 0), (rV, V_OFF - K_OFF)):
            g += 1
            while S.used(g) > 1:
                g += 1
            if off:
                S.put(g, f"s_add_u32 s{sTmp}, s{sTmp}, {off}")
            S.put(g, f"s_add_u32 s{r}, s{pWS}, s{sTmp}")
            S.put(g, f"s_addc_u32 s{r+1}, s{pWS+1}, 0")
        S.flow(self.att_regs_init(), 16 * 75, 16 * 80)
        S.flow(self.att_sregs_init()[4:], 16 * 100, 16 * 104)
        ops = [
            f"v_bfe_u32 v{Z0}, v{vL16}, 4, 4", f"v_lshrrev_b32 v{Z1}, 8, v{vL16}", f"v_lshlrev_b32 v{Z1}, 2, v{Z1}",
            f"v_sub_u32 v{Z0}, v{Z0}, v{Z1}", f"v_lshlrev_b32 v{Zt}, 4, s{sWv}", f"v_sub_u32 v{Z1}, v{Z0}, v{Zt}",
            f"v_add_u32 v{Z1}, 48, v{Z1}", f"v_add_u32 v{Z0}, v{Z0}, v{Zt}", f"v_mov_b32 v{NINF}, 0xff800000",
            f"v_bfe_u32 v{vA}, v{vL16}, 2, 5",
            f"v_lshlrev_b32 v{Zt}, 7, s{sJ}", f"v_add_u32 v{Zt}, v{Zt}, v{Z0}"]
        S.flow(ops, 16 * 69, 16 * 76)
        S.flow([f"v_mov_b32 v{ZERO+i}, 0" for i in range(4)] + [f"v_mov_b32 v{ONES+i}, 0x3f803f80" for i in range(4)], 16 * 111, 16 * 112 - 1)
        ldt = f"buffer_load_dword v{vP}, v{vA}, {srd(rWS)}, s{sPollKV} offen sc1"
        ex = {("v", vA): f"v_bfe_u32 v{vA}, v{vL16}, 2, 5", ("s", sPollKV): f"s_add_u32 s{sPollKV}, s{sPollKV}, {FLAG_OFF}"}
        ld, chk, br = self.poll("k", ldt, f"v_cmp_eq_u32 vcc, 0, v{vP}", expect=ex, after="xn")
        J(gp(self.a.kv[0] - 5), lambda ld=ld: [ld])
        g = self.put_check(S, gp(self.a.kv[0] - 1), chk, br)
        for X in range(3):
            J(gp(self.a.kv[0] + self.a.kv[1] * X), lambda X=X: self.kv_dma("K", X, sMc, sMn))
        ld, chk, br = self.poll("v", ldt.replace("offen", "offen offset:32"), f"v_cmp_eq_u32 vcc, 0, v{vP}", expect=ex, after="xn")
        J(gp(self.a.kv[2] - 4), lambda ld=ld: [ld])
        g = self.put_check(S, gp(self.a.kv[2] - 1), chk, br)
        for X in range(2):
            J(gp(self.a.kv[2] + X), lambda X=X: self.kv_dma("V", X, sMc, sMn))
        for i, o in enumerate(self.first_k_reads()):
            S.put(16 * 111 + i, o)

    def rowmax_reduce(self):
        ops = []
        for sw in ("v_permlane16_swap_b32", "v_permlane32_swap_b32"):
            ops += [f"v_mov_b32 v{MX+4+t}, v{MX+t}" for t in range(4)]
            ops += [f"{sw} v{MX+t}, v{MX+4+t}" for t in range(4)]
            ops += [f"v_max_f32 v{MX+t}, v{MX+t}, v{MX+4+t}" for t in range(4)]
        return ops

    def prestep(self):
        S = Seg("prestep")
        S.pre.append(W(lg=True))
        for t in range(4):
            for u in range(4):
                S.mfma(f"{MF} {vr(SB+4*t)}, {ar(aK+4*u)}, {vr(Qf(t, u))}, {vr(SB+4*t) if u else 0}")
        for k in range(9):
            S.mfma(f"{MF32} {ar(16*k, 16)}, {vr(ZERO)}, {vr(ZERO)}, 0")
        S.flow(self.mask_ops(SB, Zt, 0, [SB, SB + 1, SB + 2, SB + 3]), 7, 15)
        ops = [f"v_max3_f32 v{MX+t}, v{SB+4*t}, v{SB+4*t+1}, v{SB+4*t+2}" for t in range(4)]
        ops += [f"v_max_f32 v{MX+t}, v{MX+t}, v{SB+4*t+3}" for t in range(4)]
        ops += self.rowmax_reduce()
        S.flow(ops, 17, 24)
        S.flow([f"v_mov_b32 v{vD}, 1"], 0, 6)
        self.p3_setup(S)
        G = Plain("att_go")
        e = G.e
        e("L_att_go:")
        for r in range(4):
            e(f"v_sub_f32 v{NEG3L+r}, 0, v{MX+3}")
        e(f"v_sub_f32 v{NEG0}, 0, v{MX}")
        for r in range(4):
            e(f"v_sub_f32 v{NEG[2]+r}, 0, v{MX+2}")
        rest = [f"v_sub_f32 v{NEG[t]+r}, 0, v{MX+t}" for t in (1, 3) for r in range(4)]
        for u in range(4):
            e(f"{MF} {vr(SB)}, {ar(aK+4*u)}, {vr(Qf(3, u))}, {vr(SB) if u else vr(NEG3L)}")
            e(rest[2 * u])
            e(rest[2 * u + 1])
        for kt in range(4):
            for o in self.mask_ops(BANK + 4 * kt, Zt, kt, NEG0):
                e(o)
        e(f"s_mov_b32 s{sCnt}, s{sJ}")
        return S, G

    def att_seg(self, name, Trel, qk, pv, bank_tile, look=True, flip=None, dma=True, bar=True, pvfirst=False, lfirst=False, extra=None):
        S = Seg(name)
        par = Trel & 1
        names = dict(Kc=vKc, Kn=vKn, Vc=vVc, Vn=vVn)
        if flip == 2:
            names = dict(Kc=vKn, Kn=vKc, Vc=vVn, Vn=vVc)
        na = len(qk)
        chains = [(kt, t) for kt in range(4) for t in qk]
        n = len(chains)
        dts = ([8] + list(range(8))) if lfirst else list(range(9))
        pvc = [(dt, t) for dt in dts for t in pv]
        M = len(pvc)
        nmu = max(n, 1)
        cstart, cend = {0: -100}, {0: -100}
        pstart, pend = {}, {}

        def qk_chain(i):
            if i == n:
                kt, t, c = 0, 3, NEG3L
            else:
                kt, t = chains[i]
                c = BANK + 4 * kt if t == bank_tile else NEG[t]
            d = SB + 4 * (i % 4)
            cstart[i] = S.n()
            for u in range(4):
                S.mfma(f"{MF} {vr(d)}, {ar(aK + 16 * (kt & 1) + 4 * u)}, {vr(Qf(t, u))}, {vr(d) if u else vr(c)}")
            cend[i] = S.n() - 1

        def pv_share(mu):
            for k in range(mu * M // nmu, (mu + 1) * M // nmu):
                dt, t = pvc[k]
                pstart.setdefault(dt, S.n())
                for kg in range(2):
                    if dt == 8:
                        d, a = ar(aL + 4 * t), vr(ONES)
                    else:
                        d, a = ar(aO + 32 * t + 4 * dt), ar(aV + 8 * (dt & 3) + 4 * kg)
                    S.mfma(f"{MF} {d}, {a}, {vr(Pf(1 - par, t, kg))}, {d}")
                pend[dt] = S.n() - 1
        for mu in range(nmu):
            if pvfirst:
                pv_share(mu)
            if n and (mu + 1 < n or look):
                qk_chain(mu + 1)
            if not pvfirst:
                pv_share(mu)
        N = S.n()
        T = []
        info = dict(cstart=cstart, cend=cend, pstart=pstart, pend=pend, N=N)
        tail = []
        for i in range(n):
            kt, t = chains[i]
            d = SB + 4 * (i % 4)
            rel = cend[i] + 3
            dl = cstart[i + 4] - 1 if (i + 4) in cstart else N - 1
            p = Pf(par, t, kt >> 1) + 2 * (kt & 1)
            if rel + 5 > N - 1:
                tail += ["s_nop 7"] + [f"v_exp_f32 v{d+r}, v{d+r}" for r in range(4)] + [f"v_cvt_pk_bf16_f32 v{p+h}, v{d+2*h}, v{d+2*h+1}" for h in range(2)]
                continue
            ex = []
            for r in range(4):
                ex.append(Task(f"v_exp_f32 v{d+r}, v{d+r}", rel, dl, [(ex[-1], 0)] if ex else []))
            T += ex
            for h in range(2):
                T.append(Task(f"v_cvt_pk_bf16_f32 v{p+h}, v{d+2*h}, v{d+2*h+1}", rel, dl, [(ex[2 * h + 1], 1)]))
        bg = None
        if bar:
            bg = cstart[3 * na] + 2
            S.put(bg, W(vm=True, lg=True))
            S.put(bg + 1, "s_barrier")
            bg += 1
        info["bar"] = bg
        lastk = None
        if n:
            for kt in range(1, 4):
                first = cstart[kt * na]
                free = cend[(kt - 1) * na - 1] if kt >= 2 else 0
                for u in range(2 if kt == 1 else 0, 4):
                    dl = first + u - LAT
                    if kt == 3 and bar:
                        dl = min(dl, bg - 1 - 5)
                    lastk = Task(self.k_read(Trel, kt, u, names), max(0, free - 3 + u), dl)
                    T.append(lastk)
            if look:
                for u in range(4):
                    T.append(Task(self.k_read(Trel + 1, 0, u, names), bg + 1, cstart[n] + u - LAT))
                for u in range(2):
                    T.append(Task(self.k_read(Trel + 1, 1, u, names), max(bg + 1, cend[n - 1] - 3 + u), N - 2 + u))
        if pv:
            for dt in range(1, 8):
                free = pend[dt - 4] if dt >= 4 else 0
                for kg in range(2):
                    T.append(Task(self.v_read(Trel - 1, dt, kg, names), free, pstart[dt] + kg - LAT))
        v0 = []
        if n:
            free = max(bg + 1, pend[4] if pv else 0)
            for kg in range(2):
                v0.append(Task(self.v_read(Trel, 0, kg, names), free, N + 4 + kg - LAT))
            T += v0
        if dma:
            prev = None
            for which, xr, lo, hi in (("K", Trel + 3, 1, bg - 2), ("V", Trel + 2, bg + 1, N - 2)):
                ops = self.kv_dma(which, xr, sMc, sMn)
                step = (hi - lo + 1) / 4
                m = Task(ops[0], lo - 1 if which == "K" else 0, int(lo + step - 2), [(prev, 0)] if prev else [])
                T.append(m)
                prev = m
                for k in range(4):
                    d = Task(ops[1 + k], int(lo + k * step), int(lo + (k + 1) * step - 1), [(prev, 1 if k == 0 else 3)])
                    T.append(d)
                    prev = d
                T.append(Task(ops[5], 0, N - 2, [(prev, 0)]))
                if which == "V":
                    info["vm0"] = m
        if flip == 1:
            T.append(Task(f"v_xor_b32 v{vVn}, 0x8000, v{vVn}", 0, N - 1))
            T.append(Task(f"v_xor_b32 v{vKc}, 0x8000, v{vKc}", bg, N - 1))
        if flip == 2:
            T.append(Task(f"v_xor_b32 v{vKn}, 0x8000, v{vKn}", 0, N - 1))
            T.append(Task(f"v_xor_b32 v{vVc}, 0x8000, v{vVc}", 0, bg))
            T.append(Task(f"s_xor_b32 s{sMn}, s{sMn}, 0x8000", 0, N - 2))
            T.append(Task(f"s_xor_b32 s{sMc}, s{sMc}, 0x8000", 0, N - 2, [(info["vm0"], 0)]))
        if extra:
            extra(S, T, info)
        schedule(S, T)
        inc = [("a", aK + 16 + r) for r in range(8)] + [("a", aV + r) for r in range(8)]
        S.auto_lg_waits(lat=5, incoming=inc, verbose=self.a.verbose)
        S.post += [Op(x) for x in tail]
        return S

    def chain_tasks(self, T, ops, rel, dl, after=None):
        prev = after
        for o in ops:
            t = Task(o, rel, dl, [(prev, 0)] if prev else [])
            T.append(t)
            prev = t
        return prev

    def bad_check(self, e, tiles):
        for k, t in enumerate(tiles):
            e(f"v_accvgpr_read_b32 v{ET+2*k}, a{aL+4*t}")
        e(f"v_add_f32 v{ET+3}, v{ET}, v{ET+2}")
        e(f"v_rcp_f32 v{ET}, v{ET}")
        e(f"v_cmp_ngt_f32 vcc, 0x5f800000, v{ET+3}")
        e(f"v_rcp_f32 v{ET+2}, v{ET+2}")
        e(f"s_or_b64 s[{sBad}:{sBad+1}], s[{sBad}:{sBad+1}], vcc")

    def epilogue(self, e, tiles):
        e(f"s_mul_i32 s{sTmp2}, s{sH}, {ACT_HD}")
        k = 0
        for ti, t in enumerate(tiles):
            e(f"s_add_u32 s{sTmp}, s{sTmp2}, s{sAct[t]}")
            for u in range(4):
                b = ET + 4
                o = ET + 12 + 4 * (k % 3)
                k += 1
                for i in range(8):
                    e(f"v_accvgpr_read_b32 v{b+i}, a{aO + 32*t + 8*u + i}")
                for i in range(4):
                    e(f"v_pk_mul_f32 {vr(b+2*i, 2)}, {vr(b+2*i, 2)}, {vr(ET+2*ti, 2)} op_sel_hi:[1,0]")
                for i in range(4):
                    e(f"v_cvt_pk_bf16_f32 v{o+i}, v{b+2*i}, v{b+2*i+1}")
                e(f"buffer_store_dwordx4 {vr(o)}, v{vL16}, {srd(rWS)}, s{sTmp} offen{self.a.st}", tag="cst")
                if u < 3:
                    e(f"s_add_u32 s{sTmp}, s{sTmp}, 4096")

    def attention(self):
        D, TH, SS, ONE = [3, 2, 1, 0], [3, 2, 1], [3, 2], [3]
        B = {}

        def x_d0(S, T, info):
            T.append(Task(Op(f"buffer_store_dword v{vD}, v{vSel0}, {srd(rWS)}, s{sFlagH} offen sc1", needs=[("hst", True)] + ([("xcl", True)] if self.a.upto == "full" else []),
                             expect={("v", vD): f"v_mov_b32 v{vD}, 1", ("s", sFlagH): f"s_add_u32 s{sFlagH}, s{sFlagH}, {HFLAG_OFF}", ("v", vSel0): f"v_lshlrev_b32 v{vSel0}, 28, v0"}), info["bar"] + 1, info["N"] - 1))
            S.put(info["N"] - 1, f"s_cmp_eq_u32 s{sCnt}, 0")
        B["D0"] = self.att_seg("D0", 0, D, [], 0, extra=x_d0)
        B["D0"].post += [Op("s_cbranch_scc1 L_three"), Op(".p2align 4"), Op("L_dloop:")]
        B["Da"] = self.att_seg("Da", 1, D, D, 0, flip=1, extra=lambda S, T, i: S.put(i["N"] - 1, f"s_cmp_eq_u32 s{sCnt}, 1"))
        B["Da"].post += [Op("s_cbranch_scc1 L_dmask"), Op("L_dmask_back:")]

        def x_loop(S, T, info):
            T.append(Task(f"s_sub_u32 s{sCnt}, s{sCnt}, 1", 0, info["N"] - 2))
            S.put(info["N"] - 1, f"s_cmp_lg_u32 s{sCnt}, 0")
        B["Db"] = self.att_seg("Db", 2, D, D, 0, flip=2, extra=x_loop)
        B["Db"].post += [Op("s_cbranch_scc1 L_dloop"), Op("L_three:")]
        p = Plain("dmask")
        p.e("L_dmask:")
        for kt in range(4):
            for o in self.mask_ops(BANK + 4 * kt, Z0, kt, NEG0):
                p.e(o)
        p.e("s_branch L_dmask_back")
        self.ool.append(p)
        B["dmask"] = p

        def x_three(S, T, info):
            cs = info["cstart"]
            last = None
            last = self.chain_tasks(T, self.mask_ops(BANK, Z1, 0, NEG[1]), 0, cs[2] - 2, last)
            last = self.chain_tasks(T, [f"v_sub_u32 v{Zu}, 7, s{sJ}".replace("v_sub_u32", "v_sub_u32_e64"), f"v_lshlrev_b32 v{Zu}, 7, v{Zu}",
                                        f"v_add_u32 v{Zt}, v{Zu}, v{Z0}", f"v_add_u32 v{Zu}, v{Zu}, v{Z1}"], 0, cs[5], last)
            for kt in range(1, 4):
                last = self.chain_tasks(T, self.mask_ops(BANK + 4 * kt, Z1, kt, NEG[1]), 0, cs[3 * kt + 2] - 2, last)
            for kt in range(4):
                last = self.chain_tasks(T, self.mask_ops(BANK + 4 * kt, Zt, kt, NEG[2]), cs[3 * kt + 2] + 2, info["N"] - 2, last)
        B["T3"] = self.att_seg("T3", 1, TH, D, 1, flip=1, extra=x_three)

        def x_s3(S, T, info):
            last = self.chain_tasks(T, self.mask_ops(NEG3L, Zu, 0, NEG[3]), 0, info["cstart"][8] - 2)
            T.append(Task(f"s_sub_u32 s{sCnt}, 7, s{sJ}", 0, info["N"] - 2))
            if self.a.upto == "full":
                ldt = f"buffer_load_dwordx4 {vr(MX + 4)}, v{vL16}, {srd(rWS)}, s{sXch} offen sc1"
                red = [f"v_min_u32 v{vP}, v{MX+4}, v{MX+5}", f"v_min3_u32 v{vP}, v{vP}, v{MX+6}, v{MX+7}"]
                ex = {("s", sXch): f"s_mov_b32 s{sXch}, {HFLAG_OFF}"}
                ld, chk, br = self.poll("h", ldt, f"v_cmp_eq_u32 vcc, 0, v{vP}", expect=ex, mid=red)
                T.append(Task(ld, info["N"] - 8, info["N"] - 2))
                self.hpoll = chk + [Op("s_nop 0")] + br
        B["S3"] = self.att_seg("S3", 2, SS, TH, 2, flip=2, extra=x_s3)
        p = Plain("epiA")
        if self.a.otouch and self.a.upto == "full":
            p.e(f"s_lshl_b32 s{sTmp}, s{sB}, 2")
            p.e(f"s_add_u32 s{sTmp}, s{sTmp}, s{sWv}")
            p.e(f"s_lshl_b32 s{sTmp}, s{sTmp}, 13")
            p.e(f"v_lshl_add_u32 v{MX}, v{vL16}, 3, s{sTmp}")
            p.e(f"v_subrev_u32 v{MX+1}, {4 * MB}, v{MX}")
            p.e(f"buffer_load_dword v{MX+2}, v{MX}, {srd(rX)}, 0 offen")
            p.e(f"buffer_load_dword v{MX+2}, v{MX+1}, {srd(rW)}, 0 offen")
            p.e("s_nop 0")
        else:
            p.e("s_nop 7")
        self.bad_check(p.e, [0, 1])
        self.epilogue(p.e, [0, 1])
        for o in (self.hpoll if self.a.upto == "full" else []) + self.stamp_ops():
            p.e(o)
        p.e(f"s_cmp_eq_u32 s{sCnt}, 0")
        p.e("s_cbranch_scc1 L_one")
        p.e(".p2align 4")
        p.e("L_sloop:")
        B["epiA"] = p
        B["Sa"] = self.att_seg("Sa", 1, SS, SS, 2)
        B["Sb"] = self.att_seg("Sb", 2, SS, SS, 2)
        B["Sc"] = self.att_seg("Sc", 3, SS, SS, 2, extra=lambda S, T, i: S.put(i["N"] - 1, f"s_cmp_eq_u32 s{sCnt}, 1"))
        B["Sc"].post += [Op("s_cbranch_scc1 L_smask"), Op("L_smask_back:")]
        B["Sd"] = self.att_seg("Sd", 4, SS, SS, 2, extra=x_loop)
        B["Sd"].post += [Op("s_cbranch_scc1 L_sloop"), Op("L_one:")]
        p = Plain("smask")
        p.e("L_smask:")
        for kt in range(4):
            for o in self.mask_ops(BANK + 4 * kt, Z0, kt, NEG[2]):
                p.e(o)
        for o in self.mask_ops(NEG3L, Z1, 0, NEG[3]):
            p.e(o)
        p.e("s_branch L_smask_back")
        self.ool.append(p)
        B["smask"] = p

        def x_one(S, T, info):
            last = None
            for kt in range(1, 4):
                last = self.chain_tasks(T, self.mask_ops(BANK + 4 * kt, Z1, kt, NEG[3]), 0, info["cstart"][kt] - 2, last)
            self.one_extra(S, T, info, last)
        B["One"] = self.att_seg("One", 1, ONE, SS, 3, look=False, dma=False, pvfirst=True, extra=x_one)
        def x_dr(S, T, info):
            if self.a.upto == "full" and self.a.pre > 1:
                prev = None
                k = 0
                for o in self.p3_dma(1, "A"):
                    prev = Task(o, 4 * k + 2 if o.kind in VM else 0, 4 * k + 5 if o.kind in VM else 2, [(prev, 1 if o.kind in VM else 0)] if prev else [])
                    k += o.kind in VM
                    T.append(prev)
        B["Dr"] = self.att_seg("Dr", 2, [], ONE, None, look=False, dma=False, bar=False, lfirst=True, extra=x_dr)
        B["Dr"].pre.insert(0, Op("s_nop 1"))
        p = Plain("check")
        e = p.e
        self.bad_check(e, [2, 3])
        e(f"s_cmp_lg_u64 s[{sBad}:{sBad+1}], 0")
        e(f"s_cselect_b32 s{sTmp}, 1, {1 if self.a.redo else 0}")
        e(f"s_andn2_b32 s{sTmp}, s{sTmp}, s{sFb}")
        e(f"v_and_b32 v{ET+6}, 0x8000, v{vVn}")
        e(f"v_mov_b32 v{ET+5}, s{sTmp}")
        e(f"v_lshl_add_u32 v{ET+4}, s{sWv}, 2, v{ET+6}")
        e(f"ds_write_b32 v{ET+4}, v{ET+5}", lds_wr=lambda c: [(("F", 0), ("bad", c.get("fb")), True), (("V", (2 * c["i"] + 2) & 3), ("bad", c.get("fb")), True)])
        e("s_waitcnt lgkmcnt(0)")
        e("s_barrier")
        e(f"ds_read_b128 {vr(ET+8)}, v{ET+6}", lds_rd=lambda c: (("F", 0), ("bad", c.get("fb")), True))
        B["check"] = p
        p = Plain("check2")
        e = p.e
        e(W(lg=True))
        e(f"v_or3_b32 v{ET+8}, v{ET+8}, v{ET+9}, v{ET+10}")
        e(f"v_or_b32 v{ET+8}, v{ET+8}, v{ET+11}")
        e(f"v_cmp_ne_u32 vcc, 0, v{ET+8}")
        e("s_nop 1")
        e("s_cbranch_vccnz L_fallback")
        B["check2"] = p
        B["fb"] = self.fallback()
        return B

    def fallback(self):
        p0, p1, p2 = Plain("fb0"), Plain("fb1"), Plain("fb2")
        e = p0.e
        e("L_fallback:")
        e(f"s_mov_b32 s{sFb}, 1")
        e("s_waitcnt vmcnt(0) lgkmcnt(0)")
        e("s_barrier")
        ZG = BANK
        e(f"s_lshl_b32 s{sTmp}, s{sJ}, 7")
        e(f"s_sub_u32 s{sTmp2}, {15 * 128}, s{sTmp}")
        e(f"v_add_u32 v{ZG}, s{sTmp}, v{Z0}")
        e(f"v_add_u32 v{ZG+1}, s{sTmp}, v{Z1}")
        e(f"v_add_u32 v{ZG+2}, s{sTmp2}, v{Z0}")
        e(f"v_add_u32 v{ZG+3}, s{sTmp2}, v{Z1}")
        e(f"v_add_u32 v{ZG+1}, 64, v{ZG+1}")
        e(f"v_add_u32 v{ZG+3}, 64, v{ZG+3}")
        e(f"v_mov_b32 v{Zt}, v{ZG}")
        for t in range(4):
            e(f"v_mov_b32 v{MX+t}, v{NINF}")
        e(f"s_mov_b32 s{sCnt}, 0")
        e(f"s_lshl_b32 s{sSpin}, s{sJ}, 3")
        e(f"s_sub_u32 s{sSpin}, 128, s{sSpin}")
        if self.a.redo:
            e(f"s_mov_b32 s{sSpin}, 1")
        e("L_fb_loop:")
        e = p1.e
        e(f"s_lshr_b32 s{sTmp}, s{sCnt}, 2")
        e(f"s_mul_i32 s{sTmp}, s{sTmp}, {KV_T}")
        e(f"s_and_b32 s{sTmp2}, s{sCnt}, 3")
        e(f"s_lshl_b32 s{sTmp2}, s{sTmp2}, 12")
        e(f"s_add_u32 s{sTmp}, s{sTmp}, s{sTmp2}")
        for u in range(4):
            e(f"buffer_load_dwordx4 {ar(aK+4*u)}, v{vL16}, {srd(rK)}, s{sTmp} offen offset:{u*1024} sc1")
        e("s_waitcnt vmcnt(0)")
        for t in range(4):
            for u in range(4):
                e(f"{MF} {vr(SB+4*t)}, {ar(aK+4*u)}, {vr(Qf(t, u))}, {vr(SB+4*t) if u else 0}")
        e("s_nop 7")
        for t in range(4):
            for o in self.mask_ops(SB + 4 * t, ZG + t, 0, [SB + 4 * t + r for r in range(4)]):
                e(o)
            e(f"v_max3_f32 v{MX+t}, v{MX+t}, v{SB+4*t}, v{SB+4*t+1}")
            e(f"v_max3_f32 v{MX+t}, v{MX+t}, v{SB+4*t+2}, v{SB+4*t+3}")
            e(f"v_subrev_u32 v{ZG+t}, 16, v{ZG+t}")
        e(f"s_add_u32 s{sCnt}, s{sCnt}, 1")
        e(f"s_cmp_lt_u32 s{sCnt}, s{sSpin}")
        e("s_cbranch_scc1 L_fb_loop")
        e = p2.e
        for o in self.rowmax_reduce() + self.att_regs_init() + self.att_sregs_init():
            e(o)
        for which, X in (("K", 0), ("K", 1), ("K", 2), ("V", 0), ("V", 1)):
            for o in self.pad_m0(self.kv_dma(which, X, sMc, sMn)):
                e(o)
        for k in range(9):
            e(f"{MF32} {ar(16*k, 16)}, {vr(ZERO)}, {vr(ZERO)}, 0")
        e("s_waitcnt vmcnt(0)")
        e("s_barrier")
        for o in self.first_k_reads():
            e(o)
        e("s_waitcnt lgkmcnt(0)")
        e("s_branch L_att_go")
        self.ool += [p0, p1, p2]
        return p0, p1, p2

    def att_trace(self, B, G, j, fb=0):
        tr = []
        add = lambda b, i: tr.extend((o, {"i": i, "fb": fb}) for o in b.linear())
        add(G, 0)
        add(B["D0"], 0)
        for i in range(j):
            add(B["Da"], i)
            if i == j - 1:
                add(B["dmask"], i)
            add(B["Db"], i)
        add(B["T3"], j)
        add(B["S3"], j)
        add(B["epiA"], j)
        i = j + 1
        for k in range(7 - j):
            for nm in ("Sa", "Sb", "Sc"):
                add(B[nm], i)
            if k == 6 - j:
                add(B["smask"], i)
            add(B["Sd"], i)
            i += 2
        add(B["One"], i)
        add(B["Dr"], i)
        add(B["check"], i)
        return tr

    def dump_q(self):
        p = Plain("dumpq")
        e = p.e
        e(f"s_lshl_b32 s{sTmp}, s{sB}, 2")
        e(f"s_add_u32 s{sTmp}, s{sTmp}, s{sWv}")
        e(f"s_lshl_b32 s{sTmp}, s{sTmp}, 14")
        e(f"s_add_u32 s{sTmp}, s{sTmp}, {QDUMP_OFF}")
        for u in range(4):
            for rt in range(4):
                e(f"buffer_store_dwordx4 {vr(Qf(rt, u))}, v{vL16}, {srd(rWS)}, s{sTmp} offen offset:{rt*1024}")
            e(f"s_add_u32 s{sTmp}, s{sTmp}, 4096")
        return p

    def dump_stamps(self):
        p = Plain("stamps")
        if self.a.stamps:
            p.e("s_waitcnt vmcnt(0)")
            for o in self.hold_ops("end") + self.stamp_ops() + self.rt_ops(63):
                p.e(o)
            p.e(f"s_lshl_b32 s{sTmp}, s{sB}, 2")
            p.e(f"s_add_u32 s{sTmp}, s{sTmp}, s{sWv}")
            p.e(f"s_lshl_b32 s{sTmp}, s{sTmp}, 8")
            p.e(f"s_add_u32 s{sTmp}, s{sTmp}, {STAMP_OFF}")
            p.e(f"v_lshrrev_b32 v{vL16}, 2, v{vL16}")
            p.e(f"buffer_store_dword v{vSel0}, v{vL16}, {srd(rWS)}, s{sTmp} offen")
            if self.a.dbgout >= 0:
                p.e(f"v_readlane_b32 s{sTmp}, v{vSel0}, 1")
                p.e(f"s_memtime s[{sStamp}:{sStamp+1}]")
                p.e("s_waitcnt lgkmcnt(0)")
                p.e(f"v_readlane_b32 s{sTmp2}, v{vSel0}, 61")
                p.e("s_nop 1")
                p.e(f"s_sub_u32 s{sStamp}, s{sStamp}, s{sTmp2}")
                p.e(f"s_and_b32 s{sStamp}, s{sStamp}, 0x3fffffff")
                p.e(f"v_subrev_u32 v8, s{sTmp}, v{vSel0}")
                p.e(f"v_lshrrev_b32 v8, 2, v8")
                p.e(f"v_writelane_b32 v8, s{sStamp}, 1")
                p.e(f"s_lshl_b32 s{sTmp}, s{sB}, 2")
                p.e(f"s_add_u32 s{sTmp}, s{sTmp}, s{sWv}")
                p.e(f"s_cmp_eq_u32 s{sTmp}, {self.a.dbgout}")
                p.e(f"s_cselect_b32 s{rDBG+2}, 64, 0")
                p.e(f"s_mov_b32 s{sTmp}, 0x10000000")
                p.e(f"v_writelane_b32 v{vL16}, s{sTmp}, 0")
                p.e(f"buffer_store_dword v8, v{vL16}, {srd(rDBG)}, 0 offen")
        return p

    def build(self):
        pro = self.prologue()
        pj = self.proj()
        pj.post += self.stamp_ops() + self.hold_ops("proj")
        pro.ops += self.hold_ops("pro")
        blocks = [pro, pj]
        end = Plain("end")
        lin = lambda bl, c={"i": 0, "fb": 0}: [(o, c) for b in bl for o in b.linear()]
        if self.a.upto == "proj":
            blocks += [self.dump_q(), self.dump_stamps(), end]
            traces = [("main", lin(blocks))]
        else:
            S, G = self.prestep()
            for o in self.stamp_ops():
                G.e(o)
            B = self.attention()
            mid, tailb = self.tail(B)
            tailb += [self.dump_stamps(), end]
            blocks += [S, G] + [B[k] for k in ("D0", "Da", "Db", "T3", "S3", "epiA", "Sa", "Sb", "Sc", "Sd", "One", "Dr", "check")] + mid + tailb
            traces = []
            for j in range(8):
                traces.append((f"j{j}", lin([pro, pj, S]) + self.att_trace(B, G, j) + lin(mid) + lin(tailb)))
            f0, f1, f2 = B["fb"]
            for j in (0, 3, 7):
                traces.append((f"fb{j}", lin([pro, pj, S]) + self.att_trace(B, G, j) + lin(mid) + lin([f0, f1, f1, f2])
                               + self.att_trace(B, G, j, 1) + lin(mid, {"i": 0, "fb": 1}) + lin(tailb, {"i": 0, "fb": 1})))
        end.e("L_end:")
        end.e("s_endpgm")
        self.finish(blocks, traces)

    def p3_setup(self, S):
        t = ET
        q = sT
        sal = [f"s_and_b32 s{q[0]}, s{sB}, 3",
               f"s_bfe_u32 s{q[1]}, s{sB}, 0x30003", f"s_and_b32 s{sTmp}, s{sB}, 4", f"s_lshl_b32 s{sTmp}, s{sTmp}, 1",
               f"s_add_u32 s{q[1]}, s{q[1]}, s{sTmp}",
               f"s_and_b32 s{q[2]}, s{sWv}, 1", f"s_lshr_b32 s{q[3]}, s{sWv}, 1",
               f"s_lshr_b32 s{sCG}, s{sB}, 6", f"s_lshl_b32 s{sCG}, s{sCG}, 1", f"s_add_u32 s{sCG}, s{sCG}, s{q[2]}",
               f"s_lshl_b32 s{sCG}, s{sCG}, 7",
               f"s_lshl_b32 s{sRG}, s{q[1]}, 1", f"s_add_u32 s{sTmp}, s{sRG}, s{q[2]}",
               f"s_mul_i32 s{sActH}, s{sTmp}, {ACT_RG}", f"s_lshl_b32 s{sTmp}, s{q[3]}, 12", f"s_add_u32 s{sActH}, s{sActH}, s{sTmp}",
               f"s_mul_i32 s{sTmp}, s{q[0]}, {8 * ACT_HD}", f"s_add_u32 s{sActC}, s{sActH}, s{sTmp}",
               f"s_mul_i32 s{sTmp}, s{q[0]}, {14 * 4096}", f"s_add_u32 s{sActH}, s{sActH}, s{sTmp}",
               f"s_lshl_b32 s{sTmp}, s{q[3]}, 15", f"s_add_u32 s{sTmp}, s{sTmp}, s{sCG}",
               f"s_mul_i32 s{sW2b}, s{q[0]}, {14 * 32768}", f"s_add_u32 s{sW2b}, s{sW2b}, s{sTmp}",
               f"s_lshl_b32 s{sWob}, s{q[0]}, 20", f"s_add_u32 s{sWob}, s{sWob}, s{sTmp}",
               f"s_lshl_b32 s{sM0p}, s{sWv}, 12",
               f"s_add_u32 s{sRG}, s{sRG}, s{q[3]}", f"s_lshl_b32 s{sRG}, s{sRG}, 2", f"s_add_u32 s{sRG}, s{sRG}, s{q[0]}",
               f"s_lshl_b32 s{sRG}, s{sRG}, 14", f"s_add_u32 s{sRG}, s{sRG}, s{sCG}",
               f"s_sub_u32 s{sTmp2}, 15, s{q[1]}", f"s_min_u32 s{sTmp}, s{q[1]}, s{sTmp2}",
               f"s_lshl_b32 s{sTmp}, s{sTmp}, 2", f"s_add_u32 s{sTmp}, s{sTmp}, s{q[0]}", f"s_lshl_b32 s{sTmp}, s{sTmp}, 7",
               f"s_add_u32 s{sTmp}, s{sTmp}, {CFLAG_OFF}",
               f"s_mov_b32 s{rW}, s{pW2}", f"s_mov_b32 s{rW+1}, s{pW2+1}", f"s_mov_b32 s{rW+2}, {1792 * 1024}",
               f"s_mov_b32 s{rX}, s{pWO}", f"s_mov_b32 s{rX+1}, s{pWO+1}", f"s_mov_b32 s{rX+2}, {4 * MB}",
               f"s_mov_b32 s{rH}, s{pOUT}", f"s_mov_b32 s{rH+1}, s{pOUT+1}", f"s_mov_b32 s{rH+2}, {2 * MB}", f"s_mov_b32 s{sXch}, {HFLAG_OFF}"]
        S.flow(sal, 0, 23)
        S.put(24, f"s_add_u32 s{sPollC}, s{pWS}, s{sTmp}")
        S.put(24, f"s_addc_u32 s{sPollC+1}, s{pWS+1}, 0")
        val = [f"v_lshrrev_b32 v{t}, 9, v{vL16}", f"v_lshlrev_b32 v{t}, 10, v{t}", f"v_and_b32 v{t+1}, 1, s{sWv}".replace("v_and_b32", "v_and_b32_e64"),
               f"v_lshlrev_b32 v{t+1}, 12, v{t+1}", f"v_sub_u32 v{t}, v{t+1}, v{t}", f"v_add_u32 v{t}, 16384, v{t}"]
        val += [f"v_add_u32 v{vR[0][c]}, v{vWRa[c]}, v{t}" for c in range(4)]
        val += [f"v_lshrrev_b32 v{t}, 7, v{vL16}", f"v_and_b32 v{t+1}, 0x7f, v{vW8}", f"v_lshl_add_u32 v{vDm[0]}, v{t}, 10, v{t+1}"]
        val += [f"v_add_u32 v{vDm[i]}, {7168 * i}, v{vDm[0]}" for i in range(1, 4)]
        S.flow(val, 0, 24)

    def p3_late_setup(self):
        t = MX
        val = [f"v_lshl_add_u32 v{t}, s{sB}, 10, v{vL16}", f"v_lshrrev_b32 v{t+1}, 1, s{sWv}", f"v_lshlrev_b32 v{t+1}, 12, v{t+1}"]
        for k in range(4):
            val += [f"v_add_u32 v{vAo[0][k]}, {1024 * k}, v{t}", f"v_and_b32 v{vAo[0][k]}, 0xfff, v{vAo[0][k]}",
                    f"v_add_u32 v{vAo[0][k]}, v{vAo[0][k]}, v{t+1}", f"v_add_u32 v{vAo[1][k]}, 0x10000, v{vAo[0][k]}",
                    f"v_add_u32 v{vAo[2][k]}, 0x20000, v{vAo[0][k]}"]
        return val

    def p3_dma(self, st, which):
        slot = st % 5
        s = self.st()
        ops = []

        def wr(c):
            al = []
            if st == 0:
                al = [(("W", 0), ("P", st), True)]
            elif st < 5:
                al = [(("K" if st < 3 else "V", k), ("P", st), True) for k in range(4)] + ([(("F", 0), ("P", st), True)] if st >= 3 else [])
            return [(("P", slot, which), ("P", st, c.get("fb")), True)] + al
        if which == "W":
            if st == 7:
                ops += [Op(f"s_mov_b32 s{rW}, s{pWO}"), Op(f"s_mov_b32 s{rW+1}, s{pWO+1}"), Op(f"s_mov_b32 s{rW+2}, {4 * MB}")]
            ops.append(Op(f"s_add_u32 m0, s{sM0p}, {PSLOT[slot] + 16384}"))
            ops.append(Op(f"s_add_u32 s{s}, s{sW2b if st < 7 else sWob}, {(st if st < 7 else st - 7) * 65536}"))
            for i in range(4):
                ops.append(Op(f"buffer_load_dwordx4 v{vDm[i]}, {srd(rW)}, s{s} offen offset:{i * 1024} lds", lds_wr=wr))
        else:
            ops.append(Op(f"s_add_u32 m0, s{sM0p}, {PSLOT[slot]}"))
            if st < 7:
                ops.append(Op(f"s_add_u32 s{s}, s{sActH}, {ACT_OFF + ACT_HOFF + st * 8192}"))
            else:
                ops.append(Op(f"s_add_u32 s{s}, s{sActC}, {ACT_OFF + ((st - 7) >> 1) * ACT_HD + ((st - 7) & 1) * 8192}"))
            for i in range(4):
                ops.append(Op(f"buffer_load_dwordx4 v{vL16}, {srd(rWS)}, s{s} offen offset:{i * 1024}{self.a.ld} lds", lds_wr=wr,
                              after="h" if st < 7 else "c"))
        return ops

    def p3_reads(self, st):
        slot = st % 5
        hi, base = PSLOT[slot] >> 16, PSLOT[slot] & 0xffff
        rd = lambda which: (lambda cx: (("P", slot, which), ("P", st, cx.get("fb")), True))

        def wf(c):
            return [Op(f"ds_read_b64_tr_b16 {vr(FW + 32 * (st & 1) + 8 * c + 4 * kk + 2 * hh, 2)}, v{vR[hi][c]} offset:{base + kk * 8192 + hh * 2048}", lds_rd=rd("W"))
                    for kk in range(2) for hh in range(2)]

        def af(k):
            return [Op(f"ds_read_b128 {vr(FA + 32 * (st & 1) + 8 * k + 4 * kk)}, v{vAo[hi][k]} offset:{base + kk * 8192}", lds_rd=rd("A"))
                    for kk in range(2)]
        return af(1) + wf(0) + wf(1) + af(2) + wf(2) + wf(3) + af(3) + af(0)

    def one_extra(self, S, T, info, last):
        if self.a.upto == "attn":
            return
        prev = None
        for st, lo, hi in ((0, 1, info["bar"] - 2), (1, info["bar"] + 1, info["N"] - 1)):
            if st >= self.a.pre:
                continue
            ops = self.p3_dma(st, "W") + (self.p3_dma(st, "A") if st == 0 else [])
            nv = sum(o.kind in VM for o in ops)
            k = 0
            for o in ops:
                tgt = int(lo + k * (hi - lo + 1) / nv)
                if o.kind in VM:
                    prev = Task(o, tgt, int(lo + (k + 1) * (hi - lo + 1) / nv) - 1, [(prev, 1)])
                    k += 1
                else:
                    prev = Task(o, 0, tgt, [(prev, 0)] if prev else [])
                T.append(prev)
        if self.a.ct3:
            val, ops = self.code_touch(2, 3, 1024)
            l0 = self.chain_tasks(T, val, 0, 24)
            l1 = Task(ops[0], 0, 26)
            T += [l1, Task(ops[1], 0, 28, [(l0, 1), (l1, 0)])]
        if self.a.t3:
            last = self.chain_tasks(T, [f"s_lshr_b32 s{sKo}, s{sB}, 3", f"s_lshl_b32 s{sKo}, s{sKo}, 2", f"s_add_u32 s{sKo}, s{sKo}, s{sWv}",
                                        f"s_min_u32 s{sVo}, s{sKo}, 111", f"s_lshl_b32 s{sVo}, s{sVo}, 12",
                                        f"s_and_b32 s{sTmp2}, s{sB}, 3", f"s_mul_i32 s{sTmp}, s{sTmp2}, {14 * 32768}", f"s_add_u32 s{sVo}, s{sVo}, s{sTmp}",
                                        f"s_sub_u32 s{sTmp}, 384, s{pW2}", f"s_and_b32 s{sTmp}, s{sTmp}, 0x380", f"s_add_u32 s{sVo}, s{sVo}, s{sTmp}",
                                        f"s_lshl_b32 s{sKo}, s{sKo}, 13", f"s_lshl_b32 s{sTmp}, s{sTmp2}, 20", f"s_add_u32 s{sKo}, s{sKo}, s{sTmp}",
                                        f"s_sub_u32 s{sTmp}, 384, s{pWO}", f"s_and_b32 s{sTmp}, s{sTmp}, 0x380", f"s_add_u32 s{sKo}, s{sKo}, s{sTmp}"], 0, 32)
            l2 = self.chain_tasks(T, [f"v_and_b32 v{MX+1}, {7 * 16}, v{vL16}", f"v_lshlrev_b32 v{MX+1}, 6, v{MX+1}", f"v_and_b32 v{MX}, 0xc00, v{MX+1}"], 0, 32)
            t1 = Task(f"buffer_load_dword v{MX+2}, v{MX}, {srd(rW)}, s{sVo} offen", 0, 40, [(last, 1), (l2, 1)])
            T += [t1, Task(f"buffer_load_dword v{MX+2}, v{MX+1}, {srd(rX)}, s{sKo} offen", 0, 44, [(t1, 2)])]

    def tail(self, B):
        if self.a.upto == "attn":
            p = Plain("epiB")
            for o in self.stamp_ops():
                p.e(o)
            self.epilogue(p.e, [2, 3])
            return [B["check2"]], [p]
        D = self.a.pd
        m = Plain("p3pre0")
        p = Plain("p3pre")
        e = p.e
        for o in self.hold_ops("att") + self.stamp_ops():
            e(o)
        lds = []
        for st in range(self.a.pre, 3):
            lds += self.p3_dma(st, "W") + self.p3_dma(st, "A")
        ep = Plain("tmp")
        self.epilogue(ep.e, [2, 3])
        for x in self.p3_late_setup() + [f"v_add_u32 v{vR[i][c]}, {i << 16}, v{vR[0][c]}" for c in range(4) for i in (1, 2)]:
            ep.e(x)
        ep.e(f"v_bfe_u32 v{Zu}, v{vL16}, 4, 4")
        ep.e(f"v_lshlrev_b32 v{Zu}, 10, v{Zu}")
        ep.e(f"v_lshrrev_b32 v{vA}, 8, v{vL16}")
        ep.e(f"v_lshl_add_u32 v{Zu}, v{vA}, 3, v{Zu}")
        li = [0]

        def take(n):
            while li[0] < len(lds) and n > 0:
                o = lds[li[0]]
                e(o)
                li[0] += 1
                if o.kind in VM:
                    n -= 1
        k = 0
        for o in ep.ops:
            e(o)
            k += 1
            if k % self.a.epistep == 0:
                take(1)
        take(1000)
        for o in self.stamp_ops():
            e(o)
        e(W(vm=True))
        e("s_barrier")
        rd0 = self.p3_reads(0)
        lds = []
        li[0] = 0
        for st in range(3, D):
            lds += self.p3_dma(st, "W") + self.p3_dma(st, "A")
        for i, o in enumerate(rd0):
            e(o)
            if i % 3 == 2:
                take(1)
        take(1000)
        S = Seg("p3")
        order = [(c, k) for k in (1, 2, 3, 0) for c in range(4)]
        for st in range(NST):
            for (c, k) in order:
                d = vr(ACC + 16 * k + 4 * c)
                for kk in range(2):
                    S.mfma(f"{MF} {d}, {vr(FW + 32 * (st & 1) + 8 * c + 4 * kk)}, {vr(FA + 32 * (st & 1) + 8 * k + 4 * kk)}, {d if st or kk else 0}")
        S.pre += [W(lg=True)]
        keep = lambda l: [setattr(o, "kind", "salu" if o.kind == "valu" else o.kind) or o for o in l]
        cld = f"s_load_dwordx8 s[88:95], s[{sPollC}:{sPollC+1}], 0x0 glc"
        cred = ["s_and_b64 s[88:89], s[88:89], s[90:91]", "s_and_b64 s[92:93], s[92:93], s[94:95]", "s_and_b64 s[88:89], s[88:89], s[92:93]",
                "s_and_b32 s88, s88, s89", "s_cmp_eq_u32 s88, 0"]
        for st in range(NST):
            g0 = 32 * st
            if st + 1 < NST:
                rg = [x for x in range(32) if x % 4 != 2]
                for i, o in enumerate(self.p3_reads(st + 1)):
                    S.put(g0 + rg[i], o)
            ops = []
            sn = st + D
            if st == self.a.pub:
                ops += [Op(f"buffer_store_dword v{vD}, v{vSel0}, {srd(rWS)}, s{sFlagC} offen sc1", needs=[("cst", True)],
                           expect={("v", vD): f"v_mov_b32 v{vD}, 1", ("v", vSel0): f"v_lshlrev_b32 v{vSel0}, 28, v0",
                                   ("s", sFlagC): f"s_add_u32 s{sFlagC}, s{sFlagC}, {CFLAG_OFF}"})]
            if sn < NST:
                ops += self.p3_dma(sn, "W")
                if sn == 7:
                    ops += keep(self.stamp_ops()) if self.a.p3stamps else []
                    ops += [Op(cred[0], expect={**{("s", 88 + i): cld for i in range(8)}, ("s", sPollC): f"s_add_u32 s{sPollC}, s{pWS}, s{sTmp}"})]
                    ops += [Op(x) for x in cred[1:]] + [Op("s_cbranch_scc1 L_spin_c"), Op("L_back_c:")]
                    ops += keep(self.stamp_ops()) if self.a.p3stamps else []
                if sn in (11, 15, 19) and self.a.p3stamps:
                    ops += keep(self.stamp_ops())
                ops += self.p3_dma(sn, "A")
            if sn == NST:
                ops += [Op(f"s_mov_b32 s{rX}, s{pX}"), Op(f"s_mov_b32 s{rX+1}, s{pX+1}"), Op(f"s_mov_b32 s{rX+2}, {2 * MB}")]
                ops += [Op(f"buffer_load_dwordx2 {vr(XR + 2 * c, 2)}, v{Zu}, {srd(rX)}, s{sRG} offen offset:{32 * c}") for c in range(4)]
                for k in range(4):
                    ops += [Op(f"s_add_u32 s{sTmp}, s{sB}, {k}"), Op(f"s_and_b32 s{sTmp}, s{sTmp}, 3"), Op(f"s_andn2_b32 s{sTmp2}, s{sB}, 3"),
                            Op(f"s_add_u32 s{sTmp}, s{sTmp}, s{sTmp2}"), Op(f"s_lshl_b32 s{sTmp}, s{sTmp}, 2"), Op(f"s_add_u32 s{sTmp}, s{sTmp}, s{sWv}"),
                            Op(f"s_mul_i32 s{sTmp}, s{sTmp}, {XCH_W}"), Op(f"s_add_u32 s{sAct[k]}, s{sTmp}, {XCH_OFF + max(0, k - 1) * 2048}")]
            S.flow(ops, g0, g0 + (31 if sn != NST else 63))
            if sn == 6:
                S.put(g0 + 27, cld)
                S.put(g0 + 31, "s_waitcnt lgkmcnt(0)")
            if st + 2 < NST:
                S.put(g0 + 29, W(vm=True))
                S.put(g0 + 31, "s_barrier")
        S.auto_lg_waits(lat=5, verbose=self.a.verbose)
        g0 = 32 * (NST - 1)
        PK = FA + 32 * (NST & 1)
        tailops = []
        for k in (1, 2, 3):
            rel = g0 + 8 * k + 2
            ops = [f"v_cvt_pk_bf16_f32 v{PK + 8 * (k - 1) + i}, v{ACC + 16 * k + 2 * i}, v{ACC + 16 * k + 2 * i + 1}" for i in range(8)]
            sts = [Op(f"buffer_store_dwordx4 {vr(PK + 8 * (k - 1) + 4 * h)}, v{vL16}, {srd(rWS)}, s{sAct[k]} offen offset:{1024 * h} sc1", after="h") for h in range(2)]
            S.flow(ops + sts, rel, S.n() - 1)
        q = Plain("spin_c")
        q.e("L_spin_c:")
        q.e(f"s_mov_b32 s{sSpin}, 0")
        q.e("L_spin2_c:")
        q.e(cld)
        q.e(f"s_add_u32 s{sSpin}, s{sSpin}, 1")
        q.e(f"s_cmp_gt_u32 s{sSpin}, 400000")
        q.e("s_waitcnt lgkmcnt(0)")
        q.e("s_cbranch_scc1 L_back_c")
        for x in cred:
            q.e(x)
        q.e("s_cbranch_scc0 L_back_c")
        q.e("s_sleep 2")
        q.e("s_branch L_spin2_c")
        self.ool.append(q)
        f = Plain("final")
        e = f.e
        for o in self.stamp_ops():
            e(o)
        IN = FW
        U = ET
        e(f"s_add_u32 s{sTmp}, s{sAct[0]}, 4096")
        e(f"s_mov_b32 s{sCnt}, 0")
        lo = [f"buffer_load_dwordx4 {vr(IN + 4 * i)}, v{vL16}, {srd(rWS)}, s{sAct[0] if i < 4 else sTmp} offen offset:{1024 * (i & 3)} sc1" for i in range(6)]
        for x in lo:
            e(x)
        e(W(vm=True))
        for i in range(8):
            e(f"v_lshlrev_b32 v{U+2*i}, 16, v{XR+i}")
            e(f"v_and_b32 v{U+2*i+1}, 0xffff0000, v{XR+i}")
        for i in range(8):
            e(f"v_pk_add_f32 {vr(ACC+2*i, 2)}, {vr(ACC+2*i, 2)}, {vr(U+2*i, 2)}")
        e("L_xchk:")
        e("s_waitcnt vmcnt(0)")
        e(f"v_max_u32 v{vP}, v{IN}, v{IN+1}")
        e(f"v_max_u32 v{vA}, v{IN+2}, v{IN+3}")
        for i in range(2, 12):
            r = vP if i % 2 == 0 else vA
            e(f"v_max3_u32 v{r}, v{r}, v{IN+2*i}, v{IN+2*i+1}")
        e(f"v_max_u32 v{vP}, v{vP}, v{vA}")
        e(f"v_cmp_eq_u32 vcc, -1, v{vP}")
        e("s_nop 1")
        e("s_cbranch_vccnz L_xspin")
        e("L_xok:")
        for o in self.stamp_ops():
            e(o)
        for c in range(4):
            for k in range(3):
                for h in range(2):
                    src = IN + 8 * k + 2 * c + h
                    e(f"v_lshlrev_b32 v{U+4*k+2*h}, 16, v{src}")
                    e(f"v_and_b32 v{U+4*k+2*h+1}, 0xffff0000, v{src}")
            for k in range(3):
                for h in range(2):
                    e(f"v_pk_add_f32 {vr(ACC+4*c+2*h, 2)}, {vr(ACC+4*c+2*h, 2)}, {vr(U+4*k+2*h, 2)}")
            for h in range(2):
                e(f"v_cvt_pk_bf16_f32 v{XR+2*c+h}, v{ACC+4*c+2*h}, v{ACC+4*c+2*h+1}")
            e(f"buffer_store_dwordx2 {vr(XR+2*c, 2)}, v{Zu}, {srd(rH)}, s{sRG} offen offset:{32 * c}")
        q = Plain("spin_x")
        q.e("L_xspin:")
        q.e(f"s_add_u32 s{sCnt}, s{sCnt}, 1")
        q.e(f"s_cmp_gt_u32 s{sCnt}, 200000")
        q.e("s_cbranch_scc1 L_xok")
        if self.a.xsleep:
            q.e(f"s_sleep {self.a.xsleep}")
        for x in lo:
            q.e(x)
        q.e("s_branch L_xchk")
        self.ool.append(q)
        return [m, B["check2"]], [p, S, f]

    def finish(self, blocks, traces):
        for it in range(2):
            for name, tr in traces:
                Tracer(name, tr).run(resolve=True)
        soft = 0
        for name, tr in traces:
            T = Tracer(name, tr)
            T.run(resolve=False)
            soft += T.hazards()
            T.intent()
        for b in blocks:
            n = b.n() if isinstance(b, Seg) else 0
            print(f"  block {b.name:12s} mfma={n:5d} est.cycles={b.cycles():6d}" + (f" (ideal {16*n})" if n else ""))
        print("  mfma distances satisfied by pipe timing only:", soft, " stamps:", self.nstamp)
        hdr = open(self.a.ref).read().split("; Override launch")[0]
        out = [hdr.rstrip("\n"),
               "; generated by gen/gen.py (hand-written generator)",
               f"; @launch grid=(256,1,1) block=(256,1,1) lds={LDS_BYTES}",
               '.amdgcn_target "amdgcn-amd-amdhsa--gfx950"', ".text", f".globl {NAME}_kernel", ".p2align 8",
               f".type {NAME}_kernel,@function", f"{NAME}_kernel:"]
        for b in blocks + self.ool:
            out.append(f"; ---- {b.name} ----")
            for o in b.linear():
                t = o.render()
                out.append(t if o.kind == "label" else " " + t)
        out += ["L_code_end:", " s_endpgm"]
        out += ['.section .rodata,"a"', ".p2align 6", f".amdhsa_kernel {NAME}_kernel",
                "  .amdhsa_next_free_vgpr 512", "  .amdhsa_next_free_sgpr 102", "  .amdhsa_accum_offset 256",
                "  .amdhsa_group_segment_fixed_size 0", "  .amdhsa_kernarg_size 104", "  .amdhsa_user_sgpr_count 2",
                "  .amdhsa_user_sgpr_kernarg_segment_ptr 1", "  .amdhsa_system_sgpr_workgroup_id_x 1", ".end_amdhsa_kernel", ""]
        open(self.a.out, "w").write("\n".join(out))


def args():
    ap = argparse.ArgumentParser()
    ap.add_argument("--out", default="k.s")
    ap.add_argument("--ref", default=f"cdna_kernels/{NAME}.s.ref")
    ap.add_argument("--upto", default="full")
    ap.add_argument("--stamps", action="store_true")
    ap.add_argument("--finestamps", action="store_true")
    ap.add_argument("--wld", default="")
    ap.add_argument("--tld", default="")
    ap.add_argument("--prostamps", action="store_true")
    ap.add_argument("--rmask", type=int, default=3)
    ap.add_argument("--jmask", type=int, default=7)
    ap.add_argument("--ctouch", type=int, default=1)
    ap.add_argument("--wtouch", type=int, default=1)
    ap.add_argument("--otouch", type=int, default=1)
    ap.add_argument("--quick", type=int, default=4)
    ap.add_argument("--pd", type=int, default=4)
    ap.add_argument("--win1", type=int, default=0)
    ap.add_argument("--xld", default="")
    ap.add_argument("--lead", default="")
    ap.add_argument("--t23", default="")
    fl = lambda x: [float(v) for v in x.split(",")]
    ap.add_argument("--tg", type=fl, default=fl("21.5,25.5,26,21"))
    ap.add_argument("--w1early", type=int, default=5)
    ap.add_argument("--lite", action="store_true")
    ap.add_argument("--pub", type=int, default=1)
    ap.add_argument("--pre", type=int, default=2)
    ap.add_argument("--xsleep", type=int, default=6)
    ap.add_argument("--xcl", type=fl, default=fl("91,2.6"))
    ap.add_argument("--tlb", type=int, default=0)
    ap.add_argument("--hold", default="")
    ap.add_argument("--redo", action="store_true")
    ap.add_argument("--dbgout", type=int, default=-1)
    ap.add_argument("--ct2", type=fl, default=fl("44,92"))
    ap.add_argument("--ct3", type=int, default=1)
    ap.add_argument("--t3", type=int, default=6)
    ap.add_argument("--tnt", type=fl, default=fl("0,0,0"))
    ap.add_argument("--clead", type=float, default=4.5)
    ap.add_argument("--wlead", type=float, default=3)
    ap.add_argument("--wstart", type=fl, default=fl("19,23,31,39,47,55,63,71,79,87"))
    ap.add_argument("--wstep", type=fl, default=fl("0.3,0.3,1,1,1,1,1,1,1,1"))
    ap.add_argument("--kst", type=fl, default=fl("35,1.35"))
    ap.add_argument("--vst", type=fl, default=fl("70.5,1.2"))
    ap.add_argument("--hst", type=fl, default=fl("84,3.6"))
    ap.add_argument("--xn", type=fl, default=fl("40,0.5"))
    ap.add_argument("--kv", type=fl, default=fl("96,3,109"))
    ap.add_argument("--kflag", type=int, default=8)
    ap.add_argument("--vflag", type=int, default=11)
    ap.add_argument("--vmin", type=int, default=3)
    ap.add_argument("--vrate", type=float, default=4.4)
    ap.add_argument("--vburst", type=float, default=6)
    ap.add_argument("--rt", action="store_true")
    ap.add_argument("--p3stamps", action="store_true")
    ap.add_argument("--cgx", type=int, default=0)
    ap.add_argument("--pmask", type=int, default=3)
    ap.add_argument("--pshift", type=int, default=0)
    ap.add_argument("--epistep", type=int, default=1000)
    ap.add_argument("--verbose", action="store_true")
    ap.add_argument("--ld", default=" sc1")
    ap.add_argument("--st", default=" sc1")
    return ap.parse_args()


if __name__ == "__main__":
    Gen(args()).build()
```
